```python
import torch

def _softmax(x, axis=-1):
    return torch.softmax(x, dim=axis)

def _gelu(x):
    return torch.nn.functional.gelu(x, approximate='tanh')

def _silu(x):
    return torch.nn.functional.silu(x)

def _sigmoid(x):
    return torch.sigmoid(x)

def _layernorm(x, axis=-1, eps=1e-05):
    m = x.mean(dim=axis, keepdim=True)
    v = x.var(dim=axis, keepdim=True, unbiased=False)
    return (x - m) / torch.sqrt(v + eps)

def _scatter_add(tgt, idx, src, axis=0):
    return tgt.clone().index_add_(axis, idx, src)

def _segment_sum(src, seg, n):
    out = torch.zeros((n,) + src.shape[1:], dtype=src.dtype)
    return out.index_add_(0, seg, src)

def _pad(x, pw):
    flat = tuple((v for pair in reversed(pw) for v in pair))
    return torch.nn.functional.pad(x, flat)
kernel_name = 'sequential_preLN__sliding_block__mixer_gmlp__prompt'

def setup_inputs():

    _w = lambda a: (lambda t: t.to(torch.bfloat16) if t.is_floating_point() else t)(torch.as_tensor(a))

    def _A_setup():
        B, S, D = (1, 2048, 576)
        return {'x': _w((lambda *s: torch.randn(*s, dtype=torch.bfloat16) * 0.05)(B, S, D)), 'wqkv': _w((lambda *s: torch.randn(*s, dtype=torch.bfloat16) * 0.05)(D, 3 * D)), 'wo': _w((lambda *s: torch.randn(*s, dtype=torch.bfloat16) * 0.05)(D, D))}
    _A_in = _A_setup()

    def _B_setup():
        B, S, D, F = (1, 2048, 576, 4608)
        Fh = F // 2
        return {'x': _w((lambda *s: torch.randn(*s, dtype=torch.bfloat16) * 0.05)(B, S, D)), 'w_in': _w((lambda *s: torch.randn(*s, dtype=torch.bfloat16) * 0.8)(D, 2 * Fh)), 'w_sp': _w(0.01 * (lambda *s: torch.randn(*s, dtype=torch.bfloat16) * 0.8)(S, S)), 'b_sp': _w(1.0 + 0.01 * (lambda *s: torch.randn(*s, dtype=torch.bfloat16) * 0.05)(S)), 'w_out': _w((lambda *s: torch.randn(*s, dtype=torch.bfloat16) * 0.05)(Fh, D))}
    _B_in = _B_setup()
    return {'A_x': _A_in['x'], 'A_wqkv': _A_in['wqkv'], 'A_wo': _A_in['wo'], 'B_x': _B_in['x'], 'B_w_in': _B_in['w_in'], 'B_w_sp': _B_in['w_sp'], 'B_b_sp': _B_in['b_sp'], 'B_w_out': _B_in['w_out']}

def reference(A_x, A_wqkv, A_wo, B_x, B_w_in, B_w_sp, B_b_sp, B_w_out):

    def _A_ref(x, wqkv, wo):
        B, S, D = x.shape
        H = 32
        Dh = D // H
        W = 256
        qkv = (lambda x, *d: x.permute(*d))((x @ wqkv).reshape(B, S, 3, H, Dh), 2, 0, 3, 1, 4)
        q, k, v = (qkv[0], qkv[1], qkv[2])
        scores = torch.einsum('bhqd,bhkd->bhqk', q, k) * Dh ** (-0.5)
        idx = torch.arange(S)
        mask = (idx[:, None] - idx[None, :] >= 0) & (idx[:, None] - idx[None, :] < W)
        scores = torch.where(mask[None, None], scores, -1000000000.0)
        p = _softmax(scores, axis=-1)
        o = torch.einsum('bhqk,bhkd->bhqd', p, v)
        return (lambda x, *d: x.permute(*d))(o, 0, 2, 1, 3).reshape(B, S, D) @ wo

    def _B_ref(x, w_in, w_sp, b_sp, w_out):
        B, S, D = x.shape
        F = w_in.shape[-1]
        Fh = F // 2
        z = _gelu(torch.einsum('bsd,df->bsf', x, w_in))
        z1 = z[..., :Fh].clone()
        z2 = _layernorm(z[..., Fh:], axis=-1)
        g = torch.einsum('ts,bsf->btf', w_sp, z2) + b_sp[None, :, None]
        return torch.einsum('bsf,fd->bsd', z1 * g, w_out)
    x = A_x
    h = x + _A_ref(_layernorm(x, axis=-1), A_wqkv, A_wo)
    h2 = h + _B_ref(_layernorm(h, axis=-1), B_w_in, B_w_sp, B_b_sp, B_w_out)
    return h2
```

```python
class K:
    def __init__(self, name, grid, block, lds=0):
        self.name, self.grid, self.block, self.lds = name, grid, block, lds
        self.lines = []
        self.vmax = 0; self.amax = -1; self.smax = 0
        self.nlab = 0
        self.accum_offset = None
        self.nvgpr = None
    def __call__(self, s=""):
        for l in s.split("\n"):
            l = l.strip()
            if not l: continue
            if l.endswith(":"): self.lines.append(l)
            else: self.lines.append("    " + l)
    def c(self, s): self.lines.append("    ; " + s)
    def label(self, base="L"):
        self.nlab += 1
        return f"{self.name}_{base}{self.nlab}"
    def scan_regs(self):
        import re
        vm = am = sm = -1
        for l in self.lines:
            l = l.split(";")[0]
            for m in re.finditer(r"\b([vas])\[(\d+):(\d+)\]", l):
                t, hi = m.group(1), int(m.group(3))
                if t == "v": vm = max(vm, hi)
                elif t == "a": am = max(am, hi)
                else: sm = max(sm, hi)
            for m in re.finditer(r"\b([vas])(\d+)\b", l):
                t, hi = m.group(1), int(m.group(2))
                if t == "v": vm = max(vm, hi)
                elif t == "a": am = max(am, hi)
                else: sm = max(sm, hi)
        return vm, am, sm
    def text(self):
        import hazard
        self.lines, self.nops = hazard.fix(self.lines, getattr(self, "verbose", False), self.name)
        vm, am, sm = self.scan_regs()
        acc = ((vm + 1 + 3) // 4) * 4
        acc = max(acc, 4)
        nfv = acc + am + 1 if am >= 0 else vm + 1
        if self.nvgpr: nfv = max(nfv, self.nvgpr)
        assert acc <= 256 and nfv <= 512, (acc, nfv)
        assert sm < 102
        body = [f".globl {self.name}", ".p2align 8", f".type {self.name},@function", f"{self.name}:"] + self.lines
        kd = [f".amdhsa_kernel {self.name}",
              f"  .amdhsa_next_free_vgpr {nfv}",
              f"  .amdhsa_next_free_sgpr {max(sm + 1, 16)}",
              f"  .amdhsa_accum_offset {acc}",
              "  .amdhsa_group_segment_fixed_size 0",
              "  .amdhsa_kernarg_size 88",
              "  .amdhsa_user_sgpr_count 2",
              "  .amdhsa_user_sgpr_kernarg_segment_ptr 1",
              "  .amdhsa_system_sgpr_workgroup_id_x 1",
              "  .amdhsa_float_denorm_mode_32 3",
              ".end_amdhsa_kernel"]
        self.stats = (vm + 1, am + 1, sm + 1, nfv)
        return "\n".join(body), "\n".join(kd)

def build(kernels, launches=None, header=""):
    launches = launches or kernels
    out = []
    if header: out += ["; " + l for l in header.strip().split("\n")]
    for k in launches:
        g, b = k.grid, k.block
        out.append(f"; @launch kernel={k.name} grid=({g},1,1) block=({b},1,1) lds={k.lds}")
    out.append('.amdgcn_target "amdgcn-amd-amdhsa--gfx950"')
    out.append(".text")
    kds = []
    for k in kernels:
        b, kd = k.text()
        out.append(b); kds.append(kd)
    out.append('.section .rodata,"a"')
    for kd in kds:
        out.append(".p2align 6"); out.append(kd)
    return "\n".join(out) + "\n"

def vr(a, n=1): return f"v{a}" if n == 1 else f"v[{a}:{a+n-1}]"
def ar(a, n=1): return f"a{a}" if n == 1 else f"a[{a}:{a+n-1}]"
def sr(a, n=1): return f"s{a}" if n == 1 else f"s[{a}:{a+n-1}]"
```

```python
from asmgen import *
from layout import *

def srd(k, s, base_lo, off, size):
    if off:
        k(f"s_add_u32 s{s}, s{base_lo}, {off}\ns_addc_u32 s{s+1}, s{base_lo+1}, 0")
    else:
        k(f"s_mov_b32 s{s}, s{base_lo}\ns_mov_b32 s{s+1}, s{base_lo+1}")
    k(f"s_mov_b32 s{s+2}, {size}\ns_mov_b32 s{s+3}, 0x20000")
def S4(s): return f"s[{s}:{s+3}]"

class Stamps:
    def __init__(self, k, on): self.k, self.on = k, on
    def __call__(self, idx):
        if not self.on: return
        self.k(f"s_memtime s[{80+2*idx}:{81+2*idx}]")
        if idx == 0: self.k("s_memrealtime s[96:97]")
    def flush(self, n, wave_s, srd_ws, kidx):
        if not self.on: return
        k = self.k
        k("s_waitcnt vmcnt(0)")
        self(n - 1)
        k("s_memrealtime s[98:99]\ns_waitcnt lgkmcnt(0)")
        k(f"s_lshl_b32 s78, s2, 3\ns_add_u32 s78, s78, s{wave_s}\ns_lshl_b32 s78, s78, 5\ns_add_u32 s78, s78, {WS_DBG + kidx * 65536}")
        k("s_mov_b64 exec, -1\nv_mov_b32 v1, s78")
        for i in range(1, n):
            k(f"s_sub_u32 s79, s{80+2*i}, s80\nv_mov_b32 v2, s79\nbuffer_store_dword v2, v1, {S4(srd_ws)}, 0 offen offset:{4*i}")
        k(f"v_mov_b32 v2, s96\nbuffer_store_dword v2, v1, {S4(srd_ws)}, 0 offen offset:24")
        k(f"v_mov_b32 v2, s98\nbuffer_store_dword v2, v1, {S4(srd_ws)}, 0 offen offset:28")

def magic(d, maxc):
    for sh in range(8, 24):
        m = -(-(1 << sh) // d)
        if m * maxc < (1 << 32) and m < (1 << 24) and all((c * m) >> sh == c // d for c in range(maxc + 1)): return m, sh
    raise ValueError
def vdiv(k, vq, vrem, vc, d, maxc):
    m, sh = magic(d, maxc)
    k(f"v_mul_u32_u24 v{vq}, {m}, v{vc}\nv_lshrrev_b32 v{vq}, {sh}, v{vq}")
    if vrem is not None:
        k(f"v_mul_u32_u24 v{vrem}, {d}, v{vq}\nv_sub_u32 v{vrem}, v{vc}, v{vrem}")
def vrowmap(k, vdst, vp, coefs, const, scale, vtmp, stmp):
    fields = []
    b = 0
    while b < len(coefs):
        e = b + 1
        while e < len(coefs) and coefs[e] == coefs[b] << (e - b): e += 1
        fields.append((b, e - b, coefs[b])); b = e
    first = True
    for (b, n, c) in fields:
        src = vp
        if not (b == 0 and n == len(coefs)):
            k(f"v_bfe_u32 v{vtmp}, v{vp}, {b}, {n}"); src = vtmp
        if first:
            k(f"v_mul_u32_u24 v{vdst}, {c*scale}, v{src}")
            first = False
        else:
            k(f"s_mov_b32 s{stmp}, {c*scale}\nv_mad_u32_u24 v{vdst}, v{src}, s{stmp}, v{vdst}")
    if const: k(f"v_add_u32 v{vdst}, {const*scale}, v{vdst}")

def spread(n_items, n_gaps):
    out = []
    acc = 0
    for g in range(n_gaps):
        tgt = -(-n_items * (g + 1) // n_gaps)
        out.append(tgt - acc); acc = tgt
    return out

class Cons:
    def __init__(self, k, NT, NF, KB, ACC, FR0, orient, reads, rdgaps=None):
        self.k, self.NT, self.NF, self.KB, self.ACC, self.orient, self.readsfn = k, NT, NF, KB, ACC, orient, reads
        self.per = 4 * KB * (NT + NF)
        self.FR = [FR0, FR0 + self.per]
        self.end = FR0 + 2 * self.per
        n = KB * NT * NF
        self.rdgaps = rdgaps or max(1, n - max(1, n // 3))
    def T(self, buf, kb, tt): return self.FR[buf] + 4 * (kb * (self.NT + self.NF) + tt)
    def W(self, buf, kb, ft): return self.FR[buf] + 4 * (kb * (self.NT + self.NF) + self.NT + ft)
    def acc(self, tt, ft): return self.ACC + (tt * self.NF + ft) * 4
    def reads(self, st, blk, buf): return self.readsfn(self, st, blk, buf)
    def block(self, buf, rd, extra=(), zero_c=False):
        k = self.k
        rd = list(rd); extra = list(extra)
        n = self.KB * self.NT * self.NF
        cnt = spread(len(rd), self.rdgaps) + [0] * n
        e0 = max(0, n - len(extra) - 1) if False else 0
        ecnt = spread(len(extra), n) if extra else [0] * n
        i = 0
        for kb in range(self.KB):
            for ft in range(self.NF):
                for tt in range(self.NT):
                    a = self.acc(tt, ft)
                    w, t = vr(self.W(buf, kb, ft), 4), vr(self.T(buf, kb, tt), 4)
                    A, B = (w, t) if self.orient == "W" else (t, w)
                    c = "0" if (zero_c and kb == 0) else vr(a, 4)
                    k(f"v_mfma_f32_16x16x32_bf16 {vr(a,4)}, {A}, {B}, {c}")
                    for _ in range(cnt[i]): k(rd.pop(0))
                    for _ in range(ecnt[i]): k(extra.pop(0))
                    i += 1
        assert not rd and not extra
    def first_reads(self, st):
        for r in self.reads(st, 0, 0): self.k(r)
    def stage(self, s, last, vm=None, extraA=(), extraB=(), zero_c=False, barrier=True, post_barrier=()):
        k = self.k
        k("s_waitcnt lgkmcnt(0)")
        self.block(0, self.reads(s, 1, 1), extraA, zero_c)
        k("s_waitcnt lgkmcnt(0)" + (f" vmcnt({vm})" if vm is not None else ""))
        if barrier: k("s_barrier")
        for x in post_barrier: k(x)
        self.block(1, [] if last else self.reads(s + 1, 0, 0), extraB)

def prologue(k, name, nwg, sW, st):
    k(f"s_cmp_ge_u32 s2, {nwg}\ns_cbranch_scc1 {name}_end")
    st(0)
def wave_lane(k, sW):
    k("v_lshrrev_b32 v2, 6, v0\nv_and_b32 v1, 63, v0")
    k(f"v_readfirstlane_b32 s{sW}, v2")

T_SLOT, W_SLOT = 16384, 18432
W_BASE = 65536
X_BASE = W_BASE + 4 * W_SLOT
```

```python
import re
TRANS = ("v_exp_f32", "v_log_f32", "v_rcp_f32", "v_rsq_f32", "v_sqrt_f32", "v_sin_f32", "v_cos_f32", "v_rcp_iflag_f32")
def regs(tok):
    tok = tok.strip()
    tok = re.sub(r"^-|^\||\|$|^abs\(|\)$|^neg\(", "", tok)
    m = re.fullmatch(r"([vas])\[(\d+):(\d+)\]", tok)
    if m: return {(m.group(1), i) for i in range(int(m.group(2)), int(m.group(3)) + 1)}
    m = re.fullmatch(r"([vas])(\d+)", tok)
    if m: return {(m.group(1), int(m.group(2)))}
    if tok == "vcc": return {("s", "vcc")}
    if tok in ("vcc_lo", "vcc_hi"): return {("s", "vcc")}
    if tok == "exec": return {("s", "exec")}
    if tok == "m0": return {("s", "m0")}
    return set()
class I:
    def __init__(self, line):
        self.line = line
        t = line.split(";")[0].strip()
        self.label = t[:-1] if t.endswith(":") else None
        self.dir = t.startswith(".")
        self.empty = (not t) or self.dir
        self.op = ""; self.w = set(); self.r = set(); self.kind = None; self.slots = 0
        self.srcC = set(); self.srcAB = set(); self.data = set(); self.wide = False; self.passes = 0
        self.dpp = False; self.target = None
        if self.label or self.empty: return
        p = t.split(None, 1)
        op = self.op = p[0]
        base = re.sub(r"_(e32|e64|dpp|sdwa)$", "", op)
        self.base = base
        rest = p[1] if len(p) > 1 else ""
        rest2 = re.sub(r"\b(op_sel|op_sel_hi|neg_lo|neg_hi|quad_perm):\[[^\]]*\]", "", rest)
        toks = [x.strip() for x in rest2.split(",")]
        if toks:
            last = toks[-1].split()
            toks = toks[:-1] + (last[:1] if last else [])
            mods = " ".join(last[1:]) + " " + rest
        self.slots = 1
        if op == "s_nop": self.slots = int(toks[0], 0) + 1; self.kind = "nop"; return
        R = [regs(x) for x in toks]
        allr = set().union(*R) if R else set()
        if op.startswith("v_mfma"):
            self.kind = "mfma"; self.w = R[0]; self.srcAB = R[1] | R[2]; self.srcC = R[3]; self.r = self.srcAB | self.srcC
            self.passes = 8 if "32x32" in op else 4
        elif op.startswith("v_"):
            self.kind = "valu"
            self.dpp = op.endswith("_dpp") or "row_" in mods or "quad_perm" in rest
            if base.startswith("v_cmp"):
                self.w = R[0]; self.r = set().union(*R[1:])
                if base.startswith("v_cmpx"): self.w = self.w | {("s", "exec")}
            elif base.startswith("v_permlane") and "swap" in base:
                self.w = R[0] | R[1]; self.r = R[0] | R[1]; self.kind = "perm"
            elif base in ("v_add_co_u32", "v_sub_co_u32", "v_addc_co_u32", "v_subb_co_u32", "v_subrev_co_u32", "v_div_scale_f32", "v_mad_u64_u32"):
                self.w = R[0] | R[1]; self.r = set().union(*R[2:])
            else:
                self.w = R[0]; self.r = set().union(*R[1:]) if len(R) > 1 else set()
                if base in ("v_fmac_f32", "v_dot2c_f32_bf16", "v_pk_fmac_f16", "v_writelane_b32") or self.dpp: self.r = self.r | R[0]
                if base == "v_cndmask_b32" and len(R) == 3: self.r = self.r | {("s", "vcc")}
        elif op.startswith("ds_"):
            self.kind = "ds"
            if op.startswith("ds_read") or "_rtn" in op or op.startswith("ds_bpermute") or op.startswith("ds_permute") or op.startswith("ds_swizzle"):
                self.w = R[0]; self.r = set().union(*R[1:])
            else: self.r = allr
        elif op.startswith("buffer_") or op.startswith("global_"):
            self.kind = "vmem"
            lds = " lds" in (" " + mods) or "_lds_" in op
            if lds: self.r = allr | {("s", "m0")}; self.lds = True
            elif "wbl2" in op or "_inv" in op: pass
            elif "load" in op: self.w = R[0]; self.r = set().union(*R[1:])
            elif "atomic" in op:
                self.r = allr
                if "sc0" in mods: self.w = R[0]
            elif "store" in op:
                self.r = allr
                self.data = R[0] if op.startswith("buffer_") else R[1]
                self.wide = "x3" in op or "x4" in op
        elif op.startswith("s_"):
            self.kind = "salu"
            if op.startswith("s_cbranch") or op == "s_branch": self.target = toks[0]; self.kind = "branch"
            elif op.startswith("s_cmp") or op.startswith("s_bitcmp") or op in ("s_waitcnt", "s_barrier", "s_endpgm", "s_setprio", "s_sleep"): self.r = allr
            elif op.startswith("s_load") or op.startswith("s_buffer_load") or op in ("s_memtime", "s_memrealtime"): self.w = R[0]; self.r = set().union(*R[1:]) if len(R) > 1 else set(); self.kind = "smem"
            else:
                self.w = R[0]; self.r = set().union(*R[1:]) if len(R) > 1 else set()
                if "saveexec" in op: self.w = self.w | {("s", "exec")}
        else:
            raise ValueError("unknown op " + line)
def need(p, c):
    n = 0
    isv = lambda S: {x for x in S if x[0] in "va"}
    iss = lambda S: {x for x in S if x[0] == "s"}
    pv = p.kind in ("valu", "perm")
    cv = c.kind in ("valu", "perm")
    if pv:
        if c.kind == "mfma" and isv(p.w) & c.r: n = max(n, 2)
        if c.kind == "mfma" and ("s", "exec") in p.w: n = max(n, 4)
        if c.kind == "perm" and isv(p.w) & c.r: n = max(n, 2)
        if cv and c.dpp and isv(p.w) & c.r: n = max(n, 2)
        if cv and c.dpp and ("s", "exec") in p.w: n = max(n, 5)
        if c.kind == "valu" and c.base in ("v_readfirstlane_b32", "v_readlane_b32") and isv(p.w) & c.r: n = max(n, 1)
        if p.base in TRANS and cv and c.base not in TRANS and isv(p.w) & c.r: n = max(n, 1)
        if p.base in TRANS and c.kind == "mfma" and isv(p.w) & c.r: n = max(n, 2)
        sw = iss(p.w)
        if sw:
            if c.kind == "vmem" and sw & c.r: n = max(n, 5)
            if cv and sw & c.r: n = max(n, 4 if c.base in ("v_readlane_b32", "v_writelane_b32") else 2)
            if c.kind in ("salu", "smem", "branch") and sw & c.r: n = max(n, 1)
            if c.kind == "branch" and ("s", "vcc") in sw and "vcc" in c.op: n = max(n, 5)
            if c.kind == "branch" and ("s", "exec") in sw and "exec" in c.op: n = max(n, 5)
        if "sdwa" in p.op and cv and isv(p.w) & (c.r | c.w): n = max(n, 1)
    if p.kind == "mfma":
        far = 12 if p.passes == 8 else 8
        if c.kind == "mfma":
            if p.w & c.srcAB: n = max(n, far)
            if p.w & c.srcC and not (p.w == c.srcC and p.passes == c.passes): n = max(n, far - 2)
            if p.w & c.w and p.w != c.w: n = max(n, far - 2)
            if p.w & c.w and not (p.w & c.srcC): n = max(n, far - 2)
        elif c.kind in ("valu", "perm", "vmem", "ds"):
            if p.w & (c.r | c.w): n = max(n, far)
        if cv and p.srcC & c.w: n = max(n, 7 if p.passes == 8 else 3)
    if p.kind == "vmem" and p.wide and p.data & c.w:
        n = max(n, 2 if cv else 1)
    if p.kind == "salu" and ("s", "m0") in p.w and c.kind == "vmem" and ("s", "m0") in c.r: n = max(n, 1)
    return n
def fix(lines, verbose=False, name=""):
    ins = [I(l) for l in lines]
    added = 0
    changed = True
    start = 0
    while True:
        if not changed:
            if start == 0: break
            start = 0
        changed = False
        labels = {x.label: i for i, x in enumerate(ins) if x.label}
        preds = {}
        for i, x in enumerate(ins):
            if x.target in labels: preds.setdefault(labels[x.target], []).append(i)
        def back(i, dist, c, depth):
            worst = 0
            j = i - 1
            while j >= 0 and dist < 20:
                x = ins[j]
                if x.label:
                    if depth < 2:
                        for b in preds.get(j, []):
                            worst = max(worst, back(b + 1, dist, c, depth + 1))
                elif not x.empty:
                    if x.op in ("s_branch", "s_endpgm") and j != i - 1 + 0 and not (depth and j == i - 1): break
                    if x.op in ("s_branch", "s_endpgm") and not (depth and j == i - 1): break
                    nd = need(x, c)
                    if nd > dist: worst = max(worst, nd - dist)
                    dist += x.slots
                j -= 1
            return worst
        for i in range(start, len(ins)):
            c = ins[i]
            if c.label or c.empty or c.kind == "nop": continue
            sh = back(i, 0, c, 0)
            if sh > 0:
                if verbose: print(f"[hazard] {name}: +{sh} before: {c.line.strip()}")
                ins.insert(i, I(f"    s_nop {sh-1}"))
                added += sh
                changed = True
                start = i
                break
    return [x.line for x in ins], added
```

```python
from common import *
import math
QSCALE = (18 ** -0.5) * math.log2(math.e)
import struct
def f2u(x): return struct.unpack("<I", struct.pack("<f", x))[0]

def t_dma_setup(k, vDT0, vDT1, stride, t0=11):
    k(f"v_lshrrev_b32 v{t0}, 3, v1\nv_mul_u32_u24 v{t0+1}, {stride}, v{t0}")
    k(f"v_and_b32 v{t0+2}, 7, v1\nv_lshrrev_b32 v{t0+3}, 4, v1\nv_xor_b32 v{t0+2}, v{t0+2}, v{t0+3}")
    k(f"v_lshl_add_u32 v{vDT0}, v{t0+2}, 4, v{t0+1}")
    k(f"v_xor_b32 v{t0+2}, 4, v{t0+2}\nv_lshl_add_u32 v{vDT1}, v{t0+2}, 4, v{t0+1}\nv_add_u32 v{vDT1}, {8*stride}, v{vDT1}")
def t_swz_read_setup(k, vT0, vT1, sWv, t0=11):
    k(f"v_and_b32 v{t0}, 15, v1\nv_lshrrev_b32 v{t0+1}, 4, v1\nv_lshrrev_b32 v{t0+2}, 1, v{t0}\nv_xor_b32 v{t0+1}, v{t0+1}, v{t0+2}")
    k(f"v_lshlrev_b32 v{t0+1}, 4, v{t0+1}\nv_lshl_add_u32 v{t0+1}, v{t0}, 7, v{t0+1}\ns_lshl_b32 s38, s{sWv}, 12\nv_add_u32 v{vT0}, s38, v{t0+1}")
    k(f"v_xor_b32 v{vT1}, 64, v{vT0}")
def w_dma_setup(k, vDW, sLW, CH, nrows, coefs, const, stride, t0=11, nper=4, extra=True, mlist=None):
    n = nper + (1 if extra else 0)
    for i in range(n):
        if i < nper: k(f"s_mul_i32 s38, s{sLW}, {64*nper}\ns_add_u32 s38, s38, {64*i}")
        else: k(f"s_and_b32 s38, s{sLW}, 1\ns_lshl_b32 s38, s38, 6\ns_add_u32 s38, s38, {64*4*nper}")
        k(f"v_add_u32 v{t0}, s38, v1")
        vdiv(k, t0 + 1, t0 + 2, t0, CH, nrows * CH)
        vrowmap(k, vDW + i, t0 + 1, coefs, const, stride, t0 + 3, 39)
        k(f"v_lshl_add_u32 v{vDW+i}, v{t0+2}, 4, v{vDW+i}")
def tr_read_setup(k, vA, rowbytes, base, t0=11):
    k(f"v_lshrrev_b32 v{t0}, 2, v1\nv_mul_u32_u24 v{t0}, {rowbytes}, v{t0}\nv_add_u32 v{t0}, {base}, v{t0}")
    k(f"v_and_b32 v{t0+1}, 3, v1\nv_lshl_add_u32 v{vA}, v{t0+1}, 3, v{t0}")

def k1(name="k1_kernel", stamps=False):
    k = K(name, 256, 512, lds=X_BASE + 4096)
    st = Stamps(k, stamps)
    NST = 9
    sW, sI, sC, sLW = 20, 21, 22, 23
    SRD_T, SRD_W, SRD_WS, SRD_V = 8, 12, 16, 24
    sT, sT2, sWo, sMT, sMW, sMW5 = 28, 29, 30, 31, 32, 33
    sE = 34
    prologue(k, name, 256, sW, st)
    k(f"s_load_dwordx4 s[4:7], s[0:1], {KA_X}\ns_load_dwordx2 s[40:41], s[0:1], {KA_WS}\ns_load_dwordx2 s[42:43], s[0:1], {KA_WIN}")
    wave_lane(k, sW)
    k(f"s_and_b32 s38, s2, 7\ns_lshr_b32 s39, s2, 3")
    k(f"s_cmp_ge_u32 s39, 24\ns_cbranch_scc1 {name}_side")
    k(f"s_lshl_b32 s38, s38, 1\ns_and_b32 s{sI}, s39, 1\ns_add_u32 s{sI}, s{sI}, s38\ns_lshr_b32 s{sC}, s39, 1")
    k(f"s_cmp_lt_u32 s{sW}, 4\ns_cbranch_scc1 {name}_cons")
    vDT0, vDT1, vDW = 3, 4, 5
    vT0, vT1, vS0, vS1, vS2 = 90, 91, 92, 93, 94
    k(f"s_sub_u32 s{sLW}, s{sW}, 4")
    t_dma_setup(k, vDT0, vDT1, 1152)
    w_dma_setup(k, vDW, sLW, 18, 64, [1, 2, 8, 16, 4, 32], 0, 3456)
    k(f"s_mul_i32 s{sT}, s{sI}, {128*1152}\ns_mul_i32 s39, s{sLW}, {32*1152}\ns_add_u32 s{sT}, s{sT}, s39\ns_add_u32 s{sT2}, s{sT}, {16*1152}")
    k(f"s_mul_i32 s{sWo}, s{sC}, 288")
    k(f"s_lshl_b32 s{sMT}, s{sLW}, 12\ns_add_u32 s{sMW}, s{sMT}, {W_BASE}")
    k(f"s_and_b32 s39, s{sLW}, 1\ns_lshl_b32 s39, s39, 10\ns_add_u32 s{sMW5}, s39, {W_BASE+16384}")
    k(f"s_cmp_lt_u32 s{sLW}, 2\ns_cselect_b64 s[{sE}:{sE+1}], -1, 0\ns_cselect_b64 s[{sE+2}:{sE+3}], 0, -1")
    k("s_waitcnt lgkmcnt(0)")
    srd(k, SRD_T, 4, 0, S * D * 2)
    srd(k, SRD_W, 6, 0, D * 3 * D * 2)
    srd(k, SRD_WS, 40, 0, WS_SIZE)
    def dma(s):
        slot = s % 4
        for q in range(4):
            k(f"s_add_u32 m0, s{sMT}, {slot*T_SLOT + q*1024}")
            k(f"buffer_load_dwordx4 v{vDT0 + (q&1)}, {S4(SRD_T)}, s{sT if q < 2 else sT2} offen lds")
        for n in range(4):
            k(f"s_add_u32 m0, s{sMW}, {slot*W_SLOT + n*1024}")
            k(f"buffer_load_dwordx4 v{vDW+n}, {S4(SRD_W)}, s{sWo} offen lds")
        e = sE + 2 * (s & 1)
        k(f"s_add_u32 m0, s{sMW5}, {slot*W_SLOT}\ns_mov_b64 exec, s[{e}:{e+1}]")
        k(f"buffer_load_dwordx4 v{vDW+4}, {S4(SRD_W)}, s{sWo} offen lds\ns_mov_b64 exec, -1")
        k(f"s_add_u32 s{sT}, s{sT}, 128\ns_add_u32 s{sT2}, s{sT2}, 128\ns_add_u32 s{sWo}, s{sWo}, {64*3456}")
    for s in range(4): dma(s)
    t_swz_read_setup(k, vT0, vT1, sLW)
    tr_read_setup(k, vS0, 288, W_BASE)
    k(f"s_lshr_b32 s44, s{sLW}, 1\ns_mul_i32 s44, s44, 72\ns_and_b32 s45, s{sLW}, 1\ns_mul_i32 s45, s45, 40\ns_add_u32 s44, s44, s45")
    k(f"s_lshl_b32 s45, s{sLW}, 5\ns_cmp_lt_u32 s{sC}, 8\ns_cselect_b32 s44, s44, s45\ns_movk_i32 s45, 144\ns_cselect_b32 s45, s45, 128\ns_cselect_b32 s46, 72, 8\ns_cselect_b32 s47, 32, 256")
    k(f"v_mad_u32_u24 v{vS2}, v12, s46, v11\nv_add_u32 v{vS2}, s47, v{vS2}")
    k(f"v_add_u32 v{vS0}, s44, v{vS0}\nv_add_u32 v{vS1}, s45, v{vS0}")
    for i in range(3): k(f"v_add_u32 v{vS0+3+i}, {3*W_SLOT}, v{vS0+i}")
    ONES, TF, WF, SUM, GR, CSA = 16, 20, 36, 60, 68, 76
    for i in range(4): k(f"v_mov_b32 v{ONES+i}, 0x3f803f80")
    k("s_waitcnt vmcnt(25)\ns_barrier")
    for s in range(NST):
        slot = s % 4
        for kk in range(2):
            for tt in range(2):
                k(f"ds_read_b128 {vr(TF+8*kk+4*tt,4)}, v{vT0+kk} offset:{slot*T_SLOT + tt*2048}")
            for i in range(3):
                for hh in range(2):
                    o = (slot if slot < 3 else 0) * W_SLOT + (32 * kk + 16 * hh) * 288
                    k(f"ds_read_b64_tr_b16 {vr(WF+12*kk+4*i+2*hh,2)}, v{vS0+i+(3 if slot == 3 else 0)} offset:{o}")
        for kk in range(2):
            k(f"s_waitcnt lgkmcnt({8*(1-kk)})")
            z = (s == 0 and kk == 0)
            for tt in range(2):
                t = vr(TF + 8 * kk + 4 * tt, 4)
                k(f"v_mfma_f32_16x16x32_bf16 {vr(SUM+4*tt,4)}, {vr(ONES,4)}, {t}, {'0' if z else vr(SUM+4*tt,4)}")
                k(f"v_mfma_f32_16x16x32_bf16 {vr(GR+4*tt,4)}, {t}, {t}, {'0' if z else vr(GR+4*tt,4)}")
            for i in range(3):
                k(f"v_mfma_f32_16x16x32_bf16 {vr(CSA+4*i,4)}, {vr(ONES,4)}, {vr(WF+12*kk+4*i,4)}, {'0' if z else vr(CSA+4*i,4)}")
        if s + 1 < NST:
            vm = 17 if s + 3 < NST else (8 if s + 2 < NST else 0)
            k(f"s_waitcnt vmcnt({vm})\ns_barrier")
            if s + 4 < NST: dma(s + 4)
    k(f"v_and_b32 v11, 15, v1\nv_lshrrev_b32 v12, 4, v1\nv_lshrrev_b32 v13, 2, v11\nv_and_b32 v14, 3, v1")
    k(f"s_lshl_b32 s44, s{sLW}, 8\ns_add_u32 s44, s44, {X_BASE}\nv_lshl_add_u32 v15, v11, 2, s44")
    k(f"v_cmp_eq_u32 vcc, v12, v13\nv_mov_b32 v10, {X_BASE+2048}\nv_cndmask_b32 v15, v10, v15, vcc")
    k(f"v_cmp_eq_u32 s[44:45], 1, v14\nv_cmp_eq_u32 s[46:47], 2, v14\nv_cmp_eq_u32 s[48:49], 3, v14")
    k(f"s_mov_b32 s50, {f2u(1.0/576)}\ns_mov_b32 s51, {f2u(1e-5)}\ns_cmp_lt_u32 s{sC}, 4\ns_cselect_b32 s52, {f2u(QSCALE)}, 1.0")
    for tt in range(2):
        g = GR + 4 * tt
        k(f"v_cndmask_b32 v10, v{g}, v{g+1}, s[44:45]\nv_cndmask_b32 v10, v10, v{g+2}, s[46:47]\nv_cndmask_b32 v10, v10, v{g+3}, s[48:49]")
        k(f"v_mul_f32 v12, s50, v{SUM+4*tt}\nv_mul_f32 v10, s50, v10\nv_fma_f32 v10, -v12, v12, v10\nv_max_f32 v10, 0, v10\nv_add_f32 v10, s51, v10")
        k(f"v_rsq_f32 v10, v10\nv_mul_f32 v10, s52, v10\nv_mul_f32 v12, v12, v10\nv_sub_f32 v12, 0, v12")
        k(f"ds_write_b32 v15, v10 offset:{64*tt}\nds_write_b32 v15, v12 offset:{128+64*tt}")
    k(f"s_lshl_b32 s44, s{sLW}, 6\ns_add_u32 s44, s44, {X_BASE+1024}\nv_lshl_add_u32 v15, v11, 2, s44")
    k(f"ds_write_b32 v15, v{CSA}\nds_write_b32 v15, v{CSA+4} offset:256")
    k(f"v_lshlrev_b32 v15, 2, v11\nds_write_b32 v15, v{CSA+8} offset:0" if False else f"v_lshlrev_b32 v15, 2, v11\nv_add_u32 v15, {X_BASE+1024+512}, v15\nds_write_b32 v15, v{CSA+8}")
    k("s_waitcnt lgkmcnt(0)\ns_barrier")
    st.flush(2, sW, SRD_WS, 0)
    k("s_endpgm")
    k(f"{name}_cons:")
    vT0, vT1, vWa, vWt = 3, 4, 5, 7
    t_swz_read_setup(k, vT0, vT1, sW)
    tr_read_setup(k, vWa, 288, W_BASE)
    k(f"v_add_u32 v{vWa+1}, {3*W_SLOT}, v{vWa}")
    k(f"v_mul_u32_u24 v{vWt}, 72, v12\nv_add3_u32 v{vWt}, v{vWt}, v11, 32\nv_add_u32 v{vWt+1}, {3*W_SLOT}, v{vWt}")
    k("s_waitcnt lgkmcnt(0)")
    srd(k, SRD_WS, 40, 0, WS_SIZE)
    srd(k, SRD_V, 40, WS_VF, 256 * 9728)
    ACC, FR0 = 16, 88
    def mkreads(qk):
        def reads(c, s, kk, buf):
            slot = s % 4
            r = [f"ds_read_b128 {vr(c.T(buf,0,tt),4)}, v{vT0+kk} offset:{slot*T_SLOT + tt*2048}" for tt in range(2)]
            for ft in range(9):
                for hh in range(2):
                    o = (slot if slot < 3 else 0) * W_SLOT + (32 * kk + 16 * hh) * 288
                    va = vWa
                    if qk:
                        if ft < 8: o += 72 * (ft >> 1) + 40 * (ft & 1)
                        else: va = vWt
                    else: o += 32 * ft
                    r.append(f"ds_read_b64_tr_b16 {vr(c.W(buf,0,ft)+2*hh,2)}, v{va + (1 if slot == 3 else 0)} offset:{o}")
            return r
        return reads
    k(f"s_lshl_b32 s44, s{sI}, 2\ns_add_u32 s44, s44, s{sW}")
    k(f"s_cmp_ge_u32 s{sC}, 8\ns_cbranch_scc1 {name}_vcons")
    P = 88
    for qk in (True, False):
        if not qk: k(f"{name}_vcons:")
        c = Cons(k, 2, 9, 1, ACC, FR0, "W" if qk else "T", mkreads(qk), rdgaps=12)
        k("s_barrier")
        st(1)
        c.first_reads(0)
        for s in range(NST):
            c.stage(s, s == NST - 1, zero_c=(s == 0), barrier=(s < NST - 1))
        st(2)
        k("s_barrier")
        k(f"v_and_b32 v11, 15, v1\nv_lshrrev_b32 v12, 4, v1\ns_lshl_b32 s45, s{sW}, 8\ns_add_u32 s45, s45, {X_BASE}")
        AB, CS = 124, 140
        if qk:
            k(f"v_lshl_add_u32 v13, v11, 2, s45\nv_lshlrev_b32 v14, 4, v12\nv_add_u32 v14, {X_BASE+1024}, v14")
            for tt in range(2): k(f"ds_read2_b32 {vr(AB+2*tt,2)}, v13 offset0:{16*tt} offset1:{32+16*tt}")
            for ft in range(9): k(f"ds_read_b128 {vr(CS+4*ft,4)}, v14 offset:{64*ft}")
            k(f"s_and_b32 s46, s{sC}, 3\ns_lshl_b32 s47, s46, 19\ns_lshl_b32 s48, s44, 10\ns_add_u32 s47, s47, s48")
            k(f"s_cmp_lt_u32 s{sC}, 4\ns_cselect_b32 s48, {WS_QM}, {WS_KM}\ns_mov_b32 s49, {WS_QT}\ns_cselect_b32 s49, s49, {WS_KT}\ns_add_u32 s47, s47, s48")
            k(f"s_lshl_b32 s46, s46, 16\ns_add_u32 s49, s49, s46\ns_lshl_b32 s46, s44, 7\ns_add_u32 s49, s49, s46")
            k(f"v_lshlrev_b32 v9, 4, v1\nv_and_b32 v10, 31, v1\nv_lshlrev_b32 v10, 2, v10\nv_lshrrev_b32 v15, 5, v1\nv_lshl_add_u32 v10, v15, 15, v10")
            k("s_waitcnt lgkmcnt(0)")
            for ft in range(9):
                o = P + 4 * (ft % 4)
                for tt in range(2):
                    a = c.acc(tt, ft)
                    for h in range(2):
                        k(f"v_pk_mul_f32 {vr(a+2*h,2)}, {vr(a+2*h,2)}, {vr(AB+2*tt,2)} op_sel_hi:[1,0]")
                    for h in range(2):
                        k(f"v_pk_fma_f32 {vr(a+2*h,2)}, {vr(CS+4*ft+2*h,2)}, {vr(AB+2*tt,2)}, {vr(a+2*h,2)} op_sel:[0,1,0]")
                    for h in range(2):
                        k(f"v_cvt_pk_bf16_f32 v{o+2*tt+h}, v{a+2*h}, v{a+2*h+1}")
                k(f"v_permlane16_swap_b32 v{o}, v{o+2}\nv_permlane16_swap_b32 v{o+1}, v{o+3}")
                if ft < 8:
                    k(f"buffer_store_dwordx4 {vr(o,4)}, v9, {S4(SRD_WS)}, s47 offen\ns_add_u32 s47, s47, 65536")
                else:
                    for e in range(4):
                        k(f"buffer_store_dword v{o+e}, v10, {S4(SRD_WS)}, s49 offen\ns_add_u32 s49, s49, 8192")
        else:
            k(f"v_lshl_add_u32 v13, v12, 4, s45\nv_lshlrev_b32 v14, 2, v11\nv_add_u32 v14, {X_BASE+1024}, v14")
            for tt in range(2):
                k(f"ds_read_b128 {vr(AB+8*tt,4)}, v13 offset:{64*tt}\nds_read_b128 {vr(AB+8*tt+4,4)}, v13 offset:{128+64*tt}")
            for ft in range(9): k(f"ds_read_b32 v{CS+ft}, v14 offset:{64*ft}")
            k(f"s_mul_i32 s47, s44, {4*9728}\ns_sub_u32 s46, s{sC}, 8\ns_mul_i32 s46, s46, {8*304}\ns_add_u32 s47, s47, s46")
            k(f"v_mul_u32_u24 v9, 9728, v12")
            VO = 152
            m, sh = magic(18, 144)
            for ft in range(9):
                k(f"v_add_u32 v10, {16*ft}, v11\nv_mul_u32_u24 v15, {m}, v10\nv_lshrrev_b32 v15, {sh}, v15\nv_add_u32 v10, v10, v15\nv_lshl_add_u32 v{VO+ft}, v10, 4, v9")
            k(f"v_lshrrev_b32 v10, 3, v1\nv_mul_u32_u24 v10, 9728, v10\nv_and_b32 v15, 7, v1\nv_mul_u32_u24 v15, 304, v15\nv_add3_u32 v10, v10, v15, 0\nv_add_u32 v10, 288, v10")
            k(f"v_cmp_gt_u32 vcc, 32, v1\nv_mov_b32 v15, 0x40000000\nv_cndmask_b32 v10, v15, v10, vcc")
            for i in range(4): k(f"v_mov_b32 v{164+i}, 0x3f803f80")
            k(f"buffer_store_dwordx4 v[164:167], v10, {S4(SRD_V)}, s47 offen")
            k("s_waitcnt lgkmcnt(0)")
            for ft in range(9):
                o = P + 4 * (ft % 4)
                cp = CS + (ft & ~1); hs = ft & 1
                for tt in range(2):
                    a = c.acc(tt, ft)
                    for h in range(2):
                        k(f"v_pk_mul_f32 {vr(a+2*h,2)}, {vr(a+2*h,2)}, {vr(AB+8*tt+2*h,2)}")
                    for h in range(2):
                        k(f"v_pk_fma_f32 {vr(a+2*h,2)}, {vr(cp,2)}, {vr(AB+8*tt+4+2*h,2)}, {vr(a+2*h,2)} op_sel:[{hs},0,0] op_sel_hi:[{hs},1,1]")
                    for h in range(2):
                        k(f"v_cvt_pk_bf16_f32 v{o+2*tt+h}, v{a+2*h}, v{a+2*h+1}")
                k(f"v_permlane32_swap_b32 v{o}, v{o+2}\nv_permlane32_swap_b32 v{o+1}, v{o+3}")
                k(f"buffer_store_dwordx4 {vr(o,4)}, v{VO+ft}, {S4(SRD_V)}, s47 offen")
        st.flush(4, sW, SRD_WS, 0)
        k("s_endpgm")
    k(f"{name}_side:")
    k(f"s_sub_u32 s39, s39, 24\ns_lshl_b32 s39, s39, 3\ns_add_u32 s39, s39, s38")
    vdiv(k, 3, 4, 0, 9, 512)
    k(f"v_mul_u32_u24 v5, 9216, v3\nv_lshl_add_u32 v5, v4, 4, v5")
    k(f"v_cmp_gt_u32 vcc, 504, v0\nv_mov_b32 v6, 0x40000000\nv_cndmask_b32 v5, v6, v5, vcc")
    k("s_waitcnt lgkmcnt(0)")
    srd(k, SRD_W, 42, 0, D * F * 2)
    srd(k, SRD_WS, 40, 0, WS_SIZE)
    k(f"s_mul_i32 s44, s39, 144")
    for n in range(11):
        k(f"buffer_load_dwordx4 {vr(16+4*n,4)}, v5, {S4(SRD_W)}, s44 offen\ns_add_u32 s44, s44, {56*9216}")
    k(f"v_mov_b32 v8, -1\nv_mov_b32 v9, -1\nv_lshlrev_b32 v7, 3, v0\ns_lshl_b32 s45, s39, 12\ns_add_u32 s45, s45, {WS_ZST}")
    k(f"buffer_store_dwordx2 v[8:9], v7, {S4(SRD_WS)}, s45 offen")
    for n in range(11):
        k(f"s_waitcnt vmcnt({11-n})")
        for q in range(4):
            src = 16 + 4 * n + q
            if n == 0:
                k(f"v_lshlrev_b32 v{64+2*q}, 16, v{src}\nv_and_b32 v{65+2*q}, 0xffff0000, v{src}")
            else:
                k(f"v_lshlrev_b32 v10, 16, v{src}\nv_and_b32 v11, 0xffff0000, v{src}\nv_pk_add_f32 {vr(64+2*q,2)}, {vr(64+2*q,2)}, v[10:11]")
    k(f"v_lshlrev_b32 v7, 5, v0\nds_write_b128 v7, v[64:67]\nds_write_b128 v7, v[68:71] offset:16")
    k("s_waitcnt lgkmcnt(0)\ns_barrier")
    vdiv(k, 3, 4, 0, 72, 512)
    k(f"v_mul_u32_u24 v5, {14*288}, v3\nv_lshl_add_u32 v5, v4, 2, v5")
    k(f"v_cmp_gt_u32 vcc, 288, v0\nv_cndmask_b32 v5, 0, v5, vcc")
    for n in range(14): k(f"ds_read_b32 v{16+n}, v5 offset:{288*n}")
    k("s_waitcnt lgkmcnt(0)")
    for n in range(1, 14): k(f"v_add_f32 v16, v16, v{16+n}")
    k(f"v_lshlrev_b32 v7, 2, v0\nds_write_b32 v7, v16 offset:16384\ns_waitcnt lgkmcnt(0)\ns_barrier")
    for n in range(4): k(f"ds_read_b32 v{16+n}, v7 offset:{16384+288*n}")
    k("s_waitcnt lgkmcnt(0)\nv_add_f32 v16, v16, v17\nv_add_f32 v18, v18, v19\nv_add_f32 v16, v16, v18")
    k(f"v_cmp_gt_u32 vcc, 72, v0\nv_mov_b32 v6, 0x40000000\nv_cndmask_b32 v7, v6, v7, vcc")
    k(f"s_mul_i32 s45, s39, 288\ns_add_u32 s45, s45, {WS_CS}")
    k(f"buffer_store_dword v16, v7, {S4(SRD_WS)}, s45 offen")
    st.flush(2, sW, SRD_WS, 0)
    k(f"{name}_end:\ns_endpgm")
    return k
if __name__ == "__main__":
    ks = [k1(stamps=True)]

    open("k1t.s", "w").write(build(ks))
    for q in ks: print(q.name, q.stats, q.nops, len(q.lines))
```

```python
from common import *

def k2(name="k2_kernel", stamps=False):
    VB, KTB = 16384, 40960
    k = K(name, 256, 512, lds=KTB + 2048)
    st = Stamps(k, stamps)
    sW, sQB, sH = 20, 21, 22
    SRD_WS = 16
    OOB = 0x40000000
    prologue(k, name, 256, sW, st)
    k(f"s_load_dwordx2 s[40:41], s[0:1], {KA_WS}")
    wave_lane(k, sW)
    k(f"s_and_b32 s{sQB}, s2, 7\ns_lshr_b32 s{sH}, s2, 3")
    k(f"s_cmp_eq_u32 s{sQB}, 0\ns_cselect_b32 s23, 32, 0")
    k(f"v_mov_b32 v15, {OOB}")
    for i in range(3):
        k(f"s_lshl_b32 s38, s{sW}, 6\ns_add_u32 s38, s38, {512*i}\nv_add_u32 v11, s38, v1")
        vdiv(k, 12, 13, 11, 19, 1536)
        k(f"v_mul_u32_u24 v14, 9728, v12\nv_lshl_add_u32 v{3+i}, v13, 4, v14")
        k(f"v_cmp_gt_u32 vcc, s23, v12\nv_cndmask_b32 v{3+i}, v{3+i}, v15, vcc")
        if i == 2: k(f"v_cmp_lt_u32 vcc, 63, v12\nv_cndmask_b32 v{3+i}, v{3+i}, v15, vcc")
    k("v_lshlrev_b32 v6, 4, v1\nv_lshlrev_b32 v7, 2, v1")
    k(f"s_lshl_b32 s24, s{sH}, 16\ns_lshl_b32 s25, s{sQB}, 13\ns_add_u32 s24, s24, s25\ns_lshl_b32 s25, s{sW}, 10")
    k(f"s_add_u32 s26, s24, s25\ns_add_u32 s26, s26, {WS_QM}")
    k(f"s_lshl_b32 s25, s{sW}, 11\ns_add_u32 s27, s24, s25\ns_add_u32 s27, s27, {WS_KM - 8192}")
    k(f"s_lshr_b32 s24, s24, 3")
    k(f"s_lshl_b32 s25, s{sW}, 7\ns_add_u32 s28, s24, s25\ns_add_u32 s28, s28, {WS_QT}")
    k(f"s_lshl_b32 s25, s{sW}, 8\ns_add_u32 s29, s24, s25\ns_add_u32 s29, s29, {WS_KT - 1024}")
    k(f"s_mul_i32 s30, s{sQB}, {32*9728}\ns_mul_i32 s25, s{sH}, 304\ns_add_u32 s30, s30, s25\ns_add_u32 s30, s30, {WS_VF - 32*9728}")
    k(f"s_lshl_b32 s25, s{sQB}, 3\ns_add_u32 s31, s25, s{sW}")
    k(f"s_cmp_lt_u32 s31, 4\ns_cselect_b32 s27, {OOB}, s27\ns_cselect_b32 s29, {OOB}, s29")
    k("s_waitcnt lgkmcnt(0)")
    srd(k, SRD_WS, 40, 0, WS_SIZE)
    QM, QT = 16, 20
    ws = S4(SRD_WS)
    k(f"s_lshl_b32 s25, s{sW}, 11\ns_mov_b32 m0, s25")
    k(f"buffer_load_dwordx4 v6, {ws}, s27 offen lds\nbuffer_load_dwordx4 v6, {ws}, s27 offen offset:1024 lds")
    k(f"s_lshl_b32 s25, s{sW}, 8\ns_add_u32 m0, s25, {KTB}")
    k(f"buffer_load_dword v7, {ws}, s29 offen lds")
    k(f"buffer_load_dwordx4 {vr(QM,4)}, v6, {ws}, s26 offen")
    k(f"v_cmp_gt_u32 vcc, 32, v1\nv_cndmask_b32 v8, v15, v7, vcc")
    k(f"buffer_load_dword v{QT}, v8, {ws}, s28 offen")
    k(f"s_lshl_b32 s25, s{sW}, 10")
    for i in range(3):
        k(f"s_add_u32 m0, s25, {VB + 8192*i}")
        k(f"buffer_load_dwordx4 v{3+i}, {ws}, s30 offen lds")
    vKa, vKt, vVa = 3, 4, 5
    KT = 24
    MK = 44
    KF = 52
    VF = 64
    O = 80
    SB = 96
    k(f"v_cndmask_b32 v{QT+1}, 0, 1.0, vcc\nv_lshrrev_b32 v{QT+1}, 16, v{QT+1}\nv_mov_b32 v{QT+2}, 0\nv_mov_b32 v{QT+3}, 0")
    k(f"s_lshl_b32 s25, s{sW}, 10\nv_add_u32 v{vKa}, s25, v6")
    k(f"v_and_b32 v11, 31, v1\nv_lshrrev_b32 v12, 5, v1")
    k(f"s_lshl_b32 s25, s{sW}, 7\ns_add_u32 s25, s25, {KTB}\nv_lshl_add_u32 v{vKt}, v11, 2, s25")
    k(f"s_mul_i32 s25, s{sW}, {4*304}\ns_add_u32 s25, s25, {VB}\nv_min_u32 v13, 18, v11\nv_mul_u32_u24 v14, 304, v12\nv_lshl_add_u32 v13, v13, 4, v14\nv_add_u32 v{vVa}, s25, v13")
    for kt in range(10):
        if kt < 8:
            k(f"s_cmp_lt_u32 s31, {8-kt}\ns_cselect_b32 s25, 0xff7f, 0\nv_mov_b32 v{KT+2*kt+1}, s25")
        else: k(f"v_mov_b32 v{KT+2*kt+1}, 0")
    k(f"v_mov_b32 v{KT+18}, 0")
    k(f"v_lshlrev_b32 v14, 2, v12\nv_sub_u32 v14, v11, v14")
    for r in range(16):
        k(f"v_cmp_gt_i32 s[{44+2*r}:{45+2*r}], {8*(r>>2)+(r&3)}, v14")
    k("v_mov_b32 v9, 0xffff\nv_mov_b32 v10, 0xffff0000")
    for e in range(8):
        k(f"v_cndmask_b32 v13, 0, v9, s[{44+4*e}:{45+4*e}]\nv_cndmask_b32 v{MK+e}, 0, v10, s[{46+4*e}:{47+4*e}]\nv_or_b32 v{MK+e}, v{MK+e}, v13")
    k(f"v_lshrrev_b32 v13, 4, v11\nv_mul_u32_u24 v13, 18432, v13\nv_and_b32 v14, 15, v1\nv_lshl_add_u32 v9, v14, 4, v13")
    k(f"v_lshl_add_u32 v8, v12, 8, v9\nv_cndmask_b32 v9, v15, v9, vcc")
    k(f"s_mul_i32 s32, s31, {2*18*1024}\ns_add_u32 s32, s32, {WS_O}\ns_lshl_b32 s25, s{sH}, 9\ns_add_u32 s33, s32, s25")
    k(f"s_lshr_b32 s25, s{sH}, 2\ns_lshl_b32 s25, s25, 8\ns_add_u32 s34, s32, s25\ns_and_b32 s25, s{sH}, 3\ns_lshl_b32 s25, s25, 2\ns_add_u32 s34, s34, s25\ns_add_u32 s34, s34, 16384")
    k("s_waitcnt vmcnt(0)\ns_barrier")
    st(1)
    order = [0, 8, 1, 2, 3, 4, 5, 6, 7]
    for kt in order: k(f"ds_read_b32 v{KT+2*kt}, v{vKt} offset:{128*kt}")
    NB = 3
    for i in range(NB): k(f"ds_read_b128 {vr(KF+4*i,4)}, v{vKa} offset:{1024*order[i]}")
    def Sx(kt): return SB + 16 * kt
    M0, M1 = 10, 11
    def maxes(kt, first):
        s = Sx(kt); out = []
        for q in range(8):
            m = M0 if q % 2 == 0 else M1
            if first and q < 2: out.append(f"v_max_f32 v{m}, v{s+2*q}, v{s+2*q+1}")
            else: out.append(f"v_max3_f32 v{m}, v{s+2*q}, v{s+2*q+1}, v{m}")
        return out
    pend = []
    for i, kt in enumerate(order):
        left = min(NB - 1, 8 - i)
        k(f"s_waitcnt lgkmcnt({left})")
        k(f"v_mfma_f32_32x32x16_bf16 {vr(Sx(kt),16)}, {vr(KF+4*(i%NB),4)}, {vr(QM,4)}, 0")
        for _ in range(min(4, len(pend))): k(pend.pop(0))
        k(f"v_mfma_f32_32x32x16_bf16 {vr(Sx(kt),16)}, {vr(KT+2*kt,4)}, {vr(QT,4)}, {vr(Sx(kt),16)}")
        if i + NB < 9: k(f"ds_read_b128 {vr(KF+4*(i%NB),4)}, v{vKa} offset:{1024*order[i+NB]}")
        for _ in range(min(6, len(pend))): k(pend.pop(0))
        if i == 2:
            pend += [f"v_cndmask_b32 v{Sx(0)+r}, v{Sx(8)+r}, v{Sx(0)+r}, s[{44+2*r}:{45+2*r}]" for r in range(16)] + maxes(0, True)
        elif i > 3: pend += maxes(order[i - 2], False)
    def vread(kt, j, buf): return f"ds_read_b128 {vr(VF+4*buf,4)}, v{vVa} offset:{(4*kt+2*j)*304}"
    for b, (kt, j) in enumerate(((0, 0), (0, 1), (8, 0), (8, 1))): k(vread(kt, j, b))
    for x in pend: k(x)
    for x in maxes(6, False) + maxes(7, False): k(x)
    st(2)
    k(f"v_max_f32 v{M0}, v{M0}, v{M1}\nv_mov_b32 v{M1}, v{M0}\nv_permlane32_swap_b32 v{M1}, v{M0}\nv_max_f32 v{M0}, v{M0}, v{M1}")
    def softmax_tile(kt):
        s = Sx(kt); out = []
        for e in range(8):
            out.append(f"v_pk_add_f32 {vr(s+2*e,2)}, {vr(s+2*e,2)}, {vr(M0,2)} op_sel_hi:[1,0] neg_lo:[0,1] neg_hi:[0,1]")
        seq = []
        seq.append(out[0])
        for e in range(8):
            if e + 1 < 8: seq.append(out[e + 1])
            seq.append(f"v_exp_f32 v{s+2*e}, v{s+2*e}")
            seq.append(f"v_exp_f32 v{s+2*e+1}, v{s+2*e+1}")
            if e > 0: seq.append(f"v_cvt_pk_bf16_f32 v{s+e-1}, v{s+2*e-2}, v{s+2*e-1}")
        seq.append(f"v_cvt_pk_bf16_f32 v{s+7}, v{s+14}, v{s+15}")
        return seq
    for x in softmax_tile(0): k(x)
    s0 = Sx(0)
    for e in range(8): k(f"v_and_b32 v{s0+8+e}, v{MK+e}, v{s0+e}")
    for e in range(8): k(f"v_xor_b32 v{s0+e}, v{s0+8+e}, v{s0+e}")
    mq = [(0, s0 + 8), (1, s0 + 12), (2, s0), (3, s0 + 4)]
    first = True
    nxt = [(kt, j) for kt in range(1, 8) for j in range(2)]
    outstanding = 4
    freeb = []
    for kt in range(1, 9):
        seq = softmax_tile(kt) if kt < 8 else []
        n = len(mq)
        gap = max(1, len(seq) // max(n, 1)) if seq else 0
        pos = 0
        for qi, (b, p) in enumerate(mq):
            k(f"s_waitcnt lgkmcnt({outstanding-1})"); outstanding -= 1
            k(f"v_mfma_f32_32x32x16_bf16 {vr(O,16)}, {vr(VF+4*b,4)}, {vr(p,4)}, {'0' if first else vr(O,16)}")
            first = False
            if nxt:
                t, j = nxt.pop(0); k(vread(t, j, b)); outstanding += 1; freeb.append(b)
            for x in seq[pos:pos + gap]: k(x)
            pos += gap
        for x in seq[pos:]: k(x)
        if kt < 8:
            mq = [(freeb.pop(0), Sx(kt)), (freeb.pop(0), Sx(kt) + 4)]
    st(3)
    k(f"v_rcp_f32 v10, v{O+10}")
    for r in range(0, 10, 2): k(f"v_pk_mul_f32 {vr(O+r,2)}, {vr(O+r,2)}, v[10:11] op_sel_hi:[1,0]")
    for e in range(5): k(f"v_cvt_pk_bf16_f32 v{VF+e}, v{O+2*e}, v{O+2*e+1}")
    k(f"buffer_store_dwordx4 {vr(VF,4)}, v8, {ws}, s33 offen\nbuffer_store_dword v{VF+4}, v9, {ws}, s34 offen")
    st.flush(5, sW, SRD_WS, 1)
    k(f"{name}_end:\ns_endpgm")
    return k
if __name__ == "__main__":
    ks = [k2(stamps=True)]
    ks[0].verbose = True
    open("k2t.s", "w").write(build(ks))
    for q in ks: print(q.name, q.stats, q.nops, len(q.lines))
```

```python
from common import *
from k1 import w_dma_setup, tr_read_setup

def k36(which, name=None, stamps=False):
    k3 = which == 3
    name = name or f"k{which}_kernel"
    KB = 1 if k3 else 2
    RING = 8 if k3 else 4
    NST = 9 if k3 else 18
    NKB = 18 if k3 else 72
    TS, WSL = 8192 * KB, 10240 * KB
    XB = W_BASE + 81920
    k = K(name, 256, 512, lds=XB + (12288 if k3 else 0))
    st = Stamps(k, stamps)
    sW, sRB, sB, sLW = 20, 21, 22, 23
    SRD_W, SRD_WS, SRD_X = 12, 16, 8
    sT, sWo, sMT, sMW, sMW5, sE, sCNT = 28, 30, 31, 32, 33, 34, 29
    OOB = 0x40000000
    prologue(k, name, 256, sW, st)
    k(f"s_load_dwordx2 s[6:7], s[0:1], {KA_WO if k3 else KA_WOUT}\ns_load_dwordx2 s[40:41], s[0:1], {KA_WS}\ns_load_dwordx2 s[4:5], s[0:1], {KA_X if k3 else KA_OUT}")
    wave_lane(k, sW)
    k(f"s_and_b32 s38, s2, 7\ns_lshl_b32 s38, s38, 2\ns_bfe_u32 s39, s2, 0x20003\ns_add_u32 s{sRB}, s38, s39\ns_lshr_b32 s{sB}, s2, 5")
    k(f"s_cmp_lt_u32 s{sW}, 4\ns_cbranch_scc1 {name}_cons")
    vDF, vDW, vDS = 3, 4, 20
    k(f"s_sub_u32 s{sLW}, s{sW}, 4\nv_lshlrev_b32 v{vDF}, 4, v1")
    k(f"s_lshl_b32 s{sT}, s{sRB}, 2\ns_add_u32 s{sT}, s{sT}, s{sLW}\ns_mul_i32 s{sT}, s{sT}, {NKB*1024}\ns_add_u32 s{sT}, s{sT}, {WS_O if k3 else WS_U}")
    k(f"s_mul_i32 s{sWo}, s{sB}, 144\ns_mov_b32 s44, s{sWo}")
    k(f"s_mul_i32 s{sMT}, s{sLW}, {2048*KB}")
    nper = 2 if k3 else 5
    if k3:
        w_dma_setup(k, vDW, sLW, 10, 64, [1, 2, 4, 18, 8, 36], 0, 1152, nper=2, extra=True)
    else:
        w_dma_setup(k, vDW, sLW, 10, 128, [1, 2, 4, 8, 16, 32, 64], 0, 1152, nper=5, extra=False)
    k(f"s_mul_i32 s{sMW}, s{sLW}, {1024*nper}\ns_add_u32 s{sMW}, s{sMW}, {W_BASE}")
    k(f"s_and_b32 s39, s{sLW}, 1\ns_lshl_b32 s39, s39, 10\ns_add_u32 s{sMW5}, s39, {W_BASE+8192}")
    k(f"s_cmp_lt_u32 s{sLW}, 2\ns_cselect_b64 s[{sE}:{sE+1}], -1, 0\ns_cselect_b64 s[{sE+2}:{sE+3}], 0, -1")
    k("s_waitcnt lgkmcnt(0)")
    srd(k, SRD_W, 6, 0, (D if k3 else FH) * D * 2)
    srd(k, SRD_WS, 40, 0, WS_SIZE)
    def dma(s):
        slot = s % RING
        k(f"s_add_u32 m0, s{sMT}, {slot*TS}")
        for q in range(2 * KB):
            k(f"buffer_load_dwordx4 v{vDF}, {S4(SRD_WS)}, s{sT} offen offset:{q*1024} lds")
        special = k3 and s == 8
        vd = vDS if special else vDW
        so = 44 if special else sWo
        for n in range(nper):
            k(f"s_add_u32 m0, s{sMW}, {slot*WSL + n*1024}")
            k(f"buffer_load_dwordx4 v{vd+n}, {S4(SRD_W)}, s{so} offen lds")
        if k3:
            e = sE + 2 * (s & 1)
            k(f"s_add_u32 m0, s{sMW5}, {slot*WSL}\ns_mov_b64 exec, s[{e}:{e+1}]")
            k(f"buffer_load_dwordx4 v{vd+2}, {S4(SRD_W)}, s{so} offen lds\ns_mov_b64 exec, -1")
        k(f"s_add_u32 s{sT}, s{sT}, {2048*KB}\ns_add_u32 s{sWo}, s{sWo}, {(72 if k3 else 128)*1152}")
    for s in range(RING): dma(s)
    if k3: w_dma_setup(k, vDS, sLW, 10, 64, [1, 18, 72, 144, 36, 288], 16, 1152, nper=2, extra=True)
    cnt = (lambda n: (9 * n) // 2) if k3 else (lambda n: 9 * n)
    k(f"s_waitcnt vmcnt({cnt(RING-1)})\ns_barrier")
    def lstage(s):
        newest = min(NST - 1, s + RING - 1)
        k(f"s_waitcnt vmcnt({cnt(newest - (s + 1))})\ns_barrier")
        if s + RING < NST: dma(s + RING)
    if k3:
        for s in range(NST - 1): lstage(s)
    else:
        k(f"s_mov_b32 s{sCNT}, 3")
        k(f"{name}_lloop:")
        for s in range(4): lstage(s)
        k(f"s_sub_u32 s{sCNT}, s{sCNT}, 1\ns_cmp_lg_u32 s{sCNT}, 0\ns_cbranch_scc1 {name}_lloop")
        for s in range(12, NST - 1): lstage(s)
    st.flush(2, sW, SRD_WS, which - 1)
    k("s_endpgm")
    k(f"{name}_cons:")
    vT, vWa = 3, 4
    tr_read_setup(k, vWa, 160, W_BASE)
    k(f"v_add_u32 v{vWa+1}, 61440, v{vWa}")
    k(f"s_mul_i32 s38, s{sW}, {2048*KB}\nv_lshl_add_u32 v{vT}, v1, 4, s38")
    k(f"v_lshlrev_b32 v6, 4, v1\nv_and_b32 v11, 15, v1\nv_lshrrev_b32 v12, 4, v1\nv_mov_b32 v15, {OOB}")
    k(f"s_lshl_b32 s45, s{sRB}, 2\ns_add_u32 s45, s45, s{sW}")
    k(f"s_mul_i32 s46, s45, 18432\ns_add_u32 s46, s46, {WS_H}\ns_lshl_b32 s38, s{sB}, 8\ns_add_u32 s47, s46, s38\ns_add_u32 s47, s47, 16384")
    k(f"s_lshl_b32 s38, s{sB}, 11\ns_add_u32 s46, s46, s38")
    k(f"v_lshlrev_b32 v7, 4, v11\nv_lshl_add_u32 v7, v12, 3, v7\nv_cmp_gt_u32 vcc, 32, v1\nv_cndmask_b32 v7, v15, v7, vcc")
    k("s_waitcnt lgkmcnt(0)")
    srd(k, SRD_WS, 40, 0, WS_SIZE)
    srd(k, SRD_X, 4, 0, S * D * 2)
    ACC, FR0 = 16, 36
    RES = 140
    k(f"s_mul_i32 s48, s45, {16*1152}\ns_mul_i32 s38, s{sB}, 144\ns_add_u32 s48, s48, s38")
    if k3:
        k(f"s_mul_i32 s49, s{sW}, 3072\ns_add_u32 s49, s49, {XB}")
        for i in range(3):
            k(f"v_add_u32 v8, {64*i}, v1")
            vdiv(k, 9, 10, 8, 10, 192)
            k(f"v_mul_u32_u24 v9, 1152, v9\nv_lshl_add_u32 v9, v10, 4, v9")
            if i == 2: k(f"v_cndmask_b32 v9, v15, v9, vcc")
            k(f"s_add_u32 m0, s49, {1024*i}")
            k(f"buffer_load_dwordx4 v9, {S4(SRD_X)}, s48 offen lds")
        k(f"v_mul_u32_u24 v8, 160, v11\nv_lshl_add_u32 v8, v12, 3, v8\nv_add_u32 v8, s49, v8")
    else:
        k(f"buffer_load_dwordx4 {vr(RES,4)}, v6, {S4(SRD_WS)}, s46 offen\nbuffer_load_dwordx4 {vr(RES+4,4)}, v6, {S4(SRD_WS)}, s46 offen offset:1024")
        k(f"buffer_load_dwordx2 {vr(RES+8,2)}, v7, {S4(SRD_WS)}, s47 offen")
    def reads(c, s, blk, buf):
        slot = s % RING
        r = []
        for kb in range(KB):
            ks = blk * KB + kb
            r.append(f"ds_read_b128 {vr(c.T(buf,kb,0),4)}, v{vT} offset:{slot*TS + ks*1024}")
            for ft in range(5):
                for hh in range(2):
                    o = slot * WSL + (32 * ks + 16 * hh) * 160 + 32 * ft
                    va = vWa
                    if slot * WSL >= 61440: o -= 61440; va += 1
                    r.append(f"ds_read_b64_tr_b16 {vr(c.W(buf,kb,ft)+2*hh,2)}, v{va} offset:{o}")
        return r
    c = Cons(k, 1, 5, KB, ACC, FR0, "W", reads, rdgaps=(4 if k3 else 7))
    if not k3:
        for r in range(20): k(f"v_mov_b32 v{ACC+r}, 0")
    k("s_barrier")
    st(1)
    c.first_reads(0)
    if k3:
        for s in range(NST): c.stage(s, s == NST - 1, zero_c=(s == 0), barrier=(s < NST - 1))
    else:
        k(f"s_mov_b32 s{sCNT}, 4")
        k(f"{name}_loop:")
        for s in range(4): c.stage(s, False)
        k(f"s_sub_u32 s{sCNT}, s{sCNT}, 1\ns_cmp_lg_u32 s{sCNT}, 0\ns_cbranch_scc1 {name}_loop")
        for s in range(16, NST): c.stage(s, s == NST - 1, barrier=(s < NST - 1))
    st(2)
    k("s_waitcnt vmcnt(0)")
    if k3:
        for ft in range(5): k(f"ds_read_b64 {vr(RES+2*ft,2)}, v8 offset:{32*ft}")
        k("s_waitcnt lgkmcnt(0)")
    P = 40
    for e in range(10):
        k(f"v_lshlrev_b32 v{60+2*e}, 16, v{RES+e}\nv_and_b32 v{61+2*e}, 0xffff0000, v{RES+e}")
    for e in range(10):
        k(f"v_pk_add_f32 {vr(ACC+2*e,2)}, {vr(ACC+2*e,2)}, {vr(60+2*e,2)}")
    for e in range(10):
        k(f"v_cvt_pk_bf16_f32 v{P+e}, v{ACC+2*e}, v{ACC+2*e+1}")
    if k3:
        k(f"buffer_store_dwordx4 {vr(P,4)}, v6, {S4(SRD_WS)}, s46 offen\nbuffer_store_dwordx4 {vr(P+4,4)}, v6, {S4(SRD_WS)}, s46 offen offset:1024")
        k(f"buffer_store_dwordx2 {vr(P+8,2)}, v7, {S4(SRD_WS)}, s47 offen")
        k(f"v_cndmask_b32 v{P+10}, 0, v{P+8}, vcc\nv_cndmask_b32 v{P+11}, 0, v{P+9}, vcc")
        for e in range(10):
            src = P + e if e < 8 else P + e + 2
            k(f"v_lshlrev_b32 v{60+2*e}, 16, v{src}\nv_and_b32 v{61+2*e}, 0xffff0000, v{src}")
        k(f"v_pk_add_f32 v[16:17], v[60:61], v[62:63]\nv_pk_mul_f32 v[18:19], v[60:61], v[60:61]")
        for e in range(1, 10):
            if e > 1: k(f"v_pk_add_f32 v[16:17], v[16:17], {vr(60+2*e,2)}")
            k(f"v_pk_fma_f32 v[18:19], {vr(60+2*e,2)}, {vr(60+2*e,2)}, v[18:19]")
        k("v_add_f32 v16, v16, v17\nv_add_f32 v18, v18, v19")
        k("v_permlane32_swap_b32 v16, v18\nv_add_f32 v16, v16, v18\nv_mov_b32 v18, v16\nv_permlane16_swap_b32 v16, v18\nv_add_f32 v16, v16, v18")
        k(f"v_lshlrev_b32 v9, 6, v11\nv_lshl_add_u32 v9, v12, 1, v9\nv_and_b32 v10, 1, v12\nv_cmp_eq_u32 vcc, 0, v10\nv_cndmask_b32 v9, v15, v9, vcc")
        k(f"s_lshl_b32 s38, s45, 10\ns_lshl_b32 s39, s{sB}, 3\ns_add_u32 s38, s38, s39\ns_add_u32 s38, s38, {WS_HST}")
        k(f"buffer_store_dword v16, v9, {S4(SRD_WS)}, s38 offen")
    else:
        for p in range(2):
            k(f"v_permlane16_swap_b32 v{P+4*p}, v{P+4*p+2}\nv_permlane16_swap_b32 v{P+4*p+1}, v{P+4*p+3}")
        k(f"v_mul_u32_u24 v8, 1152, v11\nv_and_b32 v9, 1, v12\nv_lshlrev_b32 v9, 5, v9\nv_lshrrev_b32 v10, 1, v12\nv_lshl_add_u32 v9, v10, 4, v9\nv_add_u32 v9, v9, v8")
        k(f"v_lshl_add_u32 v8, v12, 3, v8\nv_cndmask_b32 v8, v15, v8, vcc")
        k(f"buffer_store_dwordx4 {vr(P,4)}, v9, {S4(SRD_X)}, s48 offen\nbuffer_store_dwordx4 {vr(P+4,4)}, v9, {S4(SRD_X)}, s48 offen offset:64")
        k(f"buffer_store_dwordx2 {vr(P+8,2)}, v8, {S4(SRD_X)}, s48 offen offset:128")
    st.flush(4, sW, SRD_WS, which - 1)
    k(f"{name}_end:\ns_endpgm")
    return k
if __name__ == "__main__":
    ks = [k36(3, stamps=True), k36(6, stamps=True)]
    open("k36t.s", "w").write(build(ks))
    for q in ks: print(q.name, q.stats, q.nops, len(q.lines))
```

```python
from common import *
from k1 import w_dma_setup, tr_read_setup, f2u
import math
C0 = -2.0 * math.sqrt(2.0 / math.pi) * math.log2(math.e)
C1 = C0 * 0.044715

def ij_map(k, sI, sJ):
    k(f"s_and_b32 s38, s2, 1\ns_lshl_b32 s38, s38, 3\ns_bfe_u32 s39, s2, 0x30003\ns_add_u32 s{sI}, s38, s39")
    k(f"s_bfe_u32 s38, s2, 0x20001\ns_lshl_b32 s38, s38, 2\ns_lshr_b32 s39, s2, 6\ns_add_u32 s{sJ}, s38, s39")

def gelu4(a, rs, rsel, sC, t):
    o = []
    for h in range(2): o.append(f"v_pk_mul_f32 {vr(a+2*h,2)}, {vr(a+2*h,2)}, {vr(rs[h],2)}{rsel}")
    for h in range(2): o.append(f"v_pk_mul_f32 {vr(t+2*h,2)}, {vr(a+2*h,2)}, {vr(a+2*h,2)}")
    for h in range(2): o.append(f"v_pk_fma_f32 {vr(t+2*h,2)}, {vr(t+2*h,2)}, s[{sC}:{sC+1}], s[{sC}:{sC+1}] op_sel:[0,0,1] op_sel_hi:[1,0,1]")
    for h in range(2): o.append(f"v_pk_mul_f32 {vr(t+2*h,2)}, {vr(t+2*h,2)}, {vr(a+2*h,2)}")
    for e in range(4): o.append(f"v_exp_f32 v{t+e}, v{t+e}")
    for h in range(2): o.append(f"v_pk_add_f32 {vr(t+2*h,2)}, {vr(t+2*h,2)}, 1.0 op_sel_hi:[1,0]")
    for e in range(4): o.append(f"v_rcp_f32 v{t+e}, v{t+e}")
    for h in range(2): o.append(f"v_pk_mul_f32 {vr(a+2*h,2)}, {vr(a+2*h,2)}, {vr(t+2*h,2)}")
    return o
def interleave(x, y):
    o = []
    for i in range(max(len(x), len(y))):
        if i < len(x): o.append(x[i])
        if i < len(y): o.append(y[i])
    return o

def k4(name="k4_kernel", stamps=False, prioA=1, chunks=(6, 6, 6)):
    k = K(name, 256, 512, lds=X_BASE + 4096)
    st = Stamps(k, stamps)
    sW, sI, sJ, sLW = 20, 21, 22, 23
    SRD_W, SRD_WS = 12, 16
    sT, sT2, sWo, sMT, sMW, sMW5, sE, sWs, sC = 28, 29, 30, 31, 32, 33, 34, 44, 46
    sT0, sCol1 = 48, 49
    OOB = 0x40000000
    ws = S4(SRD_WS)
    prologue(k, name, 256, sW, st)
    k(f"s_load_dwordx2 s[6:7], s[0:1], {KA_WIN}\ns_load_dwordx2 s[40:41], s[0:1], {KA_WS}")
    wave_lane(k, sW)
    ij_map(k, sI, sJ)
    k(f"s_and_b32 s{sLW}, s{sW}, 3")
    vDF, vT, vWa, vDW, vDS, RR = 3, 4, 5, 176, 181, 186
    ACC, FR0 = 16, 88
    TMP = 196
    def dma_setup_regular():
        k(f"v_lshlrev_b32 v{vDF}, 4, v1")
        w_dma_setup(k, vDW, sLW, 18, 64, [1, 2, 4, 8, 16, 32], 0, 9216)
        k(f"s_lshl_b32 s{sT0}, s{sI}, 2\ns_add_u32 s{sT0}, s{sT0}, s{sLW}\ns_mul_i32 s{sT0}, s{sT0}, {2*18432}\ns_add_u32 s{sT0}, s{sT0}, {WS_H}")
        k(f"s_mul_i32 s{sCol1}, s{sJ}, 288")
        k(f"s_lshl_b32 s{sMT}, s{sLW}, 12\ns_add_u32 s{sMW}, s{sMT}, {W_BASE}")
        k(f"s_and_b32 s39, s{sLW}, 1\ns_lshl_b32 s39, s39, 10\ns_add_u32 s{sMW5}, s39, {W_BASE+16384}")
        k(f"s_cmp_lt_u32 s{sLW}, 2\ns_cselect_b64 s[{sE}:{sE+1}], -1, 0\ns_cselect_b64 s[{sE+2}:{sE+3}], 0, -1")
    def dma_setup_special():
        w_dma_setup(k, vDS, sLW, 18, 64, [1, 2, 72, 144, 4, 288], 64, 9216)
    def dma(gs):
        s, slot = gs % 9, gs % 4
        col = 4608 if gs < 9 else 0
        k(f"s_add_u32 s{sT}, s{sT0}, {2048*s}\ns_add_u32 s{sT2}, s{sT0}, {2048*s + 18432 - 2048}\ns_add_u32 m0, s{sMT}, {slot*T_SLOT}")
        k(f"s_add_u32 s{sWo}, s{sCol1}, {col + (72*s*9216 if s < 8 else 0)}")
        for q in range(4):
            k(f"buffer_load_dwordx4 v{vDF}, {ws}, s{sT if q < 2 else sT2} offen offset:{q*1024} lds")
        vd = vDS if s == 8 else vDW
        for n in range(4):
            k(f"s_add_u32 m0, s{sMW}, {slot*W_SLOT + n*1024}")
            k(f"buffer_load_dwordx4 v{vd+n}, {S4(SRD_W)}, s{sWo} offen lds")
        e = sE + 2 * (gs & 1)
        k(f"s_add_u32 m0, s{sMW5}, {slot*W_SLOT}\ns_mov_b64 exec, s[{e}:{e+1}]")
        k(f"buffer_load_dwordx4 v{vd+4}, {S4(SRD_W)}, s{sWo} offen lds\ns_mov_b64 exec, -1")
    def cons_setup():
        tr_read_setup(k, vWa, 288, W_BASE)
        k(f"v_add_u32 v{vWa+1}, {3*W_SLOT}, v{vWa}")
        k(f"s_lshl_b32 s38, s{sLW}, 12\nv_lshl_add_u32 v{vT}, v1, 4, s38")
    def reads(c, gs, kk, buf):
        slot = gs % 4
        r = [f"ds_read_b128 {vr(c.T(buf,0,tt),4)}, v{vT} offset:{slot*T_SLOT + tt*2048 + kk*1024}" for tt in range(2)]
        for ft in range(9):
            for hh in range(2):
                o = (slot if slot < 3 else 0) * W_SLOT + (32 * kk + 16 * hh) * 288 + 32 * ft
                r.append(f"ds_read_b64_tr_b16 {vr(c.W(buf,0,ft)+2*hh,2)}, v{vWa + (1 if slot == 3 else 0)} offset:{o}")
        return r
    HP, CS = 88, 104
    def misc_loads(isA):
        k(f"v_and_b32 v7, 31, v1\nv_lshlrev_b32 v8, 6, v7")
        k(f"s_lshl_b32 s38, s{sI}, 2\ns_add_u32 s38, s38, s{sLW}\ns_lshl_b32 s38, s38, 11\ns_add_u32 s38, s38, {WS_HST}")
        for q in range(4): k(f"buffer_load_dwordx4 {vr(HP+4*q,4)}, v8, {ws}, s38 offen offset:{16*q}")
        k(f"s_mul_i32 s38, s{sJ}, 576\ns_add_u32 s38, s38, {WS_CS + (2304*4 if isA else 0)}")
        if isA:
            k("v_and_b32 v8, 15, v1\nv_lshlrev_b32 v8, 2, v8")
            for ft in range(9): k(f"buffer_load_dword v{CS+ft}, v8, {ws}, s38 offen offset:{64*ft}")
        else:
            k("v_lshrrev_b32 v8, 4, v1\nv_lshlrev_b32 v8, 4, v8")
            for ft in range(9): k(f"buffer_load_dwordx4 {vr(CS+4*ft,4)}, v8, {ws}, s38 offen offset:{64*ft}")
    def finish_stats(S_, n, vR, vM):
        k(f"s_mov_b32 s38, {f2u(1.0/n)}\nv_mul_f32 v{vM}, s38, v{S_}\nv_mul_f32 v{vR}, s38, v{S_+1}\nv_fma_f32 v{vR}, -v{vM}, v{vM}, v{vR}")
        k(f"v_max_f32 v{vR}, 0, v{vR}\nv_add_f32 v{vR}, {f2u(1e-5)}, v{vR}\nv_rsq_f32 v{vR}, v{vR}")
    def c_init(isA, c):
        for q in (2, 6, 10, 14): k(f"v_pk_add_f32 {vr(HP+q-2,2)}, {vr(HP+q-2,2)}, {vr(HP+q,2)}")
        k(f"v_pk_add_f32 {vr(HP,2)}, {vr(HP,2)}, {vr(HP+4,2)}\nv_pk_add_f32 {vr(HP+8,2)}, {vr(HP+8,2)}, {vr(HP+12,2)}\nv_pk_add_f32 {vr(HP,2)}, {vr(HP,2)}, {vr(HP+8,2)}")
        finish_stats(HP, 576, 9, 10)
        k(f"v_sub_f32 v10, 0, v10\ns_lshl_b32 s38, s{sW}, 8\ns_add_u32 s38, s38, {X_BASE}\nv_lshl_add_u32 v8, v7, 2, s38")
        k("ds_write_b32 v8, v9\nds_write_b32 v8, v10 offset:128")
        NM = HP + 4
        if isA:
            k("v_lshrrev_b32 v8, 4, v1\nv_lshl_add_u32 v15, v8, 4, s38")
            for tt in range(2): k(f"ds_read_b128 {vr(RR+4*tt,4)}, v15 offset:{64*tt}\nds_read_b128 {vr(NM+4*tt,4)}, v15 offset:{128+64*tt}")
            k("s_waitcnt lgkmcnt(0)")
            for ft in range(9):
                cp, hs = CS + (ft & ~1), ft & 1
                for tt in range(2):
                    for h in range(2):
                        k(f"v_pk_mul_f32 {vr(c.acc(tt,ft)+2*h,2)}, {vr(NM+4*tt+2*h,2)}, {vr(cp,2)} op_sel:[0,{hs}] op_sel_hi:[1,{hs}]")
        else:
            k("v_and_b32 v8, 15, v1\nv_lshl_add_u32 v8, v8, 2, s38")
            k(f"ds_read2_b32 {vr(RR,2)}, v8 offset0:0 offset1:16\nds_read2_b32 {vr(NM,2)}, v8 offset0:32 offset1:48")
            k("s_waitcnt lgkmcnt(0)")
            for ft in range(9):
                for tt in range(2):
                    for h in range(2):
                        k(f"v_pk_mul_f32 {vr(c.acc(tt,ft)+2*h,2)}, {vr(CS+4*ft+2*h,2)}, {vr(NM,2)} op_sel:[0,{tt}] op_sel_hi:[1,{tt}]")
    k(f"s_mov_b32 s{sC}, {f2u(C1)}\ns_mov_b32 s{sC+1}, {f2u(C0)}")
    k(f"s_cmp_lt_u32 s{sW}, 4\ns_cbranch_scc1 {name}_A")
    cB = Cons(k, 2, 9, 1, ACC, FR0, "W", reads, rdgaps=12)
    dma_setup_regular()
    k("s_waitcnt lgkmcnt(0)")
    srd(k, SRD_W, 6, 0, D * F * 2)
    srd(k, SRD_WS, 40, 0, WS_SIZE)
    for s in range(4): dma(s)
    misc_loads(False)
    dma_setup_special()
    cons_setup()
    k("s_waitcnt vmcnt(38)\ns_barrier")
    for s in range(9):
        k(f"s_waitcnt vmcnt({30 if s < 2 else 17})\ns_barrier")
        if s == 8: cB.first_reads(9)
        dma(s + 4)
        if s == 2: c_init(False, cB)
    st(1)
    for gs in range(9, 18):
        vm = {9: 17, 10: 8, 11: 0}.get(gs)
        cB.stage(gs, gs == 17, vm=vm, barrier=(gs < 17))
    st(2)
    P = 88
    k(f"s_lshl_b32 s42, s{sI}, 4\ns_add_u32 s42, s42, s{sJ}\ns_lshl_b32 s42, s42, 2\ns_add_u32 s42, s42, s{sLW}\ns_mul_i32 s42, s42, 9216\ns_add_u32 s42, s42, {WS_Z1}")
    tiles = [(tt, ft) for tt in range(2) for ft in range(9)]
    for q in range(9):
        seqs = []
        for u in range(2):
            tt, ft = tiles[2 * q + u]
            a = cB.acc(tt, ft)
            sq = gelu4(a, [RR, RR], f" op_sel:[0,{tt}] op_sel_hi:[1,{tt}]", sC, TMP + 4 * u)
            sq += [f"v_cvt_pk_bf16_f32 v{P+4*q+2*u+h}, v{a+2*h}, v{a+2*h+1}" for h in range(2)]
            seqs.append(sq)
        for x in interleave(*seqs): k(x)
        k(f"buffer_store_dwordx4 {vr(P+4*q,4)}, v{vDF}, {ws}, s42 offen offset:{(q%4)*1024}")
        if q % 4 == 3: k("s_add_u32 s42, s42, 4096")
    st.flush(4, sW, SRD_WS, 3)
    k("s_endpgm")
    k(f"{name}_A:")
    cA = Cons(k, 2, 9, 1, ACC, FR0, "T", reads, rdgaps=12)
    k("s_waitcnt lgkmcnt(0)")
    srd(k, SRD_W, 6, 0, D * F * 2)
    srd(k, SRD_WS, 40, 0, WS_SIZE)
    misc_loads(True)
    cons_setup()
    dma_setup_regular()
    dma_setup_special()
    k("s_waitcnt vmcnt(0)")
    c_init(True, cA)
    k("s_barrier")
    st(1)
    cA.first_reads(0)
    for s in range(9): cA.stage(s, s == 8)
    st(2)
    if prioA: k(f"s_setprio {prioA}")
    SUM, SQ = 88, 96
    tiles = [(tt, ft) for ft in range(9) for tt in range(2)]
    ti = 0
    bar = 9
    for ch in chunks:
        for q in range(ch // 2):
            seqs = []
            for u in range(2):
                tt, ft = tiles[ti]; ti += 1
                a = cA.acc(tt, ft)
                sq = gelu4(a, [RR + 4 * tt, RR + 4 * tt + 2], "", sC, TMP + 4 * u)
                for h in range(2):
                    if ft == 0:
                        sq.append(f"v_pk_mul_f32 {vr(SQ+4*tt+2*h,2)}, {vr(a+2*h,2)}, {vr(a+2*h,2)}")
                    else:
                        sq.append(f"v_pk_fma_f32 {vr(SQ+4*tt+2*h,2)}, {vr(a+2*h,2)}, {vr(a+2*h,2)}, {vr(SQ+4*tt+2*h,2)}")
                    if ft == 1:
                        sq.append(f"v_pk_add_f32 {vr(SUM+4*tt+2*h,2)}, {vr(a+2*h,2)}, {vr(cA.acc(tt,0)+2*h,2)}")
                    elif ft > 1:
                        sq.append(f"v_pk_add_f32 {vr(SUM+4*tt+2*h,2)}, {vr(SUM+4*tt+2*h,2)}, {vr(a+2*h,2)}")
                seqs.append(sq)
            for x in interleave(*seqs): k(x)
        if ti < 18:
            k("s_barrier"); dma(bar + 4); bar += 1
    assert ti == 18
    Y, Z = 104, 112
    dm = "row_mask:0xf"
    for si, X in enumerate((SUM, SQ)):
        for r in range(4):
            k(f"v_add_f32_dpp v{Y+4*si+r}, v{X+r}, v{X+r} row_ror:8 {dm} bank_mask:0x3")
        for r in range(4):
            k(f"v_add_f32_dpp v{Y+4*si+r}, v{X+4+r}, v{X+4+r} row_ror:8 {dm} bank_mask:0xc")
    for si in range(2):
        for q in range(2): k(f"v_add_f32_dpp v{Z+2*si+q}, v{Y+4*si+q}, v{Y+4*si+q} row_shl:4 {dm} bank_mask:0x5")
    for si in range(2):
        for q in range(2): k(f"v_add_f32_dpp v{Z+2*si+q}, v{Y+4*si+2+q}, v{Y+4*si+2+q} row_shr:4 {dm} bank_mask:0xa")
    for perm in ("[1,0,3,2]", "[2,3,0,1]"):
        for e in range(4): k(f"v_add_f32_dpp v{Z+e}, v{Z+e}, v{Z+e} quad_perm:{perm} {dm} bank_mask:0xf")
    k("v_and_b32 v8, 1, v1\nv_cmp_eq_u32 vcc, 1, v8")
    k("v_bfe_u32 v9, v1, 3, 1\nv_lshl_add_u32 v8, v9, 4, v8\nv_lshrrev_b32 v9, 4, v1\nv_lshl_add_u32 v8, v9, 2, v8\nv_bfe_u32 v9, v1, 2, 1\nv_lshl_add_u32 v8, v9, 1, v8\nv_lshlrev_b32 v8, 3, v8")
    k(f"v_cndmask_b32 v{Y}, v{Z}, v{Z+1}, vcc\nv_cndmask_b32 v{Y+1}, v{Z+2}, v{Z+3}, vcc\nv_and_b32 v{Y+1}, 0x7fffffff, v{Y+1}")
    k(f"v_and_b32 v9, 2, v1\nv_cmp_eq_u32 vcc, 0, v9\nv_mov_b32 v9, {OOB}\nv_cndmask_b32 v8, v9, v8, vcc")
    k(f"s_lshl_b32 s42, s{sI}, 14\ns_lshl_b32 s38, s{sLW}, 8\ns_add_u32 s42, s42, s38\ns_add_u32 s42, s42, {WS_ZST}\ns_lshl_b32 s38, s{sJ}, 10\ns_add_u32 s38, s38, s42")
    k(f"buffer_store_dwordx2 {vr(Y,2)}, v8, {ws}, s38 offen sc1")
    if prioA: k("s_setprio 0")
    st(3)
    while bar <= 16:
        vm = {12: 17, 13: 17, 14: 17, 15: 8, 16: 0}.get(bar)
        if vm is not None: k(f"s_waitcnt vmcnt({vm})")
        k("s_barrier")
        if bar + 4 <= 17: dma(bar + 4)
        bar += 1
    k(f"v_and_b32 v7, 31, v1\nv_lshlrev_b32 v8, 3, v7\nv_lshrrev_b32 v9, 5, v1\nv_lshl_add_u32 v8, v9, 10, v8")
    k(f"s_add_u32 s43, s42, 4096\ns_add_u32 s50, s42, 8192\ns_add_u32 s51, s42, 12288\ns_mov_b32 s52, 0x40000")
    PL = 104
    k(f"{name}_poll:")
    for q in range(8):
        k(f"buffer_load_dwordx2 {vr(PL+2*q,2)}, v8, {ws}, s{[42,43,50,51][q>>1]} offen offset:{2048*(q&1)} sc1")
    k("s_waitcnt vmcnt(0)")
    k(f"v_max3_u32 v9, v{PL+1}, v{PL+3}, v{PL+5}\nv_max3_u32 v10, v{PL+7}, v{PL+9}, v{PL+11}\nv_max3_u32 v9, v9, v{PL+13}, v{PL+15}\nv_max_u32 v9, v9, v10")
    k(f"v_cmp_eq_u32 vcc, -1, v9\ns_sub_u32 s52, s52, 1\ns_cbranch_vccz {name}_got\ns_cmp_eq_u32 s52, 0\ns_cbranch_scc1 {name}_got\ns_sleep 2\ns_branch {name}_poll")
    k(f"{name}_got:")
    st(4)
    for q in (0, 4, 8, 12): k(f"v_pk_add_f32 {vr(PL+q,2)}, {vr(PL+q,2)}, {vr(PL+q+2,2)}")
    k(f"v_pk_add_f32 {vr(PL,2)}, {vr(PL,2)}, {vr(PL+4,2)}\nv_pk_add_f32 {vr(PL+8,2)}, {vr(PL+8,2)}, {vr(PL+12,2)}\nv_pk_add_f32 {vr(PL,2)}, {vr(PL,2)}, {vr(PL+8,2)}")
    k(f"v_mov_b32 v{PL+2}, v{PL}\nv_mov_b32 v{PL+3}, v{PL+1}\nv_permlane32_swap_b32 v{PL+2}, v{PL}\nv_permlane32_swap_b32 v{PL+3}, v{PL+1}\nv_pk_add_f32 {vr(PL,2)}, {vr(PL,2)}, {vr(PL+2,2)}")
    finish_stats(PL, 2304, 9, 10)
    k(f"v_mul_f32 v10, v10, v9\nv_sub_f32 v10, 0, v10\ns_lshl_b32 s38, s{sW}, 8\ns_add_u32 s38, s38, {X_BASE}\nv_lshl_add_u32 v8, v7, 2, s38")
    k("ds_write_b32 v8, v9\nds_write_b32 v8, v10 offset:128")
    NB = 120
    for tt in range(2): k(f"ds_read_b128 {vr(RR+4*tt,4)}, v15 offset:{64*tt}\nds_read_b128 {vr(NB+4*tt,4)}, v15 offset:{128+64*tt}")
    k(f"s_lshl_b32 s42, s{sJ}, 6\ns_lshl_b32 s38, s{sI}, 2\ns_add_u32 s42, s42, s38\ns_add_u32 s42, s42, s{sLW}\ns_mul_i32 s42, s42, 9216\ns_add_u32 s42, s42, {WS_Z2}")
    k("s_waitcnt lgkmcnt(0)")
    P = 128
    for ft in range(9):
        o = P + 4 * ft
        for tt in range(2):
            a = cA.acc(tt, ft)
            for h in range(2): k(f"v_pk_fma_f32 {vr(a+2*h,2)}, {vr(a+2*h,2)}, {vr(RR+4*tt+2*h,2)}, {vr(NB+4*tt+2*h,2)}")
        for tt in range(2):
            a = cA.acc(tt, ft)
            for h in range(2): k(f"v_cvt_pk_bf16_f32 v{o+2*tt+h}, v{a+2*h}, v{a+2*h+1}")
        k(f"v_permlane32_swap_b32 v{o}, v{o+2}\nv_permlane32_swap_b32 v{o+1}, v{o+3}\nv_permlane16_swap_b32 v{o}, v{o+2}\nv_permlane16_swap_b32 v{o+1}, v{o+3}")
        k(f"buffer_store_dwordx4 {vr(o,4)}, v{vDF}, {ws}, s42 offen offset:{(ft%4)*1024}")
        if ft % 4 == 3: k("s_add_u32 s42, s42, 4096")
    st.flush(6, sW, SRD_WS, 3)
    k(f"{name}_end:\ns_endpgm")
    return k
if __name__ == "__main__":
    ks = [k4(stamps=True)]
    open("k4t.s", "w").write(build(ks))
    for q in ks: print(q.name, q.stats, q.nops, len(q.lines))
```

```python
from common import *
from k1 import t_dma_setup, t_swz_read_setup
from k4 import ij_map

def k5(name="k5_kernel", stamps=False):
    k = K(name, 256, 512, lds=X_BASE)
    st = Stamps(k, stamps)
    NST = 32
    sW, sI, sJ, sLW = 20, 21, 22, 23
    SRD_T, SRD_WS, SRD_B = 8, 16, 24
    sT, sT2, sF, sF5, sMT, sMF, sMF5, sE, sCNT = 28, 29, 30, 31, 32, 33, 42, 34, 43
    ws = S4(SRD_WS)
    prologue(k, name, 256, sW, st)
    k(f"s_load_dwordx4 s[4:7], s[0:1], {KA_WSP}\ns_load_dwordx2 s[40:41], s[0:1], {KA_WS}")
    wave_lane(k, sW)
    ij_map(k, sI, sJ)
    k(f"s_cmp_lt_u32 s{sW}, 4\ns_cbranch_scc1 {name}_cons")
    vDT0, vDT1, vDF = 3, 4, 5
    k(f"s_sub_u32 s{sLW}, s{sW}, 4")
    t_dma_setup(k, vDT0, vDT1, 4096)
    k(f"v_subrev_u32 v{vDT1}, 1024, v{vDT1}\nv_lshlrev_b32 v{vDF}, 4, v1")
    k(f"s_lshl_b32 s38, s{sI}, 19\ns_lshl_b32 s39, s{sLW}, 17\ns_add_u32 s{sT}, s38, s39\ns_add_u32 s{sT2}, s{sT}, {65536-2048}")
    k(f"s_mul_i32 s38, s{sJ}, {64*9216}\ns_add_u32 s38, s38, {WS_Z2}\ns_lshl_b32 s{sMT}, s{sLW}, 12\ns_add_u32 s{sF}, s38, s{sMT}")
    k(f"s_and_b32 s39, s{sLW}, 1\ns_lshl_b32 s39, s39, 10\ns_add_u32 s{sF5}, s38, s39\ns_add_u32 s{sF5}, s{sF5}, 16384")
    k(f"s_add_u32 s{sMF}, s{sMT}, {W_BASE}\ns_add_u32 s{sMF5}, s39, {W_BASE+16384}")
    k(f"s_cmp_lt_u32 s{sLW}, 2\ns_cselect_b64 s[{sE}:{sE+1}], -1, 0\ns_cselect_b64 s[{sE+2}:{sE+3}], 0, -1")
    k("s_waitcnt lgkmcnt(0)")
    srd(k, SRD_T, 4, 0, S * S * 2)
    srd(k, SRD_WS, 40, 0, WS_SIZE)
    def dma(s):
        slot = s % 4
        k(f"s_add_u32 m0, s{sMT}, {slot*T_SLOT}")
        for q in range(4):
            k(f"buffer_load_dwordx4 v{vDT0+(q&1)}, {S4(SRD_T)}, s{sT if q < 2 else sT2} offen offset:{q*1024} lds")
        k(f"s_add_u32 m0, s{sMF}, {slot*W_SLOT}\ns_add_u32 s{sT}, s{sT}, 128")
        for n in range(4):
            k(f"buffer_load_dwordx4 v{vDF}, {ws}, s{sF} offen offset:{n*1024} lds")
        e = sE + 2 * (s & 1)
        k(f"s_add_u32 m0, s{sMF5}, {slot*W_SLOT}\ns_mov_b64 exec, s[{e}:{e+1}]")
        k(f"buffer_load_dwordx4 v{vDF}, {ws}, s{sF5} offen lds\ns_mov_b64 exec, -1")
        k(f"s_add_u32 s{sT2}, s{sT2}, 128\ns_add_u32 s{sF}, s{sF}, 18432\ns_add_u32 s{sF5}, s{sF5}, 18432")
    for s in range(3): dma(s)
    k("s_waitcnt vmcnt(17)\ns_barrier")
    dma(3)
    def lstage(s):
        vm = 17 if s + 3 < NST else (8 if s + 2 < NST else 0)
        k(f"s_waitcnt vmcnt({vm})\ns_barrier")
        if s + 4 < NST: dma(s + 4)
    k(f"s_mov_b32 s{sCNT}, 7")
    k(f"{name}_lloop:")
    for s in range(4): lstage(s)
    k(f"s_sub_u32 s{sCNT}, s{sCNT}, 1\ns_cmp_lg_u32 s{sCNT}, 0\ns_cbranch_scc1 {name}_lloop")
    for s in range(28, 31): lstage(s)
    st.flush(2, sW, SRD_WS, 4)
    k("s_endpgm")
    k(f"{name}_cons:")
    vT0, vT1, vF0, vF1, vB = 3, 4, 5, 6, 7
    ACC, FR0, Z1 = 16, 88, 176
    t_swz_read_setup(k, vT0, vT1, sW)
    k(f"v_lshlrev_b32 v{vB}, 4, v1\nv_add_u32 v{vF0}, {W_BASE}, v{vB}\nv_add_u32 v{vF1}, {3*W_SLOT}, v{vF0}")
    k("s_waitcnt lgkmcnt(0)")
    srd(k, SRD_WS, 40, 0, WS_SIZE)
    srd(k, SRD_B, 6, 0, S * 2)
    k(f"s_lshl_b32 s38, s{sI}, 8\ns_lshl_b32 s39, s{sW}, 6\ns_add_u32 s38, s38, s39\nv_lshlrev_b32 v11, 1, v11")
    k(f"buffer_load_ushort v14, v11, {S4(SRD_B)}, s38 offen\nbuffer_load_ushort v15, v11, {S4(SRD_B)}, s38 offen offset:32")
    k(f"s_lshl_b32 s42, s{sI}, 4\ns_add_u32 s42, s42, s{sJ}\ns_lshl_b32 s42, s42, 2\ns_add_u32 s42, s42, s{sW}\ns_mul_i32 s42, s42, 9216\ns_add_u32 s42, s42, {WS_Z1}")
    z1l = []
    for q in range(9):
        z1l.append(f"buffer_load_dwordx4 {vr(Z1+4*q,4)}, v{vB}, {ws}, s42 offen offset:{(q%4)*1024}" + ("\ns_add_u32 s42, s42, 4096" if q % 4 == 3 else ""))
    def reads(c, s, kk, buf):
        slot = s % 4
        r = [f"ds_read_b128 {vr(c.T(buf,0,tt),4)}, v{vT0+kk} offset:{slot*T_SLOT + tt*2048}" for tt in range(2)]
        for ft in range(9):
            o = (slot if slot < 3 else 0) * W_SLOT + kk * 9216 + ft * 1024
            r.append(f"ds_read_b128 {vr(c.W(buf,0,ft),4)}, v{vF0 + (1 if slot == 3 else 0)} offset:{o}")
        return r
    c = Cons(k, 2, 9, 1, ACC, FR0, "W", reads, rdgaps=11)
    k("s_waitcnt vmcnt(0)\nv_lshlrev_b32 v14, 16, v14\nv_lshlrev_b32 v15, 16, v15")
    for tt in range(2):
        for r in range(36): k(f"v_mov_b32 v{ACC+tt*36+r}, v{14+tt}")
    k("s_barrier")
    st(1)
    c.first_reads(0)
    k(f"s_mov_b32 s{sCNT}, 7")
    k(f"{name}_loop:")
    for s in range(4): c.stage(s, False)
    k(f"s_sub_u32 s{sCNT}, s{sCNT}, 1\ns_cmp_lg_u32 s{sCNT}, 0\ns_cbranch_scc1 {name}_loop")
    for s in range(28, 32): c.stage(s, s == 31, barrier=(s < 31), extraA=(z1l if s == 28 else ()))
    st(2)
    k("s_waitcnt vmcnt(0)")
    P = 88
    k(f"s_lshl_b32 s38, s{sI}, 2\ns_add_u32 s38, s38, s{sW}\ns_mul_i32 s38, s38, {2*72*1024}")
    k(f"s_lshr_b32 s39, s{sJ}, 1\ns_mul_i32 s39, s39, 9216\ns_add_u32 s38, s38, s39\ns_add_u32 s38, s38, {WS_U}")
    k(f"s_add_u32 s39, s38, {72*1024}\ns_add_u32 s43, s38, 4096\ns_add_u32 s44, s39, 4096\ns_add_u32 s45, s38, 8192\ns_add_u32 s46, s39, 8192")
    for e in range(36):
        a = ACC + 2 * e
        t = 8 + 2 * (e % 2)
        k(f"v_lshlrev_b32 v{t}, 16, v{Z1+e}\nv_and_b32 v{t+1}, 0xffff0000, v{Z1+e}")
        k(f"v_pk_mul_f32 {vr(a,2)}, {vr(a,2)}, {vr(t,2)}")
        if e > 0: k(f"v_cvt_pk_bf16_f32 v{P+e-1}, v{a-2}, v{a-1}")
    k(f"v_cvt_pk_bf16_f32 v{P+35}, v{ACC+70}, v{ACC+71}")
    k(f"s_bitcmp1_b32 s{sJ}, 0\ns_cbranch_scc1 {name}_odd")
    for tt, (b0, b1) in enumerate(((38, 43), (39, 44))):
        for p in range(4):
            k(f"buffer_store_dwordx4 {vr(P+tt*18+4*p,4)}, v{vB}, {ws}, s{b0} offen offset:{p*1024}")
        k(f"buffer_store_dwordx2 {vr(P+tt*18+16,2)}, v{vB}, {ws}, s{b1} offen")
    st.flush(4, sW, SRD_WS, 4)
    k("s_endpgm")
    k(f"{name}_odd:")
    for tt, (b1, b2) in enumerate(((43, 45), (44, 46))):
        k(f"buffer_store_dwordx2 {vr(P+tt*18,2)}, v{vB}, {ws}, s{b1} offen offset:8")
        for p in range(3):
            k(f"buffer_store_dwordx4 {vr(P+tt*18+2+4*p,4)}, v{vB}, {ws}, s{b1} offen offset:{(p+1)*1024}")
        k(f"buffer_store_dwordx4 {vr(P+tt*18+14,4)}, v{vB}, {ws}, s{b2} offen")
    st.flush(4, sW, SRD_WS, 4)
    k(f"{name}_end:\ns_endpgm")
    return k
```

```python
MB = 1 << 20
S, D, F, FH = 2048, 576, 4608, 2304
WS_QM  = 0 * MB
WS_KM  = 2 * MB
WS_QT  = 4 * MB
WS_KT  = 4 * MB + 512 * 1024
WS_VF  = 5 * MB
WS_O   = 8 * MB
WS_H   = 11 * MB
WS_HST = 14 * MB
WS_CS  = 14 * MB + 256 * 1024
WS_ZST = 14 * MB + 512 * 1024
WS_Z2  = 16 * MB
WS_Z1  = 26 * MB
WS_U   = 36 * MB
WS_WINF = 46 * MB
WS_WOF  = 52 * MB
WS_WOUTF = 53 * MB
WS_DBG = 200 * MB
WS_SIZE = 256 * MB
KA_X, KA_WQKV, KA_WO, KA_BX, KA_WIN, KA_WSP, KA_BSP, KA_WOUT, KA_OUT, KA_DBG, KA_WS = [8 * i for i in range(11)]
```

```python
import sys
from common import *
from k1 import k1
from k2 import k2
from k36 import k36
from k4 import k4
from k5n import k5
HDR = open("sequential_preLN__sliding_block__mixer_gmlp__prompt.s.ref").read().split("; Override launch")[0]
HDR = "\n".join(l[2:] for l in HDR.strip().split("\n"))
def empty(name):
    k = K(name, 1, 64); k("s_endpgm"); return k
def make(stamps=False, nempty=0):
    ks = [k1(stamps=stamps), k2(stamps=stamps), k36(3, stamps=stamps), k4(stamps=stamps), k5(stamps=stamps), k36(6, stamps=stamps)]
    la = list(ks)
    if nempty:
        e = empty("e_kernel"); ks.append(e); la += [e] * nempty
    return build(ks, la, header=HDR), ks
if __name__ == "__main__":
    t, ks = make(True); open("allt.s", "w").write(t)
    t, ks = make(False); open("sequential_preLN__sliding_block__mixer_gmlp__prompt.s", "w").write(t)
    for q in ks: print(q.name, q.stats, q.nops, len(q.lines))
    t, ks = make(False, 20); open("v_e20.s", "w").write(t)
```

```python
from common import *
from relayout import *
import math
QSCALE = (18 ** -0.5) * math.log2(math.e)
import struct
def f2u(x): return struct.unpack("<I", struct.pack("<f", x))[0]

def t_dma_setup(k, vDT0, vDT1, stride, t0=11):
    k(f"v_lshrrev_b32 v{t0}, 3, v1\nv_mul_u32_u24 v{t0+1}, {stride}, v{t0}")
    k(f"v_and_b32 v{t0+2}, 7, v1\nv_lshrrev_b32 v{t0+3}, 4, v1\nv_xor_b32 v{t0+2}, v{t0+2}, v{t0+3}")
    k(f"v_lshl_add_u32 v{vDT0}, v{t0+2}, 4, v{t0+1}")
    k(f"v_xor_b32 v{t0+2}, 4, v{t0+2}\nv_lshl_add_u32 v{vDT1}, v{t0+2}, 4, v{t0+1}\nv_add_u32 v{vDT1}, {8*stride}, v{vDT1}")
def t_swz_read_setup(k, vT0, vT1, sWv, t0=11):
    k(f"v_and_b32 v{t0}, 15, v1\nv_lshrrev_b32 v{t0+1}, 4, v1\nv_lshrrev_b32 v{t0+2}, 1, v{t0}\nv_xor_b32 v{t0+1}, v{t0+1}, v{t0+2}")
    k(f"v_lshlrev_b32 v{t0+1}, 4, v{t0+1}\nv_lshl_add_u32 v{t0+1}, v{t0}, 7, v{t0+1}\ns_lshl_b32 s38, s{sWv}, 12\nv_add_u32 v{vT0}, s38, v{t0+1}")
    k(f"v_xor_b32 v{vT1}, 64, v{vT0}")
def w_dma_setup(k, vDW, sLW, CH, nrows, coefs, const, stride, t0=11, nper=4, extra=True, mlist=None):
    n = nper + (1 if extra else 0)
    for i in range(n):
        if i < nper: k(f"s_mul_i32 s38, s{sLW}, {64*nper}\ns_add_u32 s38, s38, {64*i}")
        else: k(f"s_and_b32 s38, s{sLW}, 1\ns_lshl_b32 s38, s38, 6\ns_add_u32 s38, s38, {64*4*nper}")
        k(f"v_add_u32 v{t0}, s38, v1")
        vdiv(k, t0 + 1, t0 + 2, t0, CH, nrows * CH)
        vrowmap(k, vDW + i, t0 + 1, coefs, const, stride, t0 + 3, 39)
        k(f"v_lshl_add_u32 v{vDW+i}, v{t0+2}, 4, v{vDW+i}")
def tr_read_setup(k, vA, rowbytes, base, t0=11):
    k(f"v_lshrrev_b32 v{t0}, 2, v1\nv_mul_u32_u24 v{t0}, {rowbytes}, v{t0}\nv_add_u32 v{t0}, {base}, v{t0}")
    k(f"v_and_b32 v{t0+1}, 3, v1\nv_lshl_add_u32 v{vA}, v{t0+1}, 3, v{t0}")

def k1(name="k1_kernel", stamps=False, sidedelay=0):
    k = K(name, 256, 512, lds=8 * 18432 + 4608)
    st = Stamps(k, stamps)
    NST = 9
    sW, sI, sC, sLW = 20, 21, 22, 23
    SRD_T, SRD_W, SRD_WS, SRD_V = 8, 12, 16, 24
    sT, sT2, sWo, sMT, sMW, sMW5 = 28, 29, 30, 31, 32, 33
    sE = 34
    prologue(k, name, 256, sW, st)
    k(f"s_load_dwordx4 s[4:7], s[0:1], {KA_X}\ns_load_dwordx2 s[40:41], s[0:1], {KA_WS}\ns_load_dwordx2 s[42:43], s[0:1], {KA_WIN}")
    wave_lane(k, sW)
    k(f"s_and_b32 s38, s2, 7\ns_lshr_b32 s39, s2, 3")
    k(f"s_cmp_ge_u32 s39, 24\ns_cbranch_scc1 {name}_side")
    k(f"s_and_b32 s{sI}, s38, 3\ns_lshl_b32 s{sI}, s{sI}, 2\ns_and_b32 s{sC}, s39, 3\ns_add_u32 s{sI}, s{sI}, s{sC}")
    k(f"s_lshr_b32 s38, s38, 2\ns_mul_i32 s38, s38, 6\ns_lshr_b32 s{sC}, s39, 2\ns_add_u32 s{sC}, s{sC}, s38")
    k(f"s_cmp_lt_u32 s{sW}, 4\ns_cbranch_scc1 {name}_cons")
    vDT0, vDT1, vDW = 3, 4, 5
    vT0, vT1, vS0, vS1, vS2 = 90, 91, 92, 93, 94
    k(f"s_sub_u32 s{sLW}, s{sW}, 4")
    t_dma_setup(k, vDT0, vDT1, 1152)
    w_dma_setup(k, vDW, sLW, 18, 64, [1, 2, 8, 16, 4, 32], 0, 3456)
    k(f"s_mul_i32 s{sT}, s{sI}, {128*1152}\ns_mul_i32 s39, s{sLW}, {32*1152}\ns_add_u32 s{sT}, s{sT}, s39\ns_add_u32 s{sT2}, s{sT}, {16*1152}")
    k(f"s_mul_i32 s{sWo}, s{sC}, 288")
    k(f"s_lshl_b32 s{sMT}, s{sLW}, 12\ns_add_u32 s{sMW}, s{sMT}, {W_BASE}")
    k(f"s_and_b32 s39, s{sLW}, 1\ns_lshl_b32 s39, s39, 10\ns_add_u32 s{sMW5}, s39, {W_BASE+16384}")
    k(f"s_cmp_lt_u32 s{sLW}, 2\ns_cselect_b64 s[{sE}:{sE+1}], -1, 0\ns_cselect_b64 s[{sE+2}:{sE+3}], 0, -1")
    k("s_waitcnt lgkmcnt(0)")
    srd(k, SRD_T, 4, 0, S * D * 2)
    srd(k, SRD_W, 6, 0, D * 3 * D * 2)
    srd(k, SRD_WS, 40, 0, WS_SIZE)
    def dma(s):
        slot = s % 4
        for q in range(4):
            k(f"s_add_u32 m0, s{sMT}, {slot*T_SLOT + q*1024}")
            k(f"buffer_load_dwordx4 v{vDT0 + (q&1)}, {S4(SRD_T)}, s{sT if q < 2 else sT2} offen lds")
        for n in range(4):
            k(f"s_add_u32 m0, s{sMW}, {slot*W_SLOT + n*1024}")
            k(f"buffer_load_dwordx4 v{vDW+n}, {S4(SRD_W)}, s{sWo} offen lds")
        e = sE + 2 * (s & 1)
        k(f"s_add_u32 m0, s{sMW5}, {slot*W_SLOT}\ns_mov_b64 exec, s[{e}:{e+1}]")
        k(f"buffer_load_dwordx4 v{vDW+4}, {S4(SRD_W)}, s{sWo} offen lds\ns_mov_b64 exec, -1")
        k(f"s_add_u32 s{sT}, s{sT}, 128\ns_add_u32 s{sT2}, s{sT2}, 128\ns_add_u32 s{sWo}, s{sWo}, {64*3456}")
    for s in range(3): dma(s)
    t_swz_read_setup(k, vT0, vT1, sLW)
    tr_read_setup(k, vS0, 288, W_BASE)
    k(f"s_lshr_b32 s44, s{sLW}, 1\ns_mul_i32 s44, s44, 72\ns_and_b32 s45, s{sLW}, 1\ns_mul_i32 s45, s45, 40\ns_add_u32 s44, s44, s45")
    k(f"s_lshl_b32 s45, s{sLW}, 5\ns_cmp_lt_u32 s{sC}, 8\ns_cselect_b32 s44, s44, s45\ns_movk_i32 s45, 144\ns_cselect_b32 s45, s45, 128\ns_cselect_b32 s46, 72, 8\ns_cselect_b32 s47, 32, 256")
    k(f"v_mad_u32_u24 v{vS2}, v12, s46, v11\nv_add_u32 v{vS2}, s47, v{vS2}")
    k(f"v_add_u32 v{vS0}, s44, v{vS0}\nv_add_u32 v{vS1}, s45, v{vS0}")
    for i in range(3): k(f"v_add_u32 v{vS0+3+i}, {3*W_SLOT}, v{vS0+i}")
    ONES, TF, WF, SUM, GR, CSA = 16, 20, 36, 60, 68, 76
    for i in range(4): k(f"v_mov_b32 v{ONES+i}, 0x3f803f80")
    k("s_waitcnt vmcnt(17)\ns_barrier")
    dma(3)
    for s in range(NST):
        slot = s % 4
        for kk in range(2):
            for tt in range(2):
                k(f"ds_read_b128 {vr(TF+8*kk+4*tt,4)}, v{vT0+kk} offset:{slot*T_SLOT + tt*2048}")
            for i in range(3):
                for hh in range(2):
                    o = (slot if slot < 3 else 0) * W_SLOT + (32 * kk + 16 * hh) * 288
                    k(f"ds_read_b64_tr_b16 {vr(WF+12*kk+4*i+2*hh,2)}, v{vS0+i+(3 if slot == 3 else 0)} offset:{o}")
        for kk in range(2):
            k(f"s_waitcnt lgkmcnt({8*(1-kk)})")
            z = (s == 0 and kk == 0)
            for tt in range(2):
                t = vr(TF + 8 * kk + 4 * tt, 4)
                k(f"v_mfma_f32_16x16x32_bf16 {vr(SUM+4*tt,4)}, {vr(ONES,4)}, {t}, {'0' if z else vr(SUM+4*tt,4)}")
                k(f"v_mfma_f32_16x16x32_bf16 {vr(GR+4*tt,4)}, {t}, {t}, {'0' if z else vr(GR+4*tt,4)}")
            for i in range(3):
                k(f"v_mfma_f32_16x16x32_bf16 {vr(CSA+4*i,4)}, {vr(ONES,4)}, {vr(WF+12*kk+4*i,4)}, {'0' if z else vr(CSA+4*i,4)}")
        if s + 1 < NST:
            vm = 17 if s + 3 < NST else (8 if s + 2 < NST else 0)
            k(f"s_waitcnt vmcnt({vm})\ns_barrier")
            if s + 4 < NST: dma(s + 4)
    k(f"v_and_b32 v11, 15, v1\nv_lshrrev_b32 v12, 4, v1\nv_lshrrev_b32 v13, 2, v11\nv_and_b32 v14, 3, v1")
    k(f"s_lshl_b32 s44, s{sLW}, 8\ns_add_u32 s44, s44, {X_BASE}\nv_lshl_add_u32 v15, v11, 2, s44")
    k(f"v_cmp_eq_u32 vcc, v12, v13\nv_mov_b32 v10, {X_BASE+2048}\nv_cndmask_b32 v15, v10, v15, vcc")
    k(f"v_cmp_eq_u32 s[44:45], 1, v14\nv_cmp_eq_u32 s[46:47], 2, v14\nv_cmp_eq_u32 s[48:49], 3, v14")
    k(f"s_mov_b32 s50, {f2u(1.0/576)}\ns_mov_b32 s51, {f2u(1e-5)}\ns_cmp_lt_u32 s{sC}, 4\ns_cselect_b32 s52, {f2u(QSCALE)}, 1.0")
    for tt in range(2):
        g = GR + 4 * tt
        k(f"v_cndmask_b32 v10, v{g}, v{g+1}, s[44:45]\nv_cndmask_b32 v10, v10, v{g+2}, s[46:47]\nv_cndmask_b32 v10, v10, v{g+3}, s[48:49]")
        k(f"v_mul_f32 v12, s50, v{SUM+4*tt}\nv_mul_f32 v10, s50, v10\nv_fma_f32 v10, -v12, v12, v10\nv_max_f32 v10, 0, v10\nv_add_f32 v10, s51, v10")
        k(f"v_rsq_f32 v10, v10\nv_mul_f32 v10, s52, v10\nv_mul_f32 v12, v12, v10\nv_sub_f32 v12, 0, v12")
        k(f"ds_write_b32 v15, v10 offset:{64*tt}\nds_write_b32 v15, v12 offset:{128+64*tt}")
    k(f"s_lshl_b32 s44, s{sLW}, 6\ns_add_u32 s44, s44, {X_BASE+1024}\nv_lshl_add_u32 v15, v11, 2, s44")
    k(f"ds_write_b32 v15, v{CSA}\nds_write_b32 v15, v{CSA+4} offset:256")
    k(f"v_lshlrev_b32 v15, 2, v11\nds_write_b32 v15, v{CSA+8} offset:0" if False else f"v_lshlrev_b32 v15, 2, v11\nv_add_u32 v15, {X_BASE+1024+512}, v15\nds_write_b32 v15, v{CSA+8}")
    k("s_waitcnt lgkmcnt(0)\ns_barrier")
    st.flush(2, sW, SRD_WS, 0)
    k("s_endpgm")
    k(f"{name}_cons:")
    vT0, vT1, vWa, vWt = 3, 4, 5, 7
    t_swz_read_setup(k, vT0, vT1, sW)
    tr_read_setup(k, vWa, 288, W_BASE)
    k(f"v_add_u32 v{vWa+1}, {3*W_SLOT}, v{vWa}")
    k(f"v_mul_u32_u24 v{vWt}, 72, v12\nv_add3_u32 v{vWt}, v{vWt}, v11, 32\nv_add_u32 v{vWt+1}, {3*W_SLOT}, v{vWt}")
    k("s_waitcnt lgkmcnt(0)")
    srd(k, SRD_WS, 40, 0, WS_SIZE)
    srd(k, SRD_V, 40, WS_VF, 256 * 9728)
    ACC, FR0 = 16, 88
    def mkreads(qk):
        def reads(c, s, kk, buf):
            slot = s % 4
            r = [f"ds_read_b128 {vr(c.T(buf,0,tt),4)}, v{vT0+kk} offset:{slot*T_SLOT + tt*2048}" for tt in range(2)]
            for ft in range(9):
                for hh in range(2):
                    o = (slot if slot < 3 else 0) * W_SLOT + (32 * kk + 16 * hh) * 288
                    va = vWa
                    if qk:
                        if ft < 8: o += 72 * (ft >> 1) + 40 * (ft & 1)
                        else: va = vWt
                    else: o += 32 * ft
                    r.append(f"ds_read_b64_tr_b16 {vr(c.W(buf,0,ft)+2*hh,2)}, v{va + (1 if slot == 3 else 0)} offset:{o}")
            return r
        return reads
    k(f"s_lshl_b32 s44, s{sI}, 2\ns_add_u32 s44, s44, s{sW}")
    k(f"s_cmp_ge_u32 s{sC}, 8\ns_cbranch_scc1 {name}_vcons")
    P = 88
    for qk in (True, False):
        if not qk: k(f"{name}_vcons:")
        c = Cons(k, 2, 9, 1, ACC, FR0, "W" if qk else "T", mkreads(qk), rdgaps=12)
        k("s_barrier")
        st(1)
        c.first_reads(0)
        for s in range(NST):
            c.stage(s, s == NST - 1, zero_c=(s == 0), barrier=(s < NST - 1))
        st(2)
        k("s_barrier")
        k(f"v_and_b32 v11, 15, v1\nv_lshrrev_b32 v12, 4, v1\ns_lshl_b32 s45, s{sW}, 8\ns_add_u32 s45, s45, {X_BASE}")
        AB, CS = 124, 140
        if qk:
            k(f"v_lshl_add_u32 v13, v11, 2, s45\nv_lshlrev_b32 v14, 4, v12\nv_add_u32 v14, {X_BASE+1024}, v14")
            for tt in range(2): k(f"ds_read2_b32 {vr(AB+2*tt,2)}, v13 offset0:{16*tt} offset1:{32+16*tt}")
            for ft in range(9): k(f"ds_read_b128 {vr(CS+4*ft,4)}, v14 offset:{64*ft}")
            k(f"s_and_b32 s46, s{sC}, 3\ns_lshl_b32 s47, s46, 19\ns_lshl_b32 s48, s44, 10\ns_add_u32 s47, s47, s48")
            k(f"s_cmp_lt_u32 s{sC}, 4\ns_mov_b32 s48, {WS_QM}\ns_cselect_b32 s48, s48, {WS_KM}\ns_mov_b32 s49, {WS_QT}\ns_cselect_b32 s49, s49, {WS_KT}\ns_add_u32 s47, s47, s48")
            k(f"s_lshl_b32 s46, s46, 16\ns_add_u32 s49, s49, s46\ns_lshl_b32 s46, s44, 7\ns_add_u32 s49, s49, s46")
            k(f"v_lshlrev_b32 v9, 4, v1\nv_and_b32 v10, 31, v1\nv_lshlrev_b32 v10, 2, v10\nv_lshrrev_b32 v15, 5, v1\nv_lshl_add_u32 v10, v15, 15, v10")
            k("s_waitcnt lgkmcnt(0)")
            for ft in range(9):
                o = P + 4 * (ft % 4)
                for tt in range(2):
                    a = c.acc(tt, ft)
                    for h in range(2):
                        k(f"v_pk_mul_f32 {vr(a+2*h,2)}, {vr(a+2*h,2)}, {vr(AB+2*tt,2)} op_sel_hi:[1,0]")
                    for h in range(2):
                        k(f"v_pk_fma_f32 {vr(a+2*h,2)}, {vr(CS+4*ft+2*h,2)}, {vr(AB+2*tt,2)}, {vr(a+2*h,2)} op_sel:[0,1,0]")
                    for h in range(2):
                        k(f"v_cvt_pk_bf16_f32 v{o+2*tt+h}, v{a+2*h}, v{a+2*h+1}")
                k(f"v_permlane16_swap_b32 v{o}, v{o+2}\nv_permlane16_swap_b32 v{o+1}, v{o+3}")
                if ft < 8:
                    k(f"buffer_store_dwordx4 {vr(o,4)}, v9, {S4(SRD_WS)}, s47 offen\ns_add_u32 s47, s47, 65536")
                else:
                    for e in range(4):
                        k(f"buffer_store_dword v{o+e}, v10, {S4(SRD_WS)}, s49 offen\ns_add_u32 s49, s49, 8192")
        else:
            k(f"v_lshl_add_u32 v13, v12, 4, s45\nv_lshlrev_b32 v14, 2, v11\nv_add_u32 v14, {X_BASE+1024}, v14")
            for tt in range(2):
                k(f"ds_read_b128 {vr(AB+8*tt,4)}, v13 offset:{64*tt}\nds_read_b128 {vr(AB+8*tt+4,4)}, v13 offset:{128+64*tt}")
            for ft in range(9): k(f"ds_read_b32 v{CS+ft}, v14 offset:{64*ft}")
            k(f"s_mul_i32 s47, s44, {4*9728}\ns_sub_u32 s46, s{sC}, 8\ns_mul_i32 s46, s46, {8*304}\ns_add_u32 s47, s47, s46")
            k(f"v_mul_u32_u24 v9, 9728, v12")
            VO = 152
            m, sh = magic(18, 144)
            for ft in range(9):
                k(f"v_add_u32 v10, {16*ft}, v11\nv_mul_u32_u24 v15, {m}, v10\nv_lshrrev_b32 v15, {sh}, v15\nv_add_u32 v10, v10, v15\nv_lshl_add_u32 v{VO+ft}, v10, 4, v9")
            k(f"v_lshrrev_b32 v10, 3, v1\nv_mul_u32_u24 v10, 9728, v10\nv_and_b32 v15, 7, v1\nv_mul_u32_u24 v15, 304, v15\nv_add3_u32 v10, v10, v15, 0\nv_add_u32 v10, 288, v10")
            k(f"v_cmp_gt_u32 vcc, 32, v1\nv_mov_b32 v15, 0x40000000\nv_cndmask_b32 v10, v15, v10, vcc")
            for i in range(4): k(f"v_mov_b32 v{164+i}, 0x3f803f80")
            k(f"buffer_store_dwordx4 v[164:167], v10, {S4(SRD_V)}, s47 offen")
            k("s_waitcnt lgkmcnt(0)")
            for ft in range(9):
                o = P + 4 * (ft % 4)
                cp = CS + (ft & ~1); hs = ft & 1
                for tt in range(2):
                    a = c.acc(tt, ft)
                    for h in range(2):
                        k(f"v_pk_mul_f32 {vr(a+2*h,2)}, {vr(a+2*h,2)}, {vr(AB+8*tt+2*h,2)}")
                    for h in range(2):
                        k(f"v_pk_fma_f32 {vr(a+2*h,2)}, {vr(cp,2)}, {vr(AB+8*tt+4+2*h,2)}, {vr(a+2*h,2)} op_sel:[{hs},0,0] op_sel_hi:[{hs},1,1]")
                    for h in range(2):
                        k(f"v_cvt_pk_bf16_f32 v{o+2*tt+h}, v{a+2*h}, v{a+2*h+1}")
                k(f"v_permlane32_swap_b32 v{o}, v{o+2}\nv_permlane32_swap_b32 v{o+1}, v{o+3}")
                k(f"buffer_store_dwordx4 {vr(o,4)}, v{VO+ft}, {S4(SRD_V)}, s47 offen")
        st.flush(4, sW, SRD_WS, 0)
        k("s_endpgm")
    k(f"{name}_side:")
    k(f"s_load_dwordx2 s[48:49], s[0:1], {KA_WO}")
    k(f"s_sub_u32 s39, s39, 24\ns_lshl_b32 s39, s39, 3\ns_add_u32 s21, s39, s38")
    k(f"s_lshr_b32 s22, s21, 1\ns_and_b32 s23, s21, 1")
    DA, DB, FA, FB = 20, 30, 40, 80
    unit_offsets(k, DA, 9, [1, 2, 4, 8, 16], 0, 9216)
    k(f"s_mul_i32 s28, s{sW}, {72*9216}\ns_mul_i32 s29, s23, {32*9216}\ns_add_u32 s28, s28, s29\ns_mul_i32 s30, s22, 288\ns_add_u32 s28, s28, s30")
    k(f"s_mul_i32 s31, s{sW}, 18432\ns_add_u32 s32, s31, 9216")
    k(f"s_mul_i32 s33, s22, {18*9216}\ns_add_u32 s33, s33, {WS_WINF}\ns_mul_i32 s29, s23, 9216\ns_add_u32 s33, s33, s29")
    k(f"s_mul_i32 s29, s{sW}, {2*9216}\ns_add_u32 s34, s33, s29\ns_add_u32 s35, s33, {16*9216}")
    k("v_lshlrev_b32 v3, 4, v1")
    k("s_waitcnt lgkmcnt(0)")
    srd(k, SRD_W, 42, 0, D * F * 2)
    srd(k, SRD_T, 48, 0, D * D * 2)
    srd(k, SRD_WS, 40, 0, WS_SIZE)
    for _ in range(sidedelay): k("s_sleep 16")
    unit_issue(k, DA, 9, SRD_W, 28, 31)
    k(f"v_mov_b32 v8, -1\nv_mov_b32 v9, -1\nv_lshlrev_b32 v7, 3, v0\ns_lshl_b32 s45, s21, 12\ns_add_u32 s45, s45, {WS_ZST}")
    k(f"buffer_store_dwordx2 v[8:9], v7, {S4(SRD_WS)}, s45 offen")
    k(f"v_cmp_gt_u32 vcc, 256, v0\nv_mov_b32 v6, 0x40000000\nv_cndmask_b32 v7, v6, v7, vcc\ns_lshl_b32 s45, s21, 11\ns_add_u32 s45, s45, {WS_FL2}")
    k(f"buffer_store_dwordx2 v[8:9], v7, {S4(SRD_WS)}, s45 offen")
    for i in range(4): k(f"v_mov_b32 v{16+i}, 0x3f803f80")
    CSP = 8 * 18432
    def finishA(extra):
        unit_read(k, FA, 9, 31)
        k("s_waitcnt lgkmcnt(0)")
        unit_store(k, FA, 9, 3, SRD_WS, 34)
        for ft in range(9): k(f"v_mfma_f32_16x16x32_bf16 {vr(120+4*ft,4)}, v[16:19], {vr(FA+4*ft,4)}, 0")
    def cs_out():
        k(f"v_and_b32 v11, 15, v1\ns_mul_i32 s29, s{sW}, 576\ns_add_u32 s29, s29, {CSP}\nv_lshl_add_u32 v11, v11, 2, s29")
        for ft in range(9): k(f"ds_write_b32 v11, v{120+4*ft} offset:{64*ft}")
    k(f"s_cmp_eq_u32 s{sW}, 0\ns_cbranch_scc1 {name}_sB0")
    k(f"s_cmp_gt_u32 s{sW}, 3\ns_cbranch_scc1 {name}_sNone\ns_cmp_ge_u32 s21, 48\ns_cbranch_scc1 {name}_sNone")
    k(f"s_mul_i32 s44, s21, 3\ns_add_u32 s44, s44, s{sW}\ns_sub_u32 s44, s44, 1\ns_mul_i32 s45, s44, 3641\ns_lshr_b32 s45, s45, 16\ns_mul_i32 s46, s45, 18\ns_sub_u32 s46, s44, s46")
    k(f"s_mul_i32 s47, s44, 5120\ns_add_u32 s47, s47, {WS_WOF}\ns_mul_i32 s45, s45, 144")
    k(f"s_cmp_ge_u32 s46, 16\ns_cbranch_scc1 {name}_sWoT")
    unit_offsets(k, DB, 5, [1, 2, 4, 18, 8], 0, 1152)
    k(f"s_mul_i32 s46, s46, {36*1152}\ns_branch {name}_sWo2")
    k(f"{name}_sWoT:")
    unit_offsets(k, DB, 5, [1, 18, 72, 144, 36], 16, 1152)
    k(f"s_sub_u32 s46, s46, 16\ns_mul_i32 s46, s46, {288*1152}")
    k(f"{name}_sWo2:")
    k("s_add_u32 s46, s46, s45")
    unit_issue(k, DB, 5, SRD_T, 46, 32)
    k("s_waitcnt vmcnt(0)")
    finishA(0)
    unit_read(k, FB, 5, 32)
    k("s_waitcnt lgkmcnt(0)")
    unit_store(k, FB, 5, 3, SRD_WS, 47)
    k(f"s_branch {name}_sCs")
    k(f"{name}_sB0:")
    unit_offsets(k, DB, 9, [1, 2, 72, 144, 4], 64, 9216)
    k(f"s_mul_i32 s46, s23, {288*9216}\ns_add_u32 s46, s46, s30")
    unit_issue(k, DB, 9, SRD_W, 46, 32)
    k("s_waitcnt vmcnt(0)")
    finishA(0)
    unit_read(k, FB, 9, 32)
    k("s_waitcnt lgkmcnt(0)")
    unit_store(k, FB, 9, 3, SRD_WS, 35)
    for ft in range(9): k(f"v_mfma_f32_16x16x32_bf16 {vr(120+4*ft,4)}, v[16:19], {vr(FB+4*ft,4)}, {vr(120+4*ft,4)}")
    k(f"s_branch {name}_sCs")
    k(f"{name}_sNone:")
    k("s_waitcnt vmcnt(0)")
    finishA(0)
    k(f"{name}_sCs:")
    cs_out()
    k("s_waitcnt lgkmcnt(0)\ns_barrier")
    k(f"v_min_u32 v7, 143, v0\nv_lshlrev_b32 v7, 2, v7\nv_add_u32 v8, {CSP}, v7")
    for n in range(8): k(f"ds_read_b32 v{20+n}, v8 offset:{576*n}")
    k("s_waitcnt lgkmcnt(0)")
    for n in range(1, 8): k(f"v_add_f32 v20, v20, v{20+n}")
    k(f"v_cmp_gt_u32 vcc, 144, v0\nv_mov_b32 v6, 0x40000000\nv_cndmask_b32 v7, v6, v7, vcc")
    k(f"s_mul_i32 s45, s22, 576\ns_mul_i32 s46, s23, {4608*4}\ns_add_u32 s45, s45, s46\ns_add_u32 s45, s45, {WS_CS}")
    k(f"buffer_store_dword v20, v7, {S4(SRD_WS)}, s45 offen")
    st.flush(2, sW, SRD_WS, 0)
    k(f"{name}_end:\ns_endpgm")
    return k
if __name__ == "__main__":
    ks = [k1(stamps=True)]

    open("k1t.s", "w").write(build(ks))
    for q in ks: print(q.name, q.stats, q.nops, len(q.lines))
```

```python
from common import *
from relayout import *

def k2(name="k2_kernel", stamps=False, PREF=False):
    VB, KTB = 16384, 40960
    RB, JB = KTB + 2048, KTB + 2048 + 3 * 5120
    k = K(name, 256, 512, lds=JB + 4096)
    st = Stamps(k, stamps)
    sW, sQB, sH = 20, 21, 22
    SRD_WS = 16
    OOB = 0x40000000
    prologue(k, name, 256, sW, st)
    k(f"s_load_dwordx2 s[40:41], s[0:1], {KA_WS}\ns_load_dwordx2 s[4:5], s[0:1], {KA_WSP}\ns_load_dwordx2 s[6:7], s[0:1], {KA_WOUT}")
    wave_lane(k, sW)
    k(f"s_bfe_u32 s{sQB}, s2, 0x30003\ns_and_b32 s38, s2, 7\ns_lshl_b32 s38, s38, 2\ns_lshr_b32 s{sH}, s2, 6\ns_add_u32 s{sH}, s{sH}, s38")
    k(f"s_cmp_eq_u32 s{sQB}, 0\ns_cselect_b32 s23, 32, 0")
    k(f"v_mov_b32 v15, {OOB}")
    for i in range(3):
        k(f"s_lshl_b32 s38, s{sW}, 6\ns_add_u32 s38, s38, {512*i}\nv_add_u32 v11, s38, v1")
        vdiv(k, 12, 13, 11, 19, 1536)
        k(f"v_mul_u32_u24 v14, 9728, v12\nv_lshl_add_u32 v{3+i}, v13, 4, v14")
        k(f"v_cmp_gt_u32 vcc, s23, v12\nv_cndmask_b32 v{3+i}, v{3+i}, v15, vcc")
        if i == 2: k(f"v_cmp_lt_u32 vcc, 63, v12\nv_cndmask_b32 v{3+i}, v{3+i}, v15, vcc")
    k("v_lshlrev_b32 v6, 4, v1\nv_lshlrev_b32 v7, 2, v1")
    k(f"s_lshl_b32 s24, s{sH}, 16\ns_lshl_b32 s25, s{sQB}, 13\ns_add_u32 s24, s24, s25\ns_lshl_b32 s25, s{sW}, 10")
    k(f"s_add_u32 s26, s24, s25\ns_add_u32 s26, s26, {WS_QM}")
    k(f"s_lshl_b32 s25, s{sW}, 11\ns_add_u32 s27, s24, s25\ns_add_u32 s27, s27, {WS_KM - 8192}")
    k(f"s_lshr_b32 s24, s24, 3")
    k(f"s_lshl_b32 s25, s{sW}, 7\ns_add_u32 s28, s24, s25\ns_add_u32 s28, s28, {WS_QT}")
    k(f"s_lshl_b32 s25, s{sW}, 8\ns_add_u32 s29, s24, s25\ns_add_u32 s29, s29, {WS_KT - 1024}")
    k(f"s_mul_i32 s30, s{sQB}, {32*9728}\ns_mul_i32 s25, s{sH}, 304\ns_add_u32 s30, s30, s25\ns_add_u32 s30, s30, {WS_VF - 32*9728}")
    k(f"s_lshl_b32 s25, s{sQB}, 3\ns_add_u32 s31, s25, s{sW}")
    k(f"s_cmp_lt_u32 s31, 4\ns_cselect_b32 s27, {OOB}, s27\ns_cselect_b32 s29, {OOB}, s29")
    k("s_waitcnt lgkmcnt(0)")
    srd(k, SRD_WS, 40, 0, WS_SIZE)
    QM, QT = 16, 20
    ws = S4(SRD_WS)
    k(f"s_lshl_b32 s25, s{sW}, 11\ns_mov_b32 m0, s25")
    k(f"buffer_load_dwordx4 v6, {ws}, s27 offen lds\nbuffer_load_dwordx4 v6, {ws}, s27 offen offset:1024 lds")
    k(f"s_lshl_b32 s25, s{sW}, 8\ns_add_u32 m0, s25, {KTB}")
    k(f"buffer_load_dword v7, {ws}, s29 offen lds")
    k(f"buffer_load_dwordx4 {vr(QM,4)}, v6, {ws}, s26 offen")
    k(f"v_cmp_gt_u32 vcc, 32, v1\nv_cndmask_b32 v8, v15, v7, vcc")
    k(f"buffer_load_dword v{QT}, v8, {ws}, s28 offen")
    k(f"s_lshl_b32 s25, s{sW}, 10")
    for i in range(3):
        k(f"s_add_u32 m0, s25, {VB + 8192*i}")
        k(f"buffer_load_dwordx4 v{3+i}, {ws}, s30 offen lds")
    vKa, vKt, vVa = 3, 4, 5
    KT = 24
    MK = 44
    KF = 52
    VF = 64
    O = 80
    SB = 96
    k(f"v_cndmask_b32 v{QT+1}, 0, 1.0, vcc\nv_lshrrev_b32 v{QT+1}, 16, v{QT+1}\nv_mov_b32 v{QT+2}, 0\nv_mov_b32 v{QT+3}, 0")
    k(f"s_lshl_b32 s25, s{sW}, 10\nv_add_u32 v{vKa}, s25, v6")
    k(f"v_and_b32 v11, 31, v1\nv_lshrrev_b32 v12, 5, v1")
    k(f"s_lshl_b32 s25, s{sW}, 7\ns_add_u32 s25, s25, {KTB}\nv_lshl_add_u32 v{vKt}, v11, 2, s25")
    k(f"s_mul_i32 s25, s{sW}, {4*304}\ns_add_u32 s25, s25, {VB}\nv_min_u32 v13, 18, v11\nv_mul_u32_u24 v14, 304, v12\nv_lshl_add_u32 v13, v13, 4, v14\nv_add_u32 v{vVa}, s25, v13")
    for kt in range(10):
        if kt < 8:
            k(f"s_cmp_lt_u32 s31, {8-kt}\ns_cselect_b32 s25, 0xff7f, 0\nv_mov_b32 v{KT+2*kt+1}, s25")
        else: k(f"v_mov_b32 v{KT+2*kt+1}, 0")
    k(f"v_mov_b32 v{KT+18}, 0")
    k(f"v_lshlrev_b32 v14, 2, v12\nv_sub_u32 v14, v11, v14")
    for r in range(16):
        k(f"v_cmp_gt_i32 s[{44+2*r}:{45+2*r}], {8*(r>>2)+(r&3)}, v14")
    k("v_mov_b32 v9, 0xffff\nv_mov_b32 v10, 0xffff0000")
    for e in range(8):
        k(f"v_cndmask_b32 v13, 0, v9, s[{44+4*e}:{45+4*e}]\nv_cndmask_b32 v{MK+e}, 0, v10, s[{46+4*e}:{47+4*e}]\nv_or_b32 v{MK+e}, v{MK+e}, v13")
    k(f"v_lshrrev_b32 v13, 4, v11\nv_mul_u32_u24 v13, 18432, v13\nv_and_b32 v14, 15, v1\nv_lshl_add_u32 v9, v14, 4, v13")
    k(f"v_lshl_add_u32 v8, v12, 8, v9\nv_cndmask_b32 v9, v15, v9, vcc")
    k(f"s_mul_i32 s32, s31, {2*18*1024}\ns_add_u32 s32, s32, {WS_O}\ns_lshl_b32 s25, s{sH}, 9\ns_add_u32 s33, s32, s25")
    k(f"s_lshr_b32 s25, s{sH}, 2\ns_lshl_b32 s25, s25, 8\ns_add_u32 s34, s32, s25\ns_and_b32 s25, s{sH}, 3\ns_lshl_b32 s25, s25, 2\ns_add_u32 s34, s34, s25\ns_add_u32 s34, s34, 16384")
    DR = 240
    unit_offsets(k, DR, 5, [1, 2, 4, 8, 16], 0, 1152, t0=245)
    k(f"s_lshl_b32 s35, s2, 1\ns_add_u32 s35, s35, s{sW}\ns_add_u32 s36, s2, 512\ns_cmp_eq_u32 s{sW}, 2\ns_cselect_b32 s35, s36, s35")
    k(f"s_cmp_gt_u32 s{sW}, 2\ns_cselect_b32 s35, 576, s35")
    k(f"s_lshr_b32 s36, s35, 3\ns_and_b32 s37, s35, 7\ns_mul_i32 s76, s36, {32*1152}\ns_mul_i32 s25, s37, 144\ns_add_u32 s76, s76, s25")
    k(f"s_mul_i32 s37, s37, 72\ns_add_u32 s37, s37, s36\ns_mul_i32 s37, s37, 5120\ns_add_u32 s37, s37, {WS_WOUTF}")
    k(f"s_min_u32 s77, s{sW}, 2\ns_mul_i32 s77, s77, 5120\ns_add_u32 s77, s77, {RB}")
    srd(k, 8, 4, 0, S * S * 2)
    srd(k, 12, 6, 0, FH * D * 2)
    k(f"s_lshl_b32 s36, s2, 3\ns_add_u32 s36, s36, s{sW}\ns_lshl_b32 s36, s36, 12")
    k("s_waitcnt vmcnt(0)\ns_barrier")
    st(1)
    if PREF:
        k(f"s_mov_b32 m0, {JB}")
        for q in range(4): k(f"buffer_load_dwordx4 v6, s[8:11], s36 offen offset:{1024*q} lds")
    k(f"s_cmp_ge_u32 s35, 576\ns_cbranch_scc1 {name}_nou")
    unit_issue(k, DR, 5, 12, 76, 77)
    k(f"{name}_nou:")
    order = [0, 8, 1, 2, 3, 4, 5, 6, 7]
    for kt in order: k(f"ds_read_b32 v{KT+2*kt}, v{vKt} offset:{128*kt}")
    NB = 3
    for i in range(NB): k(f"ds_read_b128 {vr(KF+4*i,4)}, v{vKa} offset:{1024*order[i]}")
    def Sx(kt): return SB + 16 * kt
    M0, M1 = 10, 11
    def maxes(kt, first):
        s = Sx(kt); out = []
        for q in range(8):
            m = M0 if q % 2 == 0 else M1
            if first and q < 2: out.append(f"v_max_f32 v{m}, v{s+2*q}, v{s+2*q+1}")
            else: out.append(f"v_max3_f32 v{m}, v{s+2*q}, v{s+2*q+1}, v{m}")
        return out
    pend = []
    for i, kt in enumerate(order):
        left = min(NB - 1, 8 - i)
        k(f"s_waitcnt lgkmcnt({left})")
        k(f"v_mfma_f32_32x32x16_bf16 {vr(Sx(kt),16)}, {vr(KF+4*(i%NB),4)}, {vr(QM,4)}, 0")
        for _ in range(min(4, len(pend))): k(pend.pop(0))
        k(f"v_mfma_f32_32x32x16_bf16 {vr(Sx(kt),16)}, {vr(KT+2*kt,4)}, {vr(QT,4)}, {vr(Sx(kt),16)}")
        if i + NB < 9: k(f"ds_read_b128 {vr(KF+4*(i%NB),4)}, v{vKa} offset:{1024*order[i+NB]}")
        for _ in range(min(6, len(pend))): k(pend.pop(0))
        if i == 2:
            pend += [f"v_cndmask_b32 v{Sx(0)+r}, v{Sx(8)+r}, v{Sx(0)+r}, s[{44+2*r}:{45+2*r}]" for r in range(16)] + maxes(0, True)
        elif i > 3: pend += maxes(order[i - 2], False)
    def vread(kt, j, buf): return f"ds_read_b128 {vr(VF+4*buf,4)}, v{vVa} offset:{(4*kt+2*j)*304}"
    for b, (kt, j) in enumerate(((0, 0), (0, 1), (8, 0), (8, 1))): k(vread(kt, j, b))
    for x in pend: k(x)
    for x in maxes(6, False) + maxes(7, False): k(x)
    st(2)
    k(f"v_max_f32 v{M0}, v{M0}, v{M1}\nv_mov_b32 v{M1}, v{M0}\nv_permlane32_swap_b32 v{M1}, v{M0}\nv_max_f32 v{M0}, v{M0}, v{M1}")
    def softmax_tile(kt):
        s = Sx(kt); out = []
        for e in range(8):
            out.append(f"v_pk_add_f32 {vr(s+2*e,2)}, {vr(s+2*e,2)}, {vr(M0,2)} op_sel_hi:[1,0] neg_lo:[0,1] neg_hi:[0,1]")
        seq = []
        seq.append(out[0])
        for e in range(8):
            if e + 1 < 8: seq.append(out[e + 1])
            seq.append(f"v_exp_f32 v{s+2*e}, v{s+2*e}")
            seq.append(f"v_exp_f32 v{s+2*e+1}, v{s+2*e+1}")
            if e > 0: seq.append(f"v_cvt_pk_bf16_f32 v{s+e-1}, v{s+2*e-2}, v{s+2*e-1}")
        seq.append(f"v_cvt_pk_bf16_f32 v{s+7}, v{s+14}, v{s+15}")
        return seq
    for x in softmax_tile(0): k(x)
    s0 = Sx(0)
    for e in range(8): k(f"v_and_b32 v{s0+8+e}, v{MK+e}, v{s0+e}")
    for e in range(8): k(f"v_xor_b32 v{s0+e}, v{s0+8+e}, v{s0+e}")
    mq = [(0, s0 + 8), (1, s0 + 12), (2, s0), (3, s0 + 4)]
    first = True
    nxt = [(kt, j) for kt in range(1, 8) for j in range(2)]
    outstanding = 4
    freeb = []
    for kt in range(1, 9):
        seq = softmax_tile(kt) if kt < 8 else []
        n = len(mq)
        gap = max(1, len(seq) // max(n, 1)) if seq else 0
        pos = 0
        for qi, (b, p) in enumerate(mq):
            k(f"s_waitcnt lgkmcnt({outstanding-1})"); outstanding -= 1
            k(f"v_mfma_f32_32x32x16_bf16 {vr(O,16)}, {vr(VF+4*b,4)}, {vr(p,4)}, {'0' if first else vr(O,16)}")
            first = False
            if nxt:
                t, j = nxt.pop(0); k(vread(t, j, b)); outstanding += 1; freeb.append(b)
            for x in seq[pos:pos + gap]: k(x)
            pos += gap
        for x in seq[pos:]: k(x)
        if kt < 8:
            mq = [(freeb.pop(0), Sx(kt)), (freeb.pop(0), Sx(kt) + 4)]
    st(3)
    k(f"v_rcp_f32 v10, v{O+10}")
    for r in range(0, 10, 2): k(f"v_pk_mul_f32 {vr(O+r,2)}, {vr(O+r,2)}, v[10:11] op_sel_hi:[1,0]")
    for e in range(5): k(f"v_cvt_pk_bf16_f32 v{VF+e}, v{O+2*e}, v{O+2*e+1}")
    k(f"s_cmp_lt_u32 s35, 576\ns_cbranch_scc1 {name}_u2")
    k(f"buffer_store_dwordx4 {vr(VF,4)}, v8, {ws}, s33 offen\nbuffer_store_dword v{VF+4}, v9, {ws}, s34 offen")
    st.flush(5, sW, SRD_WS, 1)
    k("s_endpgm")
    k(f"{name}_u2:")
    k("s_waitcnt vmcnt(0)")
    k(f"buffer_store_dwordx4 {vr(VF,4)}, v8, {ws}, s33 offen\nbuffer_store_dword v{VF+4}, v9, {ws}, s34 offen")
    unit_read(k, SB, 5, 77, t0=12)
    k("s_waitcnt lgkmcnt(0)")
    unit_store(k, SB, 5, 6, SRD_WS, 37)
    st.flush(5, sW, SRD_WS, 1)
    k(f"{name}_end:\ns_endpgm")
    return k
if __name__ == "__main__":
    ks = [k2(stamps=True)]
    ks[0].verbose = True
    open("k2t.s", "w").write(build(ks))
    for q in ks: print(q.name, q.stats, q.nops, len(q.lines))
```

```python
from common import *
from k1 import w_dma_setup, tr_read_setup

def k36(which, name=None, stamps=False):
    k3 = which == 3
    name = name or f"k{which}_kernel"
    KB = 1 if k3 else 2
    RING = 8 if k3 else 4
    NST = 9 if k3 else 18
    PRE = 5 if k3 else 3
    NKB = 18 if k3 else 72
    TS, WSL = 8192 * KB, 10240 * KB
    XB = W_BASE + 81920
    k = K(name, 256, 512, lds=XB + (12288 if k3 else 0))
    st = Stamps(k, stamps)
    sW, sRB, sB, sLW = 20, 21, 22, 23
    SRD_W, SRD_WS, SRD_X = 12, 16, 8
    sT, sWo, sMT, sMW, sMW5, sE, sCNT = 28, 30, 31, 32, 33, 34, 29
    OOB = 0x40000000
    prologue(k, name, 256, sW, st)
    k(f"s_load_dwordx2 s[40:41], s[0:1], {KA_WS}\ns_load_dwordx2 s[4:5], s[0:1], {KA_X if k3 else KA_OUT}")
    wave_lane(k, sW)
    k(f"s_and_b32 s38, s2, 3\ns_lshl_b32 s38, s38, 3\ns_bfe_u32 s39, s2, 0x30003\ns_add_u32 s{sRB}, s38, s39")
    k(f"s_bfe_u32 s38, s2, 0x10002\ns_lshl_b32 s38, s38, 2\ns_lshr_b32 s39, s2, 6\ns_add_u32 s{sB}, s38, s39")
    k(f"s_cmp_lt_u32 s{sW}, 4\ns_cbranch_scc1 {name}_cons")
    vDF = 3
    nper = 2 if k3 else 5
    k(f"s_sub_u32 s{sLW}, s{sW}, 4\nv_lshlrev_b32 v{vDF}, 4, v1")
    k(f"s_lshl_b32 s{sT}, s{sRB}, 2\ns_add_u32 s{sT}, s{sT}, s{sLW}\ns_mul_i32 s{sT}, s{sT}, {NKB*1024}\ns_add_u32 s{sT}, s{sT}, {WS_O if k3 else WS_U}")
    k(f"s_mul_i32 s38, s{sB}, {NKB*5120}\ns_add_u32 s38, s38, {WS_WOF if k3 else WS_WOUTF}")
    k(f"s_mul_i32 s{sMT}, s{sLW}, {2048*KB}\ns_mul_i32 s{sMW}, s{sLW}, {1024*nper}\ns_add_u32 s{sWo}, s38, s{sMW}\ns_add_u32 s{sMW}, s{sMW}, {W_BASE}")
    if k3:
        k(f"s_and_b32 s39, s{sLW}, 1\ns_lshl_b32 s39, s39, 10\ns_add_u32 s{sMW5}, s39, {W_BASE+8192}\ns_add_u32 s44, s38, s39\ns_add_u32 s44, s44, 8192")
        k(f"s_cmp_lt_u32 s{sLW}, 2\ns_cselect_b64 s[{sE}:{sE+1}], -1, 0\ns_cselect_b64 s[{sE+2}:{sE+3}], 0, -1")
    else:
        k(f"s_add_u32 s44, s{sWo}, 4096")
    st(1)
    k("s_waitcnt lgkmcnt(0)")
    st(2)
    srd(k, SRD_WS, 40, 0, WS_SIZE)
    def dma(s):
        slot = s % RING
        k(f"s_add_u32 m0, s{sMT}, {slot*TS}")
        for q in range(2 * KB):
            k(f"buffer_load_dwordx4 v{vDF}, {S4(SRD_WS)}, s{sT} offen offset:{q*1024} lds")
        k(f"s_add_u32 m0, s{sMW}, {slot*WSL}\ns_add_u32 s{sT}, s{sT}, {2048*KB}")
        for n in range(min(nper, 4)):
            k(f"buffer_load_dwordx4 v{vDF}, {S4(SRD_WS)}, s{sWo} offen offset:{n*1024} lds")
        if k3:
            e = sE + 2 * (s & 1)
            k(f"s_add_u32 m0, s{sMW5}, {slot*WSL}\ns_mov_b64 exec, s[{e}:{e+1}]")
            k(f"buffer_load_dwordx4 v{vDF}, {S4(SRD_WS)}, s44 offen lds\ns_mov_b64 exec, -1")
        else:
            k(f"s_add_u32 m0, s{sMW}, {slot*WSL + 4096}\ns_nop 0")
            k(f"buffer_load_dwordx4 v{vDF}, {S4(SRD_WS)}, s44 offen lds")
        k(f"s_add_u32 s{sWo}, s{sWo}, {WSL}\ns_add_u32 s44, s44, {WSL}")
    for s in range(PRE): dma(s)
    st(3)
    cnt = (lambda n: (9 * n) // 2) if k3 else (lambda n: 9 * n)
    k(f"s_waitcnt vmcnt({cnt(PRE-1)})")
    st(4)
    k("s_barrier")
    dma(PRE)
    def lstage(s):
        newest = min(NST - 1, s + PRE)
        k(f"s_waitcnt vmcnt({cnt(newest - (s + 1))})\ns_barrier")
        if s + PRE + 1 < NST: dma(s + PRE + 1)
    if k3:
        for s in range(NST - 1): lstage(s)
    else:
        k(f"s_mov_b32 s{sCNT}, 3")
        k(f"{name}_lloop:")
        for s in range(4): lstage(s)
        k(f"s_sub_u32 s{sCNT}, s{sCNT}, 1\ns_cmp_lg_u32 s{sCNT}, 0\ns_cbranch_scc1 {name}_lloop")
        for s in range(12, NST - 1): lstage(s)
    st.flush(6, sW, SRD_WS, which - 1)
    k("s_endpgm")
    k(f"{name}_cons:")
    vT, vWa = 3, 4
    k(f"v_lshlrev_b32 v{vWa}, 4, v1\nv_add_u32 v{vWa}, {W_BASE}, v{vWa}")
    k(f"v_add_u32 v{vWa+1}, 61440, v{vWa}")
    k(f"s_mul_i32 s38, s{sW}, {2048*KB}\nv_lshl_add_u32 v{vT}, v1, 4, s38")
    k(f"v_lshlrev_b32 v6, 4, v1\nv_and_b32 v11, 15, v1\nv_lshrrev_b32 v12, 4, v1\nv_mov_b32 v15, {OOB}")
    k(f"s_lshl_b32 s45, s{sRB}, 2\ns_add_u32 s45, s45, s{sW}")
    k(f"s_mul_i32 s46, s45, 18432\ns_add_u32 s46, s46, {WS_H}\ns_lshl_b32 s38, s{sB}, 8\ns_add_u32 s47, s46, s38\ns_add_u32 s47, s47, 16384")
    k(f"s_lshl_b32 s38, s{sB}, 11\ns_add_u32 s46, s46, s38")
    k(f"v_lshlrev_b32 v7, 4, v11\nv_lshl_add_u32 v7, v12, 3, v7\nv_cmp_gt_u32 vcc, 32, v1\nv_cndmask_b32 v7, v15, v7, vcc")
    k("s_waitcnt lgkmcnt(0)")
    srd(k, SRD_WS, 40, 0, WS_SIZE)
    srd(k, SRD_X, 4, 0, S * D * 2)
    ACC, FR0 = 16, 36
    RES = 140
    k(f"s_mul_i32 s48, s45, {16*1152}\ns_mul_i32 s38, s{sB}, 144\ns_add_u32 s48, s48, s38")
    if k3:
        k(f"s_mul_i32 s49, s{sW}, 3072\ns_add_u32 s49, s49, {XB}")
        for i in range(3):
            k(f"v_add_u32 v8, {64*i}, v1")
            vdiv(k, 9, 10, 8, 10, 192)
            k(f"v_mul_u32_u24 v9, 1152, v9\nv_lshl_add_u32 v9, v10, 4, v9")
            if i == 2: k(f"v_cndmask_b32 v9, v15, v9, vcc")
            k(f"s_add_u32 m0, s49, {1024*i}")
            k(f"buffer_load_dwordx4 v9, {S4(SRD_X)}, s48 offen lds")
        k(f"v_mul_u32_u24 v8, 160, v11\nv_lshl_add_u32 v8, v12, 3, v8\nv_add_u32 v8, s49, v8")
    else:
        k(f"buffer_load_dwordx4 {vr(RES,4)}, v6, {S4(SRD_WS)}, s46 offen\nbuffer_load_dwordx4 {vr(RES+4,4)}, v6, {S4(SRD_WS)}, s46 offen offset:1024")
        k(f"buffer_load_dwordx2 {vr(RES+8,2)}, v7, {S4(SRD_WS)}, s47 offen")
    def reads(c, s, blk, buf):
        slot = s % RING
        r = []
        for kb in range(KB):
            ks = blk * KB + kb
            r.append(f"ds_read_b128 {vr(c.T(buf,kb,0),4)}, v{vT} offset:{slot*TS + ks*1024}")
            for ft in range(5):
                o = slot * WSL + ks * 5120 + 1024 * ft
                va = vWa
                if slot * WSL >= 61440: o -= 61440; va += 1
                r.append(f"ds_read_b128 {vr(c.W(buf,kb,ft),4)}, v{va} offset:{o}")
        return r
    c = Cons(k, 1, 5, KB, ACC, FR0, "W", reads, rdgaps=(3 if k3 else 6))
    if not k3:
        for r in range(20): k(f"v_mov_b32 v{ACC+r}, 0")
    k("s_barrier")
    st(1)
    c.first_reads(0)
    if k3:
        for s in range(NST): c.stage(s, s == NST - 1, zero_c=(s == 0), barrier=(s < NST - 1))
    else:
        k(f"s_mov_b32 s{sCNT}, 4")
        k(f"{name}_loop:")
        for s in range(4): c.stage(s, False)
        k(f"s_sub_u32 s{sCNT}, s{sCNT}, 1\ns_cmp_lg_u32 s{sCNT}, 0\ns_cbranch_scc1 {name}_loop")
        for s in range(16, NST): c.stage(s, s == NST - 1, barrier=(s < NST - 1))
    st(2)
    k("s_waitcnt vmcnt(0)")
    if k3:
        for ft in range(5): k(f"ds_read_b64 {vr(RES+2*ft,2)}, v8 offset:{32*ft}")
        k("s_waitcnt lgkmcnt(0)")
    P = 40
    for e in range(10):
        k(f"v_lshlrev_b32 v{60+2*e}, 16, v{RES+e}\nv_and_b32 v{61+2*e}, 0xffff0000, v{RES+e}")
    for e in range(10):
        k(f"v_pk_add_f32 {vr(ACC+2*e,2)}, {vr(ACC+2*e,2)}, {vr(60+2*e,2)}")
    for e in range(10):
        k(f"v_cvt_pk_bf16_f32 v{P+e}, v{ACC+2*e}, v{ACC+2*e+1}")
    if k3:
        k(f"buffer_store_dwordx4 {vr(P,4)}, v6, {S4(SRD_WS)}, s46 offen\nbuffer_store_dwordx4 {vr(P+4,4)}, v6, {S4(SRD_WS)}, s46 offen offset:1024")
        k(f"buffer_store_dwordx2 {vr(P+8,2)}, v7, {S4(SRD_WS)}, s47 offen")
        k(f"v_cndmask_b32 v{P+10}, 0, v{P+8}, vcc\nv_cndmask_b32 v{P+11}, 0, v{P+9}, vcc")
        for e in range(10):
            src = P + e if e < 8 else P + e + 2
            k(f"v_lshlrev_b32 v{60+2*e}, 16, v{src}\nv_and_b32 v{61+2*e}, 0xffff0000, v{src}")
        k(f"v_pk_add_f32 v[16:17], v[60:61], v[62:63]\nv_pk_mul_f32 v[18:19], v[60:61], v[60:61]")
        for e in range(1, 10):
            if e > 1: k(f"v_pk_add_f32 v[16:17], v[16:17], {vr(60+2*e,2)}")
            k(f"v_pk_fma_f32 v[18:19], {vr(60+2*e,2)}, {vr(60+2*e,2)}, v[18:19]")
        k("v_add_f32 v16, v16, v17\nv_add_f32 v18, v18, v19")
        k("v_permlane32_swap_b32 v16, v18\nv_add_f32 v16, v16, v18\nv_mov_b32 v18, v16\nv_permlane16_swap_b32 v16, v18\nv_add_f32 v16, v16, v18")
        k(f"v_lshlrev_b32 v9, 3, v11\nv_lshl_add_u32 v9, v12, 1, v9\nv_and_b32 v10, 1, v12\nv_cmp_eq_u32 vcc, 0, v10\nv_cndmask_b32 v9, v15, v9, vcc")
        k(f"s_lshl_b32 s38, s45, 10\ns_lshl_b32 s39, s{sB}, 7\ns_add_u32 s38, s38, s39\ns_add_u32 s38, s38, {WS_HST}")
        k(f"buffer_store_dword v16, v9, {S4(SRD_WS)}, s38 offen")
    else:
        for p in range(2):
            k(f"v_permlane16_swap_b32 v{P+4*p}, v{P+4*p+2}\nv_permlane16_swap_b32 v{P+4*p+1}, v{P+4*p+3}")
        k(f"v_mul_u32_u24 v8, 1152, v11\nv_and_b32 v9, 1, v12\nv_lshlrev_b32 v9, 5, v9\nv_lshrrev_b32 v10, 1, v12\nv_lshl_add_u32 v9, v10, 4, v9\nv_add_u32 v9, v9, v8")
        k(f"v_lshl_add_u32 v8, v12, 3, v8\nv_cndmask_b32 v8, v15, v8, vcc")
        k(f"buffer_store_dwordx4 {vr(P,4)}, v9, {S4(SRD_X)}, s48 offen\nbuffer_store_dwordx4 {vr(P+4,4)}, v9, {S4(SRD_X)}, s48 offen offset:64")
        k(f"buffer_store_dwordx2 {vr(P+8,2)}, v8, {S4(SRD_X)}, s48 offen offset:128")
    st.flush(4, sW, SRD_WS, which - 1)
    k(f"{name}_end:\ns_endpgm")
    return k
if __name__ == "__main__":
    ks = [k36(3, stamps=True), k36(6, stamps=True)]
    open("k36t.s", "w").write(build(ks))
    for q in ks: print(q.name, q.stats, q.nops, len(q.lines))
```

```python
from common import *
from k1 import w_dma_setup, tr_read_setup, f2u
import math
C0 = -2.0 * math.sqrt(2.0 / math.pi) * math.log2(math.e)
C1 = C0 * 0.044715

def ij_map(k, sI, sJ):
    k(f"s_and_b32 s38, s2, 1\ns_lshl_b32 s38, s38, 3\ns_bfe_u32 s39, s2, 0x30003\ns_add_u32 s{sI}, s38, s39")
    k(f"s_bfe_u32 s38, s2, 0x20001\ns_lshl_b32 s38, s38, 2\ns_lshr_b32 s39, s2, 6\ns_add_u32 s{sJ}, s38, s39")

def gelu4(a, rs, rsel, sC, t):
    o = []
    for h in range(2): o.append(f"v_pk_mul_f32 {vr(a+2*h,2)}, {vr(a+2*h,2)}, {vr(rs[h],2)}{rsel}")
    for h in range(2): o.append(f"v_pk_mul_f32 {vr(t+2*h,2)}, {vr(a+2*h,2)}, {vr(a+2*h,2)}")
    for h in range(2): o.append(f"v_pk_fma_f32 {vr(t+2*h,2)}, {vr(t+2*h,2)}, s[{sC}:{sC+1}], s[{sC}:{sC+1}] op_sel:[0,0,1] op_sel_hi:[1,0,1]")
    for h in range(2): o.append(f"v_pk_mul_f32 {vr(t+2*h,2)}, {vr(t+2*h,2)}, {vr(a+2*h,2)}")
    for e in range(4): o.append(f"v_exp_f32 v{t+e}, v{t+e}")
    for h in range(2): o.append(f"v_pk_add_f32 {vr(t+2*h,2)}, {vr(t+2*h,2)}, 1.0 op_sel_hi:[1,0]")
    for e in range(4): o.append(f"v_rcp_f32 v{t+e}, v{t+e}")
    for h in range(2): o.append(f"v_pk_mul_f32 {vr(a+2*h,2)}, {vr(a+2*h,2)}, {vr(t+2*h,2)}")
    return o
def interleave(x, y):
    o = []
    for i in range(max(len(x), len(y))):
        if i < len(x): o.append(x[i])
        if i < len(y): o.append(y[i])
    return o

def k4(name="k4_kernel", stamps=False, prioA=1, chunks=(6, 6, 6)):
    k = K(name, 256, 512, lds=X_BASE + 4096)
    st = Stamps(k, stamps)
    sW, sI, sJ, sLW = 20, 21, 22, 23
    SRD_W, SRD_WS = 12, 16
    sT, sT2, sWo, sMT, sMW, sMW5, sE, sWs, sC = 28, 29, 30, 31, 32, 33, 34, 44, 46
    sT0, sCol1 = 48, 49
    OOB = 0x40000000
    ws = S4(SRD_WS)
    prologue(k, name, 256, sW, st)
    k(f"s_load_dwordx2 s[40:41], s[0:1], {KA_WS}")
    wave_lane(k, sW)
    ij_map(k, sI, sJ)
    k(f"s_and_b32 s{sLW}, s{sW}, 3")
    vDF, vT, vWa, RR = 3, 4, 5, 176
    ACC, FR0 = 16, 88
    TMP = 184
    sF0, sF5 = 49, 53
    def dma_setup():
        k(f"v_lshlrev_b32 v{vDF}, 4, v1")
        k(f"s_lshl_b32 s{sT0}, s{sI}, 2\ns_add_u32 s{sT0}, s{sT0}, s{sLW}\ns_mul_i32 s{sT0}, s{sT0}, {2*18432}\ns_add_u32 s{sT0}, s{sT0}, {WS_H}")
        k(f"s_lshl_b32 s{sMT}, s{sLW}, 12\ns_add_u32 s{sMW}, s{sMT}, {W_BASE}")
        k(f"s_mul_i32 s38, s{sJ}, {18*9216}\ns_add_u32 s38, s38, {WS_WINF}\ns_add_u32 s{sF0}, s38, s{sMT}")
        k(f"s_and_b32 s39, s{sLW}, 1\ns_lshl_b32 s39, s39, 10\ns_add_u32 s{sMW5}, s39, {W_BASE+16384}\ns_add_u32 s{sF5}, s38, s39")
        k(f"s_cmp_lt_u32 s{sLW}, 2\ns_cselect_b64 s[{sE}:{sE+1}], -1, 0\ns_cselect_b64 s[{sE+2}:{sE+3}], 0, -1")
    def dma(gs):
        s, slot = gs % 9, gs % 4
        wo = (16 * 18 * 9216 if gs < 9 else 0) + 18432 * s
        k(f"s_add_u32 s{sT}, s{sT0}, {2048*s}\ns_add_u32 s{sT2}, s{sT0}, {2048*s + 18432 - 2048}\ns_add_u32 m0, s{sMT}, {slot*T_SLOT}")
        k(f"s_add_u32 s{sWo}, s{sF0}, {wo}")
        for q in range(4):
            k(f"buffer_load_dwordx4 v{vDF}, {ws}, s{sT if q < 2 else sT2} offen offset:{q*1024} lds")
        k(f"s_add_u32 m0, s{sMW}, {slot*W_SLOT}\ns_add_u32 s{sT}, s{sF5}, {wo + 16384}")
        for n in range(4):
            k(f"buffer_load_dwordx4 v{vDF}, {ws}, s{sWo} offen offset:{n*1024} lds")
        e = sE + 2 * (gs & 1)
        k(f"s_add_u32 m0, s{sMW5}, {slot*W_SLOT}\ns_mov_b64 exec, s[{e}:{e+1}]")
        k(f"buffer_load_dwordx4 v{vDF}, {ws}, s{sT} offen lds\ns_mov_b64 exec, -1")
    def cons_setup():
        k(f"v_lshlrev_b32 v{vWa}, 4, v1\nv_add_u32 v{vWa}, {W_BASE}, v{vWa}\nv_add_u32 v{vWa+1}, {3*W_SLOT}, v{vWa}")
        k(f"s_lshl_b32 s38, s{sLW}, 12\nv_lshl_add_u32 v{vT}, v1, 4, s38")
    def reads(c, gs, kk, buf):
        slot = gs % 4
        r = [f"ds_read_b128 {vr(c.T(buf,0,tt),4)}, v{vT} offset:{slot*T_SLOT + tt*2048 + kk*1024}" for tt in range(2)]
        for ft in range(9):
            o = (slot if slot < 3 else 0) * W_SLOT + kk * 9216 + ft * 1024
            r.append(f"ds_read_b128 {vr(c.W(buf,0,ft),4)}, v{vWa + (1 if slot == 3 else 0)} offset:{o}")
        return r
    HP, CS, CS2 = 88, 104, 140
    def misc_loads(isA):
        k(f"v_and_b32 v7, 31, v1\nv_lshlrev_b32 v8, 6, v7")
        k(f"s_lshl_b32 s38, s{sI}, 2\ns_add_u32 s38, s38, s{sLW}\ns_lshl_b32 s38, s38, 11\ns_add_u32 s38, s38, {WS_HST}")
        for q in range(4): k(f"buffer_load_dwordx4 {vr(HP+4*q,4)}, v8, {ws}, s38 offen offset:{16*q}")
        k(f"s_mul_i32 s38, s{sJ}, 576\ns_add_u32 s38, s38, {WS_CS + (2304*4 if isA else 0)}")
        if isA:
            k("v_and_b32 v8, 15, v1\nv_lshlrev_b32 v8, 2, v8")
            k(f"s_add_u32 s39, s38, {4608*4}")
            for ft in range(9): k(f"buffer_load_dword v{CS+ft}, v8, {ws}, s38 offen offset:{64*ft}\nbuffer_load_dword v{CS2+ft}, v8, {ws}, s39 offen offset:{64*ft}")
        else:
            k("v_lshrrev_b32 v8, 4, v1\nv_lshlrev_b32 v8, 4, v8")
            k(f"s_add_u32 s39, s38, {4608*4}")
            for ft in range(9): k(f"buffer_load_dwordx4 {vr(CS+4*ft,4)}, v8, {ws}, s38 offen offset:{64*ft}\nbuffer_load_dwordx4 {vr(CS2+4*ft,4)}, v8, {ws}, s39 offen offset:{64*ft}")
    def finish_stats(S_, n, vR, vM):
        k(f"s_mov_b32 s38, {f2u(1.0/n)}\nv_mul_f32 v{vM}, s38, v{S_}\nv_mul_f32 v{vR}, s38, v{S_+1}\nv_fma_f32 v{vR}, -v{vM}, v{vM}, v{vR}")
        k(f"v_max_f32 v{vR}, 0, v{vR}\nv_add_f32 v{vR}, {f2u(1e-5)}, v{vR}\nv_rsq_f32 v{vR}, v{vR}")
    def c_init(isA, c):
        for q in range(0, 10 if isA else 36, 2): k(f"v_pk_add_f32 {vr(CS+q,2)}, {vr(CS+q,2)}, {vr(CS2+q,2)}")
        for q in (2, 6, 10, 14): k(f"v_pk_add_f32 {vr(HP+q-2,2)}, {vr(HP+q-2,2)}, {vr(HP+q,2)}")
        k(f"v_pk_add_f32 {vr(HP,2)}, {vr(HP,2)}, {vr(HP+4,2)}\nv_pk_add_f32 {vr(HP+8,2)}, {vr(HP+8,2)}, {vr(HP+12,2)}\nv_pk_add_f32 {vr(HP,2)}, {vr(HP,2)}, {vr(HP+8,2)}")
        finish_stats(HP, 576, 9, 10)
        k(f"v_sub_f32 v10, 0, v10\ns_lshl_b32 s38, s{sW}, 8\ns_add_u32 s38, s38, {X_BASE}\nv_lshl_add_u32 v8, v7, 2, s38")
        k("ds_write_b32 v8, v9\nds_write_b32 v8, v10 offset:128")
        NM = HP + 4
        if isA:
            k("v_lshrrev_b32 v8, 4, v1\nv_lshl_add_u32 v15, v8, 4, s38")
            for tt in range(2): k(f"ds_read_b128 {vr(RR+4*tt,4)}, v15 offset:{64*tt}\nds_read_b128 {vr(NM+4*tt,4)}, v15 offset:{128+64*tt}")
            k("s_waitcnt lgkmcnt(0)")
            for ft in range(9):
                cp, hs = CS + (ft & ~1), ft & 1
                for tt in range(2):
                    for h in range(2):
                        k(f"v_pk_mul_f32 {vr(c.acc(tt,ft)+2*h,2)}, {vr(NM+4*tt+2*h,2)}, {vr(cp,2)} op_sel:[0,{hs}] op_sel_hi:[1,{hs}]")
        else:
            k("v_and_b32 v8, 15, v1\nv_lshl_add_u32 v8, v8, 2, s38")
            k(f"ds_read2_b32 {vr(RR,2)}, v8 offset0:0 offset1:16\nds_read2_b32 {vr(NM,2)}, v8 offset0:32 offset1:48")
            k("s_waitcnt lgkmcnt(0)")
            for ft in range(9):
                for tt in range(2):
                    for h in range(2):
                        k(f"v_pk_mul_f32 {vr(c.acc(tt,ft)+2*h,2)}, {vr(CS+4*ft+2*h,2)}, {vr(NM,2)} op_sel:[0,{tt}] op_sel_hi:[1,{tt}]")
    k(f"s_mov_b32 s{sC}, {f2u(C1)}\ns_mov_b32 s{sC+1}, {f2u(C0)}")
    k(f"s_cmp_lt_u32 s{sW}, 4\ns_cbranch_scc1 {name}_A")
    cB = Cons(k, 2, 9, 1, ACC, FR0, "W", reads, rdgaps=11)
    dma_setup()
    k("s_waitcnt lgkmcnt(0)")
    srd(k, SRD_WS, 40, 0, WS_SIZE)
    for s in range(3): dma(s)
    cons_setup()
    k("s_waitcnt vmcnt(17)\ns_barrier")
    dma(3)
    misc_loads(False)
    for s in range(9):
        k(f"s_waitcnt vmcnt({39 if s < 2 else 17})\ns_barrier")
        if s == 8: cB.first_reads(9)
        dma(s + 4)
        if s == 2: c_init(False, cB)
    st(1)
    for gs in range(9, 18):
        vm = {9: 17, 10: 8, 11: 0}.get(gs)
        cB.stage(gs, gs == 17, vm=vm, barrier=(gs < 17))
    st(2)
    P = 88
    k(f"s_lshl_b32 s42, s{sI}, 4\ns_add_u32 s42, s42, s{sJ}\ns_lshl_b32 s42, s42, 2\ns_add_u32 s42, s42, s{sLW}\ns_mul_i32 s42, s42, 9216\ns_add_u32 s42, s42, {WS_Z1}")
    tiles = [(tt, ft) for tt in range(2) for ft in range(9)]
    for q in range(9):
        seqs = []
        for u in range(2):
            tt, ft = tiles[2 * q + u]
            a = cB.acc(tt, ft)
            sq = gelu4(a, [RR, RR], f" op_sel:[0,{tt}] op_sel_hi:[1,{tt}]", sC, TMP + 4 * u)
            sq += [f"v_cvt_pk_bf16_f32 v{P+4*q+2*u+h}, v{a+2*h}, v{a+2*h+1}" for h in range(2)]
            seqs.append(sq)
        for x in interleave(*seqs): k(x)
        k(f"buffer_store_dwordx4 {vr(P+4*q,4)}, v{vDF}, {ws}, s42 offen offset:{(q%4)*1024}")
        if q % 4 == 3: k("s_add_u32 s42, s42, 4096")
    st.flush(4, sW, SRD_WS, 3)
    k("s_endpgm")
    k(f"{name}_A:")
    cA = Cons(k, 2, 9, 1, ACC, FR0, "T", reads, rdgaps=11)
    k("s_waitcnt lgkmcnt(0)")
    srd(k, SRD_WS, 40, 0, WS_SIZE)
    misc_loads(True)
    cons_setup()
    dma_setup()
    k("s_waitcnt vmcnt(0)")
    c_init(True, cA)
    k("s_barrier")
    st(1)
    cA.first_reads(0)
    for s in range(9): cA.stage(s, s == 8)
    st(2)
    if prioA: k(f"s_setprio {prioA}")
    SUM, SQ = 88, 96
    tiles = [(tt, ft) for ft in range(9) for tt in range(2)]
    ti = 0
    bar = 9
    for ch in chunks:
        for q in range(ch // 2):
            seqs = []
            for u in range(2):
                tt, ft = tiles[ti]; ti += 1
                a = cA.acc(tt, ft)
                sq = gelu4(a, [RR + 4 * tt, RR + 4 * tt + 2], "", sC, TMP + 4 * u)
                for h in range(2):
                    if ft == 0:
                        sq.append(f"v_pk_mul_f32 {vr(SQ+4*tt+2*h,2)}, {vr(a+2*h,2)}, {vr(a+2*h,2)}")
                    else:
                        sq.append(f"v_pk_fma_f32 {vr(SQ+4*tt+2*h,2)}, {vr(a+2*h,2)}, {vr(a+2*h,2)}, {vr(SQ+4*tt+2*h,2)}")
                    if ft == 1:
                        sq.append(f"v_pk_add_f32 {vr(SUM+4*tt+2*h,2)}, {vr(a+2*h,2)}, {vr(cA.acc(tt,0)+2*h,2)}")
                    elif ft > 1:
                        sq.append(f"v_pk_add_f32 {vr(SUM+4*tt+2*h,2)}, {vr(SUM+4*tt+2*h,2)}, {vr(a+2*h,2)}")
                seqs.append(sq)
            for x in interleave(*seqs): k(x)
        if ti < 18:
            k("s_barrier"); dma(bar + 4); bar += 1
    assert ti == 18
    Y, Z = 104, 112
    dm = "row_mask:0xf"
    for si, X in enumerate((SUM, SQ)):
        for r in range(4):
            k(f"v_add_f32_dpp v{Y+4*si+r}, v{X+r}, v{X+r} row_ror:8 {dm} bank_mask:0x3")
        for r in range(4):
            k(f"v_add_f32_dpp v{Y+4*si+r}, v{X+4+r}, v{X+4+r} row_ror:8 {dm} bank_mask:0xc")
    for si in range(2):
        for q in range(2): k(f"v_add_f32_dpp v{Z+2*si+q}, v{Y+4*si+q}, v{Y+4*si+q} row_shl:4 {dm} bank_mask:0x5")
    for si in range(2):
        for q in range(2): k(f"v_add_f32_dpp v{Z+2*si+q}, v{Y+4*si+2+q}, v{Y+4*si+2+q} row_shr:4 {dm} bank_mask:0xa")
    for perm in ("[1,0,3,2]", "[2,3,0,1]"):
        for e in range(4): k(f"v_add_f32_dpp v{Z+e}, v{Z+e}, v{Z+e} quad_perm:{perm} {dm} bank_mask:0xf")
    k("v_and_b32 v8, 1, v1\nv_cmp_eq_u32 vcc, 1, v8")
    k("v_bfe_u32 v9, v1, 3, 1\nv_lshl_add_u32 v8, v9, 4, v8\nv_lshrrev_b32 v9, 4, v1\nv_lshl_add_u32 v8, v9, 2, v8\nv_bfe_u32 v9, v1, 2, 1\nv_lshl_add_u32 v8, v9, 1, v8\nv_lshlrev_b32 v8, 3, v8")
    k(f"v_cndmask_b32 v{Y}, v{Z}, v{Z+1}, vcc\nv_cndmask_b32 v{Y+1}, v{Z+2}, v{Z+3}, vcc\nv_and_b32 v{Y+1}, 0x7fffffff, v{Y+1}")
    k(f"v_and_b32 v9, 2, v1\nv_cmp_eq_u32 vcc, 0, v9\nv_mov_b32 v9, {OOB}\nv_cndmask_b32 v8, v9, v8, vcc")
    k(f"s_lshl_b32 s42, s{sI}, 14\ns_lshl_b32 s38, s{sLW}, 8\ns_add_u32 s42, s42, s38\ns_add_u32 s42, s42, {WS_ZST}\ns_lshl_b32 s38, s{sJ}, 10\ns_add_u32 s38, s38, s42")
    k(f"buffer_store_dwordx2 {vr(Y,2)}, v8, {ws}, s38 offen sc1")
    if prioA: k("s_setprio 0")
    st(3)
    while bar <= 16:
        vm = {12: 17, 13: 17, 14: 17, 15: 8, 16: 0}.get(bar)
        if vm is not None: k(f"s_waitcnt vmcnt({vm})")
        k("s_barrier")
        if bar + 4 <= 17: dma(bar + 4)
        bar += 1
    k(f"v_and_b32 v7, 31, v1\nv_lshlrev_b32 v8, 3, v7\nv_lshrrev_b32 v9, 5, v1\nv_lshl_add_u32 v8, v9, 10, v8")
    k(f"s_add_u32 s43, s42, 4096\ns_add_u32 s50, s42, 8192\ns_add_u32 s51, s42, 12288\ns_mov_b32 s52, 0x40000")
    PL = 104
    k(f"{name}_poll:")
    for q in range(8):
        k(f"buffer_load_dwordx2 {vr(PL+2*q,2)}, v8, {ws}, s{[42,43,50,51][q>>1]} offen offset:{2048*(q&1)} sc1")
    k("s_waitcnt vmcnt(0)")
    k(f"v_max3_u32 v9, v{PL+1}, v{PL+3}, v{PL+5}\nv_max3_u32 v10, v{PL+7}, v{PL+9}, v{PL+11}\nv_max3_u32 v9, v9, v{PL+13}, v{PL+15}\nv_max_u32 v9, v9, v10")
    k(f"v_cmp_eq_u32 vcc, -1, v9\ns_sub_u32 s52, s52, 1\ns_cbranch_vccz {name}_got\ns_cmp_eq_u32 s52, 0\ns_cbranch_scc1 {name}_got\ns_sleep 2\ns_branch {name}_poll")
    k(f"{name}_got:")
    st(4)
    for q in (0, 4, 8, 12): k(f"v_pk_add_f32 {vr(PL+q,2)}, {vr(PL+q,2)}, {vr(PL+q+2,2)}")
    k(f"v_pk_add_f32 {vr(PL,2)}, {vr(PL,2)}, {vr(PL+4,2)}\nv_pk_add_f32 {vr(PL+8,2)}, {vr(PL+8,2)}, {vr(PL+12,2)}\nv_pk_add_f32 {vr(PL,2)}, {vr(PL,2)}, {vr(PL+8,2)}")
    k(f"v_mov_b32 v{PL+2}, v{PL}\nv_mov_b32 v{PL+3}, v{PL+1}\nv_permlane32_swap_b32 v{PL+2}, v{PL}\nv_permlane32_swap_b32 v{PL+3}, v{PL+1}\nv_pk_add_f32 {vr(PL,2)}, {vr(PL,2)}, {vr(PL+2,2)}")
    finish_stats(PL, 2304, 9, 10)
    k(f"v_mul_f32 v10, v10, v9\nv_sub_f32 v10, 0, v10\ns_lshl_b32 s38, s{sW}, 8\ns_add_u32 s38, s38, {X_BASE}\nv_lshl_add_u32 v8, v7, 2, s38")
    k("ds_write_b32 v8, v9\nds_write_b32 v8, v10 offset:128")
    NB = 120
    for tt in range(2): k(f"ds_read_b128 {vr(RR+4*tt,4)}, v15 offset:{64*tt}\nds_read_b128 {vr(NB+4*tt,4)}, v15 offset:{128+64*tt}")
    k(f"s_lshl_b32 s42, s{sJ}, 6\ns_lshl_b32 s38, s{sI}, 2\ns_add_u32 s42, s42, s38\ns_add_u32 s42, s42, s{sLW}\ns_mul_i32 s42, s42, 9216\ns_add_u32 s42, s42, {WS_Z2}")
    k("s_waitcnt lgkmcnt(0)")
    P = 128
    for ft in range(9):
        o = P + 4 * ft
        for tt in range(2):
            a = cA.acc(tt, ft)
            for h in range(2): k(f"v_pk_fma_f32 {vr(a+2*h,2)}, {vr(a+2*h,2)}, {vr(RR+4*tt+2*h,2)}, {vr(NB+4*tt+2*h,2)}")
        for tt in range(2):
            a = cA.acc(tt, ft)
            for h in range(2): k(f"v_cvt_pk_bf16_f32 v{o+2*tt+h}, v{a+2*h}, v{a+2*h+1}")
        k(f"v_permlane32_swap_b32 v{o}, v{o+2}\nv_permlane32_swap_b32 v{o+1}, v{o+3}\nv_permlane16_swap_b32 v{o}, v{o+2}\nv_permlane16_swap_b32 v{o+1}, v{o+3}")
        k(f"buffer_store_dwordx4 {vr(o,4)}, v{vDF}, {ws}, s42 offen offset:{(ft%4)*1024}")
        if ft % 4 == 3: k("s_add_u32 s42, s42, 4096")
    st.flush(6, sW, SRD_WS, 3)
    k(f"{name}_end:\ns_endpgm")
    return k
if __name__ == "__main__":
    ks = [k4(stamps=True)]
    open("k4t.s", "w").write(build(ks))
    for q in ks: print(q.name, q.stats, q.nops, len(q.lines))
```

```python
from common import *
def unit_offsets(k, vD, NF, coefs, const, stride, t0=11, stmp=39):
    CH = 2 * NF
    for i in range(NF):
        k(f"v_add_u32 v{t0}, {64*i}, v1")
        vdiv(k, t0 + 1, t0 + 2, t0, CH, 32 * CH)
        vrowmap(k, vD + i, t0 + 1, coefs, const, stride, t0 + 3, stmp)
        k(f"v_lshl_add_u32 v{vD+i}, v{t0+2}, 4, v{vD+i}")
def unit_issue(k, vD, NF, srdW, sOff, sLds):
    for i in range(NF):
        k(f"s_add_u32 m0, s{sLds}, {1024*i}")
        k(f"buffer_load_dwordx4 v{vD+i}, {S4(srdW)}, s{sOff} offen lds")
def unit_read(k, vF, NF, sLds, t0=11):
    rb = 32 * NF
    k(f"v_lshrrev_b32 v{t0}, 2, v1\nv_mul_u32_u24 v{t0}, {rb}, v{t0}\nv_and_b32 v{t0+1}, 3, v1\nv_lshl_add_u32 v{t0}, v{t0+1}, 3, v{t0}\nv_add_u32 v{t0}, s{sLds}, v{t0}")
    for ft in range(NF):
        for hh in range(2):
            k(f"ds_read_b64_tr_b16 {vr(vF+4*ft+2*hh,2)}, v{t0} offset:{16*hh*rb + 32*ft}")
def unit_store(k, vF, NF, vLane16, srdWS, sDst):
    for ft in range(NF):
        k(f"buffer_store_dwordx4 {vr(vF+4*ft,4)}, v{vLane16}, {S4(srdWS)}, s{sDst} offen offset:{(ft%4)*1024}")
        if ft % 4 == 3 and ft + 1 < NF: k(f"s_add_u32 s{sDst}, s{sDst}, 4096")
```

```python
from asmgen import *
from layout import *

def srd(k, s, base_lo, off, size):
    if off:
        k(f"s_add_u32 s{s}, s{base_lo}, {off}\ns_addc_u32 s{s+1}, s{base_lo+1}, 0")
    else:
        k(f"s_mov_b32 s{s}, s{base_lo}\ns_mov_b32 s{s+1}, s{base_lo+1}")
    k(f"s_mov_b32 s{s+2}, {size}\ns_mov_b32 s{s+3}, 0x20000")
def S4(s): return f"s[{s}:{s+3}]"

class Stamps:
    def __init__(self, k, on): self.k, self.on = k, on
    def __call__(self, idx):
        if self.on == "dbg":
            if idx == 0: self.k("s_memrealtime s[96:97]\ns_load_dwordx2 s[92:93], s[0:1], 72")
            return
        if not self.on: return
        self.k(f"s_memtime s[{80+2*idx}:{81+2*idx}]")
        if idx == 0: self.k("s_memrealtime s[96:97]")
    def flush(self, n, wave_s, srd_ws, kidx):
        if not self.on: return
        k = self.k
        if self.on == "dbg":
            k("s_waitcnt vmcnt(0)\ns_memrealtime s[98:99]\ns_waitcnt lgkmcnt(0)")
            k(f"s_sub_u32 s84, s92, {512*kidx}\ns_subb_u32 s85, s93, 0\ns_mov_b32 s86, 256\ns_mov_b32 s87, 0x20000")
            k(f"s_mov_b64 exec, 1\nv_mov_b32 v1, {8*kidx}\ns_not_b32 s96, s96\nv_mov_b32 v2, s96\nv_mov_b32 v3, s98")
            k("buffer_atomic_umax v2, v1, s[84:87], 0 offen\nbuffer_atomic_umax v3, v1, s[84:87], 0 offen offset:4")
            return
        k("s_waitcnt vmcnt(0)")
        self(n - 1)
        k("s_memrealtime s[98:99]\ns_waitcnt lgkmcnt(0)")
        k(f"s_lshl_b32 s78, s2, 3\ns_add_u32 s78, s78, s{wave_s}\ns_lshl_b32 s78, s78, 5\ns_add_u32 s78, s78, {WS_DBG + kidx * 65536}")
        k("s_mov_b64 exec, -1\nv_mov_b32 v1, s78")
        for i in range(1, n):
            k(f"s_sub_u32 s79, s{80+2*i}, s80\nv_mov_b32 v2, s79\nbuffer_store_dword v2, v1, {S4(srd_ws)}, 0 offen offset:{4*i}")
        k(f"v_mov_b32 v2, s96\nbuffer_store_dword v2, v1, {S4(srd_ws)}, 0 offen offset:24")
        k(f"v_mov_b32 v2, s98\nbuffer_store_dword v2, v1, {S4(srd_ws)}, 0 offen offset:28")

def magic(d, maxc):
    for sh in range(8, 24):
        m = -(-(1 << sh) // d)
        if m * maxc < (1 << 32) and m < (1 << 24) and all((c * m) >> sh == c // d for c in range(maxc + 1)): return m, sh
    raise ValueError
def vdiv(k, vq, vrem, vc, d, maxc):
    m, sh = magic(d, maxc)
    k(f"v_mul_u32_u24 v{vq}, {m}, v{vc}\nv_lshrrev_b32 v{vq}, {sh}, v{vq}")
    if vrem is not None:
        k(f"v_mul_u32_u24 v{vrem}, {d}, v{vq}\nv_sub_u32 v{vrem}, v{vc}, v{vrem}")
def vrowmap(k, vdst, vp, coefs, const, scale, vtmp, stmp):
    fields = []
    b = 0
    while b < len(coefs):
        e = b + 1
        while e < len(coefs) and coefs[e] == coefs[b] << (e - b): e += 1
        fields.append((b, e - b, coefs[b])); b = e
    first = True
    for (b, n, c) in fields:
        src = vp
        if not (b == 0 and n == len(coefs)):
            k(f"v_bfe_u32 v{vtmp}, v{vp}, {b}, {n}"); src = vtmp
        if first:
            k(f"v_mul_u32_u24 v{vdst}, {c*scale}, v{src}")
            first = False
        else:
            k(f"s_mov_b32 s{stmp}, {c*scale}\nv_mad_u32_u24 v{vdst}, v{src}, s{stmp}, v{vdst}")
    if const: k(f"v_add_u32 v{vdst}, {const*scale}, v{vdst}")

def spread(n_items, n_gaps):
    out = []
    acc = 0
    for g in range(n_gaps):
        tgt = -(-n_items * (g + 1) // n_gaps)
        out.append(tgt - acc); acc = tgt
    return out

class Cons:
    def __init__(self, k, NT, NF, KB, ACC, FR0, orient, reads, rdgaps=None):
        self.k, self.NT, self.NF, self.KB, self.ACC, self.orient, self.readsfn = k, NT, NF, KB, ACC, orient, reads
        self.per = 4 * KB * (NT + NF)
        self.FR = [FR0, FR0 + self.per]
        self.end = FR0 + 2 * self.per
        n = KB * NT * NF
        self.rdgaps = rdgaps or max(1, n - max(1, n // 3))
    def T(self, buf, kb, tt): return self.FR[buf] + 4 * (kb * (self.NT + self.NF) + tt)
    def W(self, buf, kb, ft): return self.FR[buf] + 4 * (kb * (self.NT + self.NF) + self.NT + ft)
    def acc(self, tt, ft): return self.ACC + (tt * self.NF + ft) * 4
    def reads(self, st, blk, buf): return self.readsfn(self, st, blk, buf)
    def block(self, buf, rd, extra=(), zero_c=False):
        k = self.k
        rd = list(rd); extra = list(extra)
        n = self.KB * self.NT * self.NF
        cnt = spread(len(rd), self.rdgaps) + [0] * n
        e0 = max(0, n - len(extra) - 1) if False else 0
        ecnt = spread(len(extra), n) if extra else [0] * n
        i = 0
        for kb in range(self.KB):
            for ft in range(self.NF):
                for tt in range(self.NT):
                    a = self.acc(tt, ft)
                    w, t = vr(self.W(buf, kb, ft), 4), vr(self.T(buf, kb, tt), 4)
                    A, B = (w, t) if self.orient == "W" else (t, w)
                    c = "0" if (zero_c and kb == 0) else vr(a, 4)
                    k(f"v_mfma_f32_16x16x32_bf16 {vr(a,4)}, {A}, {B}, {c}")
                    for _ in range(cnt[i]): k(rd.pop(0))
                    for _ in range(ecnt[i]): k(extra.pop(0))
                    i += 1
        assert not rd and not extra
    def first_reads(self, st):
        for r in self.reads(st, 0, 0): self.k(r)
    def stage(self, s, last, vm=None, extraA=(), extraB=(), zero_c=False, barrier=True, post_barrier=()):
        k = self.k
        k("s_waitcnt lgkmcnt(0)")
        self.block(0, self.reads(s, 1, 1), extraA, zero_c)
        k("s_waitcnt lgkmcnt(0)" + (f" vmcnt({vm})" if vm is not None else ""))
        if barrier: k("s_barrier")
        for x in post_barrier: k(x)
        self.block(1, [] if last else self.reads(s + 1, 0, 0), extraB)

def prologue(k, name, nwg, sW, st):
    k(f"s_cmp_ge_u32 s2, {nwg}\ns_cbranch_scc1 {name}_end")
    st(0)
def wave_lane(k, sW):
    k("v_lshrrev_b32 v2, 6, v0\nv_and_b32 v1, 63, v0")
    k(f"v_readfirstlane_b32 s{sW}, v2")

T_SLOT, W_SLOT = 16384, 18432
W_BASE = 65536
X_BASE = W_BASE + 4 * W_SLOT
```

```python
import sys
from common import *
from k1 import k1
from k2 import k2
from k36 import k36
from k4 import k4
from k5n import k5
from mega import mega
HDR = open("sequential_preLN__sliding_block__mixer_gmlp__prompt.s.ref").read().split("; Override launch")[0]
HDR = "\n".join(l[2:] for l in HDR.strip().split("\n"))
def empty(name):
    k = K(name, 1, 64); k("s_endpgm"); return k
def make(stamps=False, nempty=0, twice=False, o1={}, o2={}, om={}):
    ks = [k1(stamps=stamps, **o1), k2(stamps=stamps, **o2), k36(3, stamps=stamps), mega("456", stamps=stamps, **om)]
    la = list(ks) * (2 if twice else 1)
    if nempty:
        e = empty("e_kernel"); ks.append(e); la += [e] * nempty
    return build(ks, la, header=HDR), ks
if __name__ == "__main__":
    t, ks = make(True); open("allt.s", "w").write(t)
    t, ks = make(False); open("sequential_preLN__sliding_block__mixer_gmlp__prompt.s", "w").write(t)
    for q in ks: print(q.name, q.stats, q.nops, len(q.lines))
    t, ks = make("trace"); open("alltr.s", "w").write(t)
```

```python
from asmgen import *
from layout import *

def srd(k, s, base_lo, off, size):
    if off:
        k(f"s_add_u32 s{s}, s{base_lo}, {off}\ns_addc_u32 s{s+1}, s{base_lo+1}, 0")
    else:
        k(f"s_mov_b32 s{s}, s{base_lo}\ns_mov_b32 s{s+1}, s{base_lo+1}")
    k(f"s_mov_b32 s{s+2}, {size}\ns_mov_b32 s{s+3}, 0x20000")
def S4(s): return f"s[{s}:{s+3}]"

class Stamps:
    def __init__(self, k, on): self.k, self.on = k, on
    def tr(self, idx, base=56):
        if self.on == "trace": self.k(f"s_memtime s[{base+2*idx}:{base+2*idx+1}]")
    def trflush(self, n, wave_s, srd_ws, kidx, base=56):
        if self.on != "trace": return
        k = self.k
        k("s_waitcnt vmcnt(0) lgkmcnt(0)")
        k(f"s_lshl_b32 s55, s2, 3\ns_add_u32 s55, s55, s{wave_s}\ns_lshl_b32 s55, s55, 7\ns_add_u32 s55, s55, {WS_DBG + (1 << 20) + kidx * (1 << 18)}")
        k("s_mov_b64 exec, -1\nv_mov_b32 v1, s55")
        for i in range(n):
            k(f"s_sub_u32 s55, s{base+2*i}, s{base}\nv_mov_b32 v2, s55\nbuffer_store_dword v2, v1, {S4(srd_ws)}, 0 offen offset:{4*i}")
        k(f"v_mov_b32 v2, s96\nbuffer_store_dword v2, v1, {S4(srd_ws)}, 0 offen offset:124")
    def __call__(self, idx):
        if self.on == "trace":
            if idx == 0: self.tr(0); self.k("s_memrealtime s[96:97]")
            return
        if self.on == "dbg":
            if idx == 0: self.k("s_memrealtime s[96:97]\ns_load_dwordx2 s[92:93], s[0:1], 72")
            return
        if not self.on: return
        self.k(f"s_memtime s[{80+2*idx}:{81+2*idx}]")
        if idx == 0: self.k("s_memrealtime s[96:97]")
    def flush(self, n, wave_s, srd_ws, kidx):
        if not self.on or self.on == "trace": return
        k = self.k
        if self.on == "dbg":
            k("s_waitcnt vmcnt(0)\ns_memrealtime s[98:99]\ns_waitcnt lgkmcnt(0)")
            k(f"s_sub_u32 s84, s92, {512*kidx}\ns_subb_u32 s85, s93, 0\ns_mov_b32 s86, 256\ns_mov_b32 s87, 0x20000")
            k(f"s_mov_b64 exec, 1\nv_mov_b32 v1, {8*kidx}\ns_not_b32 s96, s96\nv_mov_b32 v2, s96\nv_mov_b32 v3, s98")
            k("buffer_atomic_umax v2, v1, s[84:87], 0 offen\nbuffer_atomic_umax v3, v1, s[84:87], 0 offen offset:4")
            return
        k("s_waitcnt vmcnt(0)")
        self(n - 1)
        k("s_memrealtime s[98:99]\ns_waitcnt lgkmcnt(0)")
        k(f"s_lshl_b32 s78, s2, 3\ns_add_u32 s78, s78, s{wave_s}\ns_lshl_b32 s78, s78, 5\ns_add_u32 s78, s78, {WS_DBG + kidx * 65536}")
        k("s_mov_b64 exec, -1\nv_mov_b32 v1, s78")
        for i in range(1, n):
            k(f"s_sub_u32 s79, s{80+2*i}, s80\nv_mov_b32 v2, s79\nbuffer_store_dword v2, v1, {S4(srd_ws)}, 0 offen offset:{4*i}")
        k(f"v_mov_b32 v2, s96\nbuffer_store_dword v2, v1, {S4(srd_ws)}, 0 offen offset:24")
        k(f"v_mov_b32 v2, s98\nbuffer_store_dword v2, v1, {S4(srd_ws)}, 0 offen offset:28")

def magic(d, maxc):
    for sh in range(8, 24):
        m = -(-(1 << sh) // d)
        if m * maxc < (1 << 32) and m < (1 << 24) and all((c * m) >> sh == c // d for c in range(maxc + 1)): return m, sh
    raise ValueError
def vdiv(k, vq, vrem, vc, d, maxc):
    m, sh = magic(d, maxc)
    k(f"v_mul_u32_u24 v{vq}, {m}, v{vc}\nv_lshrrev_b32 v{vq}, {sh}, v{vq}")
    if vrem is not None:
        k(f"v_mul_u32_u24 v{vrem}, {d}, v{vq}\nv_sub_u32 v{vrem}, v{vc}, v{vrem}")
def vrowmap(k, vdst, vp, coefs, const, scale, vtmp, stmp):
    fields = []
    b = 0
    while b < len(coefs):
        e = b + 1
        while e < len(coefs) and coefs[e] == coefs[b] << (e - b): e += 1
        fields.append((b, e - b, coefs[b])); b = e
    first = True
    for (b, n, c) in fields:
        src = vp
        if not (b == 0 and n == len(coefs)):
            k(f"v_bfe_u32 v{vtmp}, v{vp}, {b}, {n}"); src = vtmp
        if first:
            k(f"v_mul_u32_u24 v{vdst}, {c*scale}, v{src}")
            first = False
        else:
            k(f"s_mov_b32 s{stmp}, {c*scale}\nv_mad_u32_u24 v{vdst}, v{src}, s{stmp}, v{vdst}")
    if const: k(f"v_add_u32 v{vdst}, {const*scale}, v{vdst}")

def spread(n_items, n_gaps):
    out = []
    acc = 0
    for g in range(n_gaps):
        tgt = -(-n_items * (g + 1) // n_gaps)
        out.append(tgt - acc); acc = tgt
    return out

class Cons:
    def __init__(self, k, NT, NF, KB, ACC, FR0, orient, reads, rdgaps=None):
        self.k, self.NT, self.NF, self.KB, self.ACC, self.orient, self.readsfn = k, NT, NF, KB, ACC, orient, reads
        self.per = 4 * KB * (NT + NF)
        self.FR = [FR0, FR0 + self.per]
        self.end = FR0 + 2 * self.per
        n = KB * NT * NF
        self.rdgaps = rdgaps or max(1, n - max(1, n // 3))
    def T(self, buf, kb, tt): return self.FR[buf] + 4 * (kb * (self.NT + self.NF) + tt)
    def W(self, buf, kb, ft): return self.FR[buf] + 4 * (kb * (self.NT + self.NF) + self.NT + ft)
    def acc(self, tt, ft): return self.ACC + (tt * self.NF + ft) * 4
    def reads(self, st, blk, buf): return self.readsfn(self, st, blk, buf)
    def block(self, buf, rd, extra=(), zero_c=False):
        k = self.k
        rd = list(rd); extra = list(extra)
        n = self.KB * self.NT * self.NF
        cnt = spread(len(rd), self.rdgaps) + [0] * n
        e0 = max(0, n - len(extra) - 1) if False else 0
        ecnt = spread(len(extra), n) if extra else [0] * n
        i = 0
        for kb in range(self.KB):
            for ft in range(self.NF):
                for tt in range(self.NT):
                    a = self.acc(tt, ft)
                    w, t = vr(self.W(buf, kb, ft), 4), vr(self.T(buf, kb, tt), 4)
                    A, B = (w, t) if self.orient == "W" else (t, w)
                    c = "0" if (zero_c and kb == 0) else vr(a, 4)
                    k(f"v_mfma_f32_16x16x32_bf16 {vr(a,4)}, {A}, {B}, {c}")
                    for _ in range(cnt[i]): k(rd.pop(0))
                    for _ in range(ecnt[i]): k(extra.pop(0))
                    i += 1
        assert not rd and not extra
    def first_reads(self, st):
        for r in self.reads(st, 0, 0): self.k(r)
    def stage(self, s, last, vm=None, extraA=(), extraB=(), zero_c=False, barrier=True, post_barrier=None):
        k = self.k
        k("s_waitcnt lgkmcnt(0)")
        self.block(0, self.reads(s, 1, 1), extraA, zero_c)
        k("s_waitcnt lgkmcnt(0)" + (f" vmcnt({vm})" if vm is not None else ""))
        if barrier: k("s_barrier")
        if post_barrier: post_barrier()
        self.block(1, [] if last else self.reads(s + 1, 0, 0), extraB)

def prologue(k, name, nwg, sW, st):
    k(f"s_cmp_ge_u32 s2, {nwg}\ns_cbranch_scc1 {name}_end")
    st(0)
def wave_lane(k, sW):
    k("v_lshrrev_b32 v2, 6, v0\nv_and_b32 v1, 63, v0")
    k(f"v_readfirstlane_b32 s{sW}, v2")

T_SLOT, W_SLOT = 16384, 18432
W_BASE = 65536
X_BASE = W_BASE + 4 * W_SLOT
```

```python
from common import *
from k1 import w_dma_setup, tr_read_setup, f2u
import math
C0 = -2.0 * math.sqrt(2.0 / math.pi) * math.log2(math.e)
C1 = C0 * 0.044715

def ij_map(k, sI, sJ, li=3):
    if li != 3:
        xi = 4 - li
        k(f"s_bfe_u32 s38, s2, {(xi << 16) | 0}\ns_lshl_b32 s38, s38, {li}\ns_bfe_u32 s39, s2, {(li << 16) | 3}\ns_add_u32 s{sI}, s38, s39")
        k(f"s_bfe_u32 s38, s2, {((3 - xi) << 16) | xi}\ns_lshl_b32 s38, s38, {5 - li}\ns_lshr_b32 s39, s2, {3 + li}\ns_add_u32 s{sJ}, s38, s39")
        return
    k(f"s_and_b32 s38, s2, 1\ns_lshl_b32 s38, s38, 3\ns_bfe_u32 s39, s2, 0x30003\ns_add_u32 s{sI}, s38, s39")
    k(f"s_bfe_u32 s38, s2, 0x20001\ns_lshl_b32 s38, s38, 2\ns_lshr_b32 s39, s2, 6\ns_add_u32 s{sJ}, s38, s39")

def gelu4(a, rs, rsel, sC, t):
    o = []
    for h in range(2): o.append(f"v_pk_mul_f32 {vr(a+2*h,2)}, {vr(a+2*h,2)}, {vr(rs[h],2)}{rsel}")
    for h in range(2): o.append(f"v_pk_mul_f32 {vr(t+2*h,2)}, {vr(a+2*h,2)}, {vr(a+2*h,2)}")
    for h in range(2): o.append(f"v_pk_fma_f32 {vr(t+2*h,2)}, {vr(t+2*h,2)}, s[{sC}:{sC+1}], s[{sC}:{sC+1}] op_sel:[0,0,1] op_sel_hi:[1,0,1]")
    for h in range(2): o.append(f"v_pk_mul_f32 {vr(t+2*h,2)}, {vr(t+2*h,2)}, {vr(a+2*h,2)}")
    for e in range(4): o.append(f"v_exp_f32 v{t+e}, v{t+e}")
    for h in range(2): o.append(f"v_pk_add_f32 {vr(t+2*h,2)}, {vr(t+2*h,2)}, 1.0 op_sel_hi:[1,0]")
    for e in range(4): o.append(f"v_rcp_f32 v{t+e}, v{t+e}")
    for h in range(2): o.append(f"v_pk_mul_f32 {vr(a+2*h,2)}, {vr(a+2*h,2)}, {vr(t+2*h,2)}")
    return o
def interleave(x, y):
    o = []
    for i in range(max(len(x), len(y))):
        if i < len(x): o.append(x[i])
        if i < len(y): o.append(y[i])
    return o

def k4(name="k4_kernel", stamps=False, prioA=1, chunks=(6, 6, 6)):
    k = K(name, 256, 512, lds=X_BASE + 4096)
    st = Stamps(k, stamps)
    sW, sI, sJ, sLW = 20, 21, 22, 23
    SRD_W, SRD_WS = 12, 16
    sT, sT2, sWo, sMT, sMW, sMW5, sE, sWs, sC = 28, 29, 30, 31, 32, 33, 34, 44, 46
    sT0, sCol1 = 48, 49
    OOB = 0x40000000
    ws = S4(SRD_WS)
    prologue(k, name, 256, sW, st)
    k(f"s_load_dwordx2 s[40:41], s[0:1], {KA_WS}")
    wave_lane(k, sW)
    ij_map(k, sI, sJ)
    k(f"s_and_b32 s{sLW}, s{sW}, 3")
    vDF, vT, vWa, RR = 3, 4, 5, 176
    ACC, FR0 = 16, 88
    TMP = 184
    sF0, sF5 = 49, 53
    def dma_setup():
        k(f"v_lshlrev_b32 v{vDF}, 4, v1")
        k(f"s_lshl_b32 s{sT0}, s{sI}, 2\ns_add_u32 s{sT0}, s{sT0}, s{sLW}\ns_mul_i32 s{sT0}, s{sT0}, {2*18432}\ns_add_u32 s{sT0}, s{sT0}, {WS_H}")
        k(f"s_lshl_b32 s{sMT}, s{sLW}, 12\ns_add_u32 s{sMW}, s{sMT}, {W_BASE}")
        k(f"s_mul_i32 s38, s{sJ}, {18*9216}\ns_add_u32 s38, s38, {WS_WINF}\ns_add_u32 s{sF0}, s38, s{sMT}")
        k(f"s_and_b32 s39, s{sLW}, 1\ns_lshl_b32 s39, s39, 10\ns_add_u32 s{sMW5}, s39, {W_BASE+16384}\ns_add_u32 s{sF5}, s38, s39")
        k(f"s_cmp_lt_u32 s{sLW}, 2\ns_cselect_b64 s[{sE}:{sE+1}], -1, 0\ns_cselect_b64 s[{sE+2}:{sE+3}], 0, -1")
    def dma(gs):
        s, slot = gs % 9, gs % 4
        wo = (16 * 18 * 9216 if gs < 9 else 0) + 18432 * s
        k(f"s_add_u32 s{sT}, s{sT0}, {2048*s}\ns_add_u32 s{sT2}, s{sT0}, {2048*s + 18432 - 2048}\ns_add_u32 m0, s{sMT}, {slot*T_SLOT}")
        k(f"s_add_u32 s{sWo}, s{sF0}, {wo}")
        for q in range(4):
            k(f"buffer_load_dwordx4 v{vDF}, {ws}, s{sT if q < 2 else sT2} offen offset:{q*1024} lds")
        k(f"s_add_u32 m0, s{sMW}, {slot*W_SLOT}\ns_add_u32 s{sT}, s{sF5}, {wo + 16384}")
        for n in range(4):
            k(f"buffer_load_dwordx4 v{vDF}, {ws}, s{sWo} offen offset:{n*1024} lds")
        e = sE + 2 * (gs & 1)
        k(f"s_add_u32 m0, s{sMW5}, {slot*W_SLOT}\ns_mov_b64 exec, s[{e}:{e+1}]")
        k(f"buffer_load_dwordx4 v{vDF}, {ws}, s{sT} offen lds\ns_mov_b64 exec, -1")
    def cons_setup():
        k(f"v_lshlrev_b32 v{vWa}, 4, v1\nv_add_u32 v{vWa}, {W_BASE}, v{vWa}\nv_add_u32 v{vWa+1}, {3*W_SLOT}, v{vWa}")
        k(f"s_lshl_b32 s38, s{sLW}, 12\nv_lshl_add_u32 v{vT}, v1, 4, s38")
    def reads(c, gs, kk, buf):
        slot = gs % 4
        r = [f"ds_read_b128 {vr(c.T(buf,0,tt),4)}, v{vT} offset:{slot*T_SLOT + tt*2048 + kk*1024}" for tt in range(2)]
        for ft in range(9):
            o = (slot if slot < 3 else 0) * W_SLOT + kk * 9216 + ft * 1024
            r.append(f"ds_read_b128 {vr(c.W(buf,0,ft),4)}, v{vWa + (1 if slot == 3 else 0)} offset:{o}")
        return r
    HP, CS, CS2 = 88, 104, 140
    def misc_loads(isA):
        k(f"v_and_b32 v7, 31, v1\nv_lshlrev_b32 v8, 6, v7")
        k(f"s_lshl_b32 s38, s{sI}, 2\ns_add_u32 s38, s38, s{sLW}\ns_lshl_b32 s38, s38, 11\ns_add_u32 s38, s38, {WS_HST}")
        for q in range(4): k(f"buffer_load_dwordx4 {vr(HP+4*q,4)}, v8, {ws}, s38 offen offset:{16*q}")
        k(f"s_mul_i32 s38, s{sJ}, 576\ns_add_u32 s38, s38, {WS_CS + (2304*4 if isA else 0)}")
        if isA:
            k("v_and_b32 v8, 15, v1\nv_lshlrev_b32 v8, 2, v8")
            k(f"s_add_u32 s39, s38, {4608*4}")
            for ft in range(9): k(f"buffer_load_dword v{CS+ft}, v8, {ws}, s38 offen offset:{64*ft}\nbuffer_load_dword v{CS2+ft}, v8, {ws}, s39 offen offset:{64*ft}")
        else:
            k("v_lshrrev_b32 v8, 4, v1\nv_lshlrev_b32 v8, 4, v8")
            k(f"s_add_u32 s39, s38, {4608*4}")
            for ft in range(9): k(f"buffer_load_dwordx4 {vr(CS+4*ft,4)}, v8, {ws}, s38 offen offset:{64*ft}\nbuffer_load_dwordx4 {vr(CS2+4*ft,4)}, v8, {ws}, s39 offen offset:{64*ft}")
    def finish_stats(S_, n, vR, vM):
        k(f"s_mov_b32 s38, {f2u(1.0/n)}\nv_mul_f32 v{vM}, s38, v{S_}\nv_mul_f32 v{vR}, s38, v{S_+1}\nv_fma_f32 v{vR}, -v{vM}, v{vM}, v{vR}")
        k(f"v_max_f32 v{vR}, 0, v{vR}\nv_add_f32 v{vR}, {f2u(1e-5)}, v{vR}\nv_rsq_f32 v{vR}, v{vR}")
    def c_init(isA, c):
        for q in range(0, 10 if isA else 36, 2): k(f"v_pk_add_f32 {vr(CS+q,2)}, {vr(CS+q,2)}, {vr(CS2+q,2)}")
        for q in (2, 6, 10, 14): k(f"v_pk_add_f32 {vr(HP+q-2,2)}, {vr(HP+q-2,2)}, {vr(HP+q,2)}")
        k(f"v_pk_add_f32 {vr(HP,2)}, {vr(HP,2)}, {vr(HP+4,2)}\nv_pk_add_f32 {vr(HP+8,2)}, {vr(HP+8,2)}, {vr(HP+12,2)}\nv_pk_add_f32 {vr(HP,2)}, {vr(HP,2)}, {vr(HP+8,2)}")
        finish_stats(HP, 576, 9, 10)
        k(f"v_sub_f32 v10, 0, v10\ns_lshl_b32 s38, s{sW}, 8\ns_add_u32 s38, s38, {X_BASE}\nv_lshl_add_u32 v8, v7, 2, s38")
        k("ds_write_b32 v8, v9\nds_write_b32 v8, v10 offset:128")
        NM = HP + 4
        if isA:
            k("v_lshrrev_b32 v8, 4, v1\nv_lshl_add_u32 v15, v8, 4, s38")
            for tt in range(2): k(f"ds_read_b128 {vr(RR+4*tt,4)}, v15 offset:{64*tt}\nds_read_b128 {vr(NM+4*tt,4)}, v15 offset:{128+64*tt}")
            k("s_waitcnt lgkmcnt(0)")
            for ft in range(9):
                cp, hs = CS + (ft & ~1), ft & 1
                for tt in range(2):
                    for h in range(2):
                        k(f"v_pk_mul_f32 {vr(c.acc(tt,ft)+2*h,2)}, {vr(NM+4*tt+2*h,2)}, {vr(cp,2)} op_sel:[0,{hs}] op_sel_hi:[1,{hs}]")
        else:
            k("v_and_b32 v8, 15, v1\nv_lshl_add_u32 v8, v8, 2, s38")
            k(f"ds_read2_b32 {vr(RR,2)}, v8 offset0:0 offset1:16\nds_read2_b32 {vr(NM,2)}, v8 offset0:32 offset1:48")
            k("s_waitcnt lgkmcnt(0)")
            for ft in range(9):
                for tt in range(2):
                    for h in range(2):
                        k(f"v_pk_mul_f32 {vr(c.acc(tt,ft)+2*h,2)}, {vr(CS+4*ft+2*h,2)}, {vr(NM,2)} op_sel:[0,{tt}] op_sel_hi:[1,{tt}]")
    k(f"s_mov_b32 s{sC}, {f2u(C1)}\ns_mov_b32 s{sC+1}, {f2u(C0)}")
    k(f"s_cmp_lt_u32 s{sW}, 4\ns_cbranch_scc1 {name}_A")
    cB = Cons(k, 2, 9, 1, ACC, FR0, "W", reads, rdgaps=11)
    dma_setup()
    k("s_waitcnt lgkmcnt(0)")
    srd(k, SRD_WS, 40, 0, WS_SIZE)
    for s in range(3): dma(s)
    cons_setup()
    k("s_waitcnt vmcnt(17)\ns_barrier")
    dma(3)
    misc_loads(False)
    for s in range(9):
        k(f"s_waitcnt vmcnt({39 if s < 2 else 17})\ns_barrier")
        if s == 8: cB.first_reads(9)
        st.tr(1 + 2 * s)
        dma(s + 4)
        st.tr(2 + 2 * s)
        if s == 2: c_init(False, cB)
    st(1)
    for gs in range(9, 18):
        vm = {9: 17, 10: 8, 11: 0}.get(gs)
        cB.stage(gs, gs == 17, vm=vm, barrier=(gs < 17))
    st(2)
    P = 88
    k(f"s_lshl_b32 s42, s{sI}, 4\ns_add_u32 s42, s42, s{sJ}\ns_lshl_b32 s42, s42, 2\ns_add_u32 s42, s42, s{sLW}\ns_mul_i32 s42, s42, 9216\ns_add_u32 s42, s42, {WS_Z1}")
    tiles = [(tt, ft) for tt in range(2) for ft in range(9)]
    for q in range(9):
        seqs = []
        for u in range(2):
            tt, ft = tiles[2 * q + u]
            a = cB.acc(tt, ft)
            sq = gelu4(a, [RR, RR], f" op_sel:[0,{tt}] op_sel_hi:[1,{tt}]", sC, TMP + 4 * u)
            sq += [f"v_cvt_pk_bf16_f32 v{P+4*q+2*u+h}, v{a+2*h}, v{a+2*h+1}" for h in range(2)]
            seqs.append(sq)
        for x in interleave(*seqs): k(x)
        k(f"buffer_store_dwordx4 {vr(P+4*q,4)}, v{vDF}, {ws}, s42 offen offset:{(q%4)*1024}")
        if q % 4 == 3: k("s_add_u32 s42, s42, 4096")
    st.tr(19); st.trflush(20, sW, SRD_WS, 3)
    st.flush(4, sW, SRD_WS, 3)
    k("s_endpgm")
    k(f"{name}_A:")
    cA = Cons(k, 2, 9, 1, ACC, FR0, "T", reads, rdgaps=11)
    k("s_waitcnt lgkmcnt(0)")
    srd(k, SRD_WS, 40, 0, WS_SIZE)
    misc_loads(True)
    cons_setup()
    dma_setup()
    k("s_waitcnt vmcnt(0)")
    c_init(True, cA)
    k("s_barrier")
    st(1)
    cA.first_reads(0)
    st.tr(1)
    for s in range(9): cA.stage(s, s == 8, post_barrier=(lambda s=s: st.tr(2 + s)))
    st(2)
    if prioA: k(f"s_setprio {prioA}")
    SUM, SQ = 88, 96
    tiles = [(tt, ft) for ft in range(9) for tt in range(2)]
    ti = 0
    bar = 9
    for ch in chunks:
        for q in range(ch // 2):
            seqs = []
            for u in range(2):
                tt, ft = tiles[ti]; ti += 1
                a = cA.acc(tt, ft)
                sq = gelu4(a, [RR + 4 * tt, RR + 4 * tt + 2], "", sC, TMP + 4 * u)
                for h in range(2):
                    if ft == 0:
                        sq.append(f"v_pk_mul_f32 {vr(SQ+4*tt+2*h,2)}, {vr(a+2*h,2)}, {vr(a+2*h,2)}")
                    else:
                        sq.append(f"v_pk_fma_f32 {vr(SQ+4*tt+2*h,2)}, {vr(a+2*h,2)}, {vr(a+2*h,2)}, {vr(SQ+4*tt+2*h,2)}")
                    if ft == 1:
                        sq.append(f"v_pk_add_f32 {vr(SUM+4*tt+2*h,2)}, {vr(a+2*h,2)}, {vr(cA.acc(tt,0)+2*h,2)}")
                    elif ft > 1:
                        sq.append(f"v_pk_add_f32 {vr(SUM+4*tt+2*h,2)}, {vr(SUM+4*tt+2*h,2)}, {vr(a+2*h,2)}")
                seqs.append(sq)
            for x in interleave(*seqs): k(x)
        if ti < 18:
            k("s_barrier"); st.tr(bar + 2); dma(bar + 4); bar += 1
    assert ti == 18
    Y, Z = 104, 112
    dm = "row_mask:0xf"
    for si, X in enumerate((SUM, SQ)):
        for r in range(4):
            k(f"v_add_f32_dpp v{Y+4*si+r}, v{X+r}, v{X+r} row_ror:8 {dm} bank_mask:0x3")
        for r in range(4):
            k(f"v_add_f32_dpp v{Y+4*si+r}, v{X+4+r}, v{X+4+r} row_ror:8 {dm} bank_mask:0xc")
    for si in range(2):
        for q in range(2): k(f"v_add_f32_dpp v{Z+2*si+q}, v{Y+4*si+q}, v{Y+4*si+q} row_shl:4 {dm} bank_mask:0x5")
    for si in range(2):
        for q in range(2): k(f"v_add_f32_dpp v{Z+2*si+q}, v{Y+4*si+2+q}, v{Y+4*si+2+q} row_shr:4 {dm} bank_mask:0xa")
    for perm in ("[1,0,3,2]", "[2,3,0,1]"):
        for e in range(4): k(f"v_add_f32_dpp v{Z+e}, v{Z+e}, v{Z+e} quad_perm:{perm} {dm} bank_mask:0xf")
    k("v_and_b32 v8, 1, v1\nv_cmp_eq_u32 vcc, 1, v8")
    k("v_bfe_u32 v9, v1, 3, 1\nv_lshl_add_u32 v8, v9, 4, v8\nv_lshrrev_b32 v9, 4, v1\nv_lshl_add_u32 v8, v9, 2, v8\nv_bfe_u32 v9, v1, 2, 1\nv_lshl_add_u32 v8, v9, 1, v8\nv_lshlrev_b32 v8, 3, v8")
    k(f"v_cndmask_b32 v{Y}, v{Z}, v{Z+1}, vcc\nv_cndmask_b32 v{Y+1}, v{Z+2}, v{Z+3}, vcc\nv_and_b32 v{Y+1}, 0x7fffffff, v{Y+1}")
    k(f"v_and_b32 v9, 2, v1\nv_cmp_eq_u32 vcc, 0, v9\nv_mov_b32 v9, {OOB}\nv_cndmask_b32 v8, v9, v8, vcc")
    k(f"s_lshl_b32 s42, s{sI}, 14\ns_lshl_b32 s38, s{sLW}, 8\ns_add_u32 s42, s42, s38\ns_add_u32 s42, s42, {WS_ZST}\ns_lshl_b32 s38, s{sJ}, 10\ns_add_u32 s38, s38, s42")
    k(f"buffer_store_dwordx2 {vr(Y,2)}, v8, {ws}, s38 offen sc1")
    if prioA: k("s_setprio 0")
    st(3)
    while bar <= 16:
        vm = {12: 17, 13: 17, 14: 17, 15: 8, 16: 0}.get(bar)
        if vm is not None: k(f"s_waitcnt vmcnt({vm})")
        k("s_barrier"); st.tr(bar + 2)
        if bar + 4 <= 17: dma(bar + 4)
        bar += 1
    k(f"v_and_b32 v7, 31, v1\nv_lshlrev_b32 v8, 3, v7\nv_lshrrev_b32 v9, 5, v1\nv_lshl_add_u32 v8, v9, 10, v8")
    k(f"s_add_u32 s43, s42, 4096\ns_add_u32 s50, s42, 8192\ns_add_u32 s51, s42, 12288\ns_mov_b32 s52, 0x40000")
    PL = 104
    k(f"{name}_poll:")
    for q in range(8):
        k(f"buffer_load_dwordx2 {vr(PL+2*q,2)}, v8, {ws}, s{[42,43,50,51][q>>1]} offen offset:{2048*(q&1)} sc1")
    k("s_waitcnt vmcnt(0)")
    k(f"v_max3_u32 v9, v{PL+1}, v{PL+3}, v{PL+5}\nv_max3_u32 v10, v{PL+7}, v{PL+9}, v{PL+11}\nv_max3_u32 v9, v9, v{PL+13}, v{PL+15}\nv_max_u32 v9, v9, v10")
    k(f"v_cmp_eq_u32 vcc, -1, v9\ns_sub_u32 s52, s52, 1\ns_cbranch_vccz {name}_got\ns_cmp_eq_u32 s52, 0\ns_cbranch_scc1 {name}_got\ns_sleep 2\ns_branch {name}_poll")
    k(f"{name}_got:")
    st(4)
    for q in (0, 4, 8, 12): k(f"v_pk_add_f32 {vr(PL+q,2)}, {vr(PL+q,2)}, {vr(PL+q+2,2)}")
    k(f"v_pk_add_f32 {vr(PL,2)}, {vr(PL,2)}, {vr(PL+4,2)}\nv_pk_add_f32 {vr(PL+8,2)}, {vr(PL+8,2)}, {vr(PL+12,2)}\nv_pk_add_f32 {vr(PL,2)}, {vr(PL,2)}, {vr(PL+8,2)}")
    k(f"v_mov_b32 v{PL+2}, v{PL}\nv_mov_b32 v{PL+3}, v{PL+1}\nv_permlane32_swap_b32 v{PL+2}, v{PL}\nv_permlane32_swap_b32 v{PL+3}, v{PL+1}\nv_pk_add_f32 {vr(PL,2)}, {vr(PL,2)}, {vr(PL+2,2)}")
    finish_stats(PL, 2304, 9, 10)
    k(f"v_mul_f32 v10, v10, v9\nv_sub_f32 v10, 0, v10\ns_lshl_b32 s38, s{sW}, 8\ns_add_u32 s38, s38, {X_BASE}\nv_lshl_add_u32 v8, v7, 2, s38")
    k("ds_write_b32 v8, v9\nds_write_b32 v8, v10 offset:128")
    NB = 120
    for tt in range(2): k(f"ds_read_b128 {vr(RR+4*tt,4)}, v15 offset:{64*tt}\nds_read_b128 {vr(NB+4*tt,4)}, v15 offset:{128+64*tt}")
    k(f"s_lshl_b32 s42, s{sJ}, 6\ns_lshl_b32 s38, s{sI}, 2\ns_add_u32 s42, s42, s38\ns_add_u32 s42, s42, s{sLW}\ns_mul_i32 s42, s42, 9216\ns_add_u32 s42, s42, {WS_Z2}")
    k("s_waitcnt lgkmcnt(0)")
    P = 128
    for ft in range(9):
        o = P + 4 * ft
        for tt in range(2):
            a = cA.acc(tt, ft)
            for h in range(2): k(f"v_pk_fma_f32 {vr(a+2*h,2)}, {vr(a+2*h,2)}, {vr(RR+4*tt+2*h,2)}, {vr(NB+4*tt+2*h,2)}")
        for tt in range(2):
            a = cA.acc(tt, ft)
            for h in range(2): k(f"v_cvt_pk_bf16_f32 v{o+2*tt+h}, v{a+2*h}, v{a+2*h+1}")
        k(f"v_permlane32_swap_b32 v{o}, v{o+2}\nv_permlane32_swap_b32 v{o+1}, v{o+3}\nv_permlane16_swap_b32 v{o}, v{o+2}\nv_permlane16_swap_b32 v{o+1}, v{o+3}")
        k(f"buffer_store_dwordx4 {vr(o,4)}, v{vDF}, {ws}, s42 offen offset:{(ft%4)*1024}")
        if ft % 4 == 3: k("s_add_u32 s42, s42, 4096")
    st.tr(19); st.trflush(20, sW, SRD_WS, 3)
    st.flush(6, sW, SRD_WS, 3)
    k(f"{name}_end:\ns_endpgm")
    return k
if __name__ == "__main__":
    ks = [k4(stamps="trace")]
    open("k4t.s", "w").write(build(ks))
    for q in ks: print(q.name, q.stats, q.nops, len(q.lines))
```

```python
from common import *
from k1 import t_dma_setup, t_swz_read_setup
from k4 import ij_map

def k5(name="k5_kernel", stamps=False, li=3, nomfma=False, lin=False, rot=None, lead=4, hitonly=False):
    k = K(name, 256, 512, lds=X_BASE)
    st = Stamps(k, stamps)
    NST = 32
    sW, sI, sJ, sLW = 20, 21, 22, 23
    SRD_T, SRD_WS, SRD_B = 8, 16, 24
    sT, sT2, sF, sF5, sMT, sMF, sMF5, sE, sCNT = 28, 29, 30, 31, 32, 33, 42, 34, 43
    ws = S4(SRD_WS)
    prologue(k, name, 256, sW, st)
    k(f"s_load_dwordx4 s[4:7], s[0:1], {KA_WSP}\ns_load_dwordx2 s[40:41], s[0:1], {KA_WS}")
    wave_lane(k, sW)
    if lin: k(f"s_lshr_b32 s{sI}, s2, 4\ns_and_b32 s{sJ}, s2, 15")
    else: ij_map(k, sI, sJ, li)
    k(f"s_cmp_lt_u32 s{sW}, 4\ns_cbranch_scc1 {name}_cons")
    vDT0, vDT1, vDF = 3, 4, 5
    k(f"s_sub_u32 s{sLW}, s{sW}, 4")
    t_dma_setup(k, vDT0, vDT1, 4096)
    k(f"v_subrev_u32 v{vDT1}, 1024, v{vDT1}\nv_lshlrev_b32 v{vDF}, 4, v1")
    k(f"s_lshl_b32 s38, s{sI}, 19\ns_lshl_b32 s39, s{sLW}, 17\ns_add_u32 s{sT}, s38, s39\ns_add_u32 s{sT2}, s{sT}, {65536-2048}")
    k(f"s_mul_i32 s38, s{sJ}, {64*9216}\ns_add_u32 s38, s38, {WS_Z2}\ns_lshl_b32 s{sMT}, s{sLW}, 12\ns_add_u32 s{sF}, s38, s{sMT}")
    k(f"s_and_b32 s39, s{sLW}, 1\ns_lshl_b32 s39, s39, 10\ns_add_u32 s{sF5}, s38, s39\ns_add_u32 s{sF5}, s{sF5}, 16384")
    k(f"s_add_u32 s{sMF}, s{sMT}, {W_BASE}\ns_add_u32 s{sMF5}, s39, {W_BASE+16384}")
    k(f"s_cmp_lt_u32 s{sLW}, 2\ns_cselect_b64 s[{sE}:{sE+1}], -1, 0\ns_cselect_b64 s[{sE+2}:{sE+3}], 0, -1")
    if lead:
        k(f"s_add_u32 s45, s{sI}, s{sJ}\ns_and_b32 s45, s45, 3\ns_mov_b32 s46, {lead*128}\ns_mov_b32 s47, {lead*18432}")
    if rot:
        if rot == "xcd": k("s_and_b32 s44, s2, 7\ns_lshl_b32 s44, s44, 2")
        elif rot == "i": k(f"s_lshl_b32 s44, s{sI}, 1")
        elif rot == "xcd2": k("s_and_b32 s44, s2, 7\ns_mul_i32 s44, s44, 5\ns_and_b32 s44, s44, 31")
        k(f"s_lshl_b32 s38, s44, 7\ns_add_u32 s{sT}, s{sT}, s38\ns_add_u32 s{sT2}, s{sT2}, s38\ns_mul_i32 s38, s44, 18432\ns_add_u32 s{sF}, s{sF}, s38\ns_add_u32 s{sF5}, s{sF5}, s38")
    k("s_waitcnt lgkmcnt(0)")
    srd(k, SRD_T, 4, 0, S * S * 2)
    srd(k, SRD_WS, 40, 0, WS_SIZE)
    def dma(s):
        slot = s % 4
        a, a2, f, f5 = sT, sT2, sF, sF5
        if lead:
            a, a2, f, f5 = 48, 49, 50, 51
            k(f"s_cmp_eq_u32 s45, {s%4}\ns_cselect_b32 s38, s46, 0\ns_cselect_b32 s39, s47, 0")
            k(f"s_add_u32 s48, s{sT}, s38\ns_add_u32 s49, s{sT2}, s38\ns_add_u32 s50, s{sF}, s39\ns_add_u32 s51, s{sF5}, s39")
        k(f"s_add_u32 m0, s{sMT}, {slot*T_SLOT}")
        for q in range(4):
            k(f"buffer_load_dwordx4 v{vDT0+(q&1)}, {S4(SRD_T)}, s{a if q < 2 else a2} offen offset:{q*1024} lds")
        k(f"s_add_u32 m0, s{sMF}, {slot*W_SLOT}\ns_add_u32 s{sT}, s{sT}, 128")
        for n in range(4):
            k(f"buffer_load_dwordx4 v{vDF}, {ws}, s{f} offen offset:{n*1024} lds")
        e = sE + 2 * (s & 1)
        k(f"s_add_u32 m0, s{sMF5}, {slot*W_SLOT}\ns_mov_b64 exec, s[{e}:{e+1}]")
        k(f"buffer_load_dwordx4 v{vDF}, {ws}, s{f5} offen lds\ns_mov_b64 exec, -1")
        k(f"s_add_u32 s{sT2}, s{sT2}, 128\ns_add_u32 s{sF}, s{sF}, 18432\ns_add_u32 s{sF5}, s{sF5}, 18432")
        if rot:
            k(f"s_add_u32 s44, s44, 1\ns_cmp_eq_u32 s44, 32\ns_cselect_b32 s38, 4096, 0\ns_cselect_b32 s39, {32*18432}, 0")
            k(f"s_sub_u32 s{sT}, s{sT}, s38\ns_sub_u32 s{sT2}, s{sT2}, s38\ns_sub_u32 s{sF}, s{sF}, s39\ns_sub_u32 s{sF5}, s{sF5}, s39")
    for s in range(3): dma(s)
    k("s_waitcnt vmcnt(17)\ns_barrier")
    dma(3)
    def lstage(s):
        vm = 17 if s + 3 < NST else (8 if s + 2 < NST else 0)
        k(f"s_waitcnt vmcnt({vm})\ns_barrier")
        if s + 4 < NST: dma(s + 4)
    k(f"s_mov_b32 s{sCNT}, 7")
    k(f"{name}_lloop:")
    if hitonly: k(f"s_sub_u32 s{sT}, s{sT}, 512\ns_sub_u32 s{sT2}, s{sT2}, 512\ns_sub_u32 s{sF}, s{sF}, {4*18432}\ns_sub_u32 s{sF5}, s{sF5}, {4*18432}")
    if lead:
        k(f"s_cmp_le_u32 s{sCNT}, {lead//4}\ns_cselect_b32 s46, {((lead-32)*128) & 0xffffffff}, s46\ns_cselect_b32 s47, {((lead-32)*18432) & 0xffffffff}, s47")
    for s in range(4): lstage(s)
    k(f"s_sub_u32 s{sCNT}, s{sCNT}, 1\ns_cmp_lg_u32 s{sCNT}, 0\ns_cbranch_scc1 {name}_lloop")
    for s in range(28, 31): lstage(s)
    st.flush(2, sW, SRD_WS, 4)
    k("s_endpgm")
    k(f"{name}_cons:")
    vT0, vT1, vF0, vF1, vB = 3, 4, 5, 6, 7
    ACC, FR0, Z1 = 16, 88, 176
    t_swz_read_setup(k, vT0, vT1, sW)
    k(f"v_lshlrev_b32 v{vB}, 4, v1\nv_add_u32 v{vF0}, {W_BASE}, v{vB}\nv_add_u32 v{vF1}, {3*W_SLOT}, v{vF0}")
    k("s_waitcnt lgkmcnt(0)")
    srd(k, SRD_WS, 40, 0, WS_SIZE)
    srd(k, SRD_B, 6, 0, S * 2)
    k(f"s_lshl_b32 s38, s{sI}, 8\ns_lshl_b32 s39, s{sW}, 6\ns_add_u32 s38, s38, s39\nv_lshlrev_b32 v11, 1, v11")
    k(f"buffer_load_ushort v14, v11, {S4(SRD_B)}, s38 offen\nbuffer_load_ushort v15, v11, {S4(SRD_B)}, s38 offen offset:32")
    k(f"s_lshl_b32 s42, s{sI}, 4\ns_add_u32 s42, s42, s{sJ}\ns_lshl_b32 s42, s42, 2\ns_add_u32 s42, s42, s{sW}\ns_mul_i32 s42, s42, 9216\ns_add_u32 s42, s42, {WS_Z1}")
    z1l = []
    for q in range(9):
        z1l.append(f"buffer_load_dwordx4 {vr(Z1+4*q,4)}, v{vB}, {ws}, s42 offen offset:{(q%4)*1024}" + ("\ns_add_u32 s42, s42, 4096" if q % 4 == 3 else ""))
    def reads(c, s, kk, buf):
        slot = s % 4
        r = [f"ds_read_b128 {vr(c.T(buf,0,tt),4)}, v{vT0+kk} offset:{slot*T_SLOT + tt*2048}" for tt in range(2)]
        for ft in range(9):
            o = (slot if slot < 3 else 0) * W_SLOT + kk * 9216 + ft * 1024
            r.append(f"ds_read_b128 {vr(c.W(buf,0,ft),4)}, v{vF0 + (1 if slot == 3 else 0)} offset:{o}")
        return r
    c = Cons(k, 2, 9, 1, ACC, FR0, "W", reads, rdgaps=11)
    k("s_waitcnt vmcnt(0)\nv_lshlrev_b32 v14, 16, v14\nv_lshlrev_b32 v15, 16, v15")
    for tt in range(2):
        for r in range(36): k(f"v_mov_b32 v{ACC+tt*36+r}, v{14+tt}")
    k("s_barrier")
    st(1)
    c.first_reads(0)
    k(f"s_mov_b32 s{sCNT}, 7")
    k(f"{name}_loop:")
    for s in range(4): c.stage(s, False)
    k(f"s_sub_u32 s{sCNT}, s{sCNT}, 1\ns_cmp_lg_u32 s{sCNT}, 0\ns_cbranch_scc1 {name}_loop")
    for s in range(28, 32): c.stage(s, s == 31, barrier=(s < 31), extraA=(z1l if s == 28 else ()))
    st(2)
    k("s_waitcnt vmcnt(0)")
    P = 88
    k(f"s_lshl_b32 s38, s{sI}, 2\ns_add_u32 s38, s38, s{sW}\ns_mul_i32 s38, s38, {2*72*1024}")
    k(f"s_lshr_b32 s39, s{sJ}, 1\ns_mul_i32 s39, s39, 9216\ns_add_u32 s38, s38, s39\ns_add_u32 s38, s38, {WS_U}")
    k(f"s_add_u32 s39, s38, {72*1024}\ns_add_u32 s43, s38, 4096\ns_add_u32 s44, s39, 4096\ns_add_u32 s45, s38, 8192\ns_add_u32 s46, s39, 8192")
    for e in range(36):
        a = ACC + 2 * e
        t = 8 + 2 * (e % 2)
        k(f"v_lshlrev_b32 v{t}, 16, v{Z1+e}\nv_and_b32 v{t+1}, 0xffff0000, v{Z1+e}")
        k(f"v_pk_mul_f32 {vr(a,2)}, {vr(a,2)}, {vr(t,2)}")
        if e > 0: k(f"v_cvt_pk_bf16_f32 v{P+e-1}, v{a-2}, v{a-1}")
    k(f"v_cvt_pk_bf16_f32 v{P+35}, v{ACC+70}, v{ACC+71}")
    k(f"s_bitcmp1_b32 s{sJ}, 0\ns_cbranch_scc1 {name}_odd")
    for tt, (b0, b1) in enumerate(((38, 43), (39, 44))):
        for p in range(4):
            k(f"buffer_store_dwordx4 {vr(P+tt*18+4*p,4)}, v{vB}, {ws}, s{b0} offen offset:{p*1024}")
        k(f"buffer_store_dwordx2 {vr(P+tt*18+16,2)}, v{vB}, {ws}, s{b1} offen")
    st.flush(4, sW, SRD_WS, 4)
    k("s_endpgm")
    k(f"{name}_odd:")
    for tt, (b1, b2) in enumerate(((43, 45), (44, 46))):
        k(f"buffer_store_dwordx2 {vr(P+tt*18,2)}, v{vB}, {ws}, s{b1} offen offset:8")
        for p in range(3):
            k(f"buffer_store_dwordx4 {vr(P+tt*18+2+4*p,4)}, v{vB}, {ws}, s{b1} offen offset:{(p+1)*1024}")
        k(f"buffer_store_dwordx4 {vr(P+tt*18+14,4)}, v{vB}, {ws}, s{b2} offen")
    st.flush(4, sW, SRD_WS, 4)
    k(f"{name}_end:\ns_endpgm")
    return k

if __name__ == "__main__":
    ks = [k5("k5_base_kernel", True, lead=0), k5("k5_hit_kernel", True, lead=0, hitonly=True), k5("k5_l8li2_kernel", True, lead=8, li=2), k5("k5_l12li2_kernel", True, lead=12, li=2), k5("k5_l12_kernel", True, lead=12)]
    open("k5t.s", "w").write(build(ks))
```

```python
import os
MB = 1 << 20
B0 = int(os.environ.get('WSB', '0')) * MB
S, D, F, FH = 2048, 576, 4608, 2304
WS_QM  = B0 + 0 * MB
WS_KM  = B0 + 2 * MB
WS_QT  = B0 + 4 * MB
WS_KT  = B0 + 4 * MB + 512 * 1024
WS_VF  = B0 + 5 * MB
WS_O   = B0 + 8 * MB
WS_H   = B0 + 11 * MB
WS_HST = B0 + 14 * MB
WS_CS  = B0 + 14 * MB + 256 * 1024
WS_ZST = B0 + 14 * MB + 512 * 1024
WS_FL2 = WS_ZST + 262144
WS_FL3 = WS_FL2 + 8192
WS_FL4 = WS_FL3 + 4096
WS_FL5 = WS_FL4 + 4096
RESET_BYTES = 262144 + 32768
WS_Z2  = B0 + 16 * MB
WS_Z1  = B0 + 26 * MB
WS_U   = B0 + 36 * MB
WS_US  = WS_U + 128 * 64 * 1024
WS_WINF = B0 + 46 * MB
WS_WOF  = B0 + 52 * MB
WS_WOUTF = B0 + 53 * MB
WS_DBG = (200 if B0 < 100 * MB else 100) * MB
WS_SIZE = 256 * MB
KA_X, KA_WQKV, KA_WO, KA_BX, KA_WIN, KA_WSP, KA_BSP, KA_WOUT, KA_OUT, KA_DBG, KA_WS = [8 * i for i in range(11)]
```

```python
from common import *
from k1 import t_dma_setup, t_swz_read_setup, f2u
from k4 import ij_map, interleave, C0, C1
OOB = 0x40000000
sW, sLW, SRD_WS = 20, 23, 16
ws = S4(SRD_WS)

def poll(k, name, loads, regs_check, sCnt=52, tmp=9, first_wait=None):
    def check():
        r = list(regs_check); o = []
        if len(r) == 1: return [f"v_cmp_eq_u32 vcc, -1, v{r[0]}"]
        cur = r.pop(0)
        while r:
            if len(r) >= 2: o.append(f"v_max3_u32 v{tmp}, v{cur}, v{r[0]}, v{r[1]}"); r = r[2:]
            else: o.append(f"v_max_u32 v{tmp}, v{cur}, v{r[0]}"); r = r[1:]
            cur = tmp
        return o + [f"v_cmp_eq_u32 vcc, -1, v{tmp}"]
    if first_wait is None:
        for x in loads: k(x)
    k(f"s_mov_b32 s{sCnt}, 0x20000\ns_waitcnt vmcnt({first_wait or 0})")
    for x in check(): k(x)
    k(f"s_cbranch_vccnz {name}\n{name}_ok:")
    t = [f"{name}:"] + list(loads) + ["s_waitcnt vmcnt(0)"] + check()
    t += [f"s_sub_u32 s{sCnt}, s{sCnt}, 1", f"s_cbranch_vccz {name}_ok", f"s_cmp_eq_u32 s{sCnt}, 0", f"s_cbranch_scc1 {name}_ok", f"s_branch {name}"]
    k.tail += t
def set_flag(k, sOff):
    k(f"s_waitcnt vmcnt(0)\nv_mov_b32 v8, 0\ns_mov_b64 exec, 1")
    k(f"buffer_store_dword v8, v8, {ws}, s{sOff} offen sc1\ns_mov_b64 exec, -1")

def gelu4(a, pre, sC, t):
    o = list(pre)
    for h in range(2): o.append(f"v_pk_mul_f32 {vr(t+2*h,2)}, {vr(a+2*h,2)}, {vr(a+2*h,2)}")
    for h in range(2): o.append(f"v_pk_fma_f32 {vr(t+2*h,2)}, {vr(t+2*h,2)}, s[{sC}:{sC+1}], s[{sC}:{sC+1}] op_sel:[0,0,1] op_sel_hi:[1,0,1]")
    for h in range(2): o.append(f"v_pk_mul_f32 {vr(t+2*h,2)}, {vr(t+2*h,2)}, {vr(a+2*h,2)}")
    for e in range(4): o.append(f"v_exp_f32 v{t+e}, v{t+e}")
    for h in range(2): o.append(f"v_pk_add_f32 {vr(t+2*h,2)}, {vr(t+2*h,2)}, 1.0 op_sel_hi:[1,0]")
    for e in range(4): o.append(f"v_rcp_f32 v{t+e}, v{t+e}")
    for h in range(2): o.append(f"v_pk_mul_f32 {vr(a+2*h,2)}, {vr(a+2*h,2)}, {vr(t+2*h,2)}")
    return o
def finish_stats(k, S_, n, vR, vM):
    k(f"s_mov_b32 s38, {f2u(1.0/n)}\nv_mul_f32 v{vM}, s38, v{S_}\nv_mul_f32 v{vR}, s38, v{S_+1}\nv_fma_f32 v{vR}, -v{vM}, v{vM}, v{vR}")
    k(f"v_max_f32 v{vR}, 0, v{vR}\nv_add_f32 v{vR}, {f2u(1e-5)}, v{vR}\nv_rsq_f32 v{vR}, v{vR}")

class Mega:
    def __init__(self, name, phases, stamps=False, li=3, lead=4):
        self.name, self.ph, self.li, self.lead = name, phases, li, lead
        self.k = K(name, 256, 512, lds=163840)
        self.k.tail = []
        self.st = Stamps(self.k, stamps)
        self.kidx = int(phases[0]) - 1
    sI, sJ = 21, 22
    sMT, sMW, sMW5, sE = 31, 32, 33, 34
    ACC, FR0, Z1 = 16, 88, 176
    XR = X_BASE
    XC = X_BASE + 1024
    XS = X_BASE + 2304
    def common45(self):
        k = self.k
        ij_map(k, self.sI, self.sJ, self.li)
        k(f"s_lshl_b32 s{self.sMT}, s{sLW}, 12\ns_add_u32 s{self.sMW}, s{self.sMT}, {W_BASE}")
        k(f"s_and_b32 s39, s{sLW}, 1\ns_lshl_b32 s39, s39, 10\ns_add_u32 s{self.sMW5}, s39, {W_BASE+16384}")
        k(f"s_cmp_lt_u32 s{sLW}, 2\ns_cselect_b64 s[{self.sE}:{self.sE+1}], -1, 0\ns_cselect_b64 s[{self.sE+2}:{self.sE+3}], 0, -1")
        k(f"s_mov_b32 s46, {f2u(C1)}\ns_mov_b32 s47, {f2u(C0)}")
        k("v_lshlrev_b32 v3, 4, v1")
        k(f"s_lshl_b32 s48, s{self.sI}, 2\ns_add_u32 s48, s48, s{sLW}\ns_mul_i32 s48, s48, {2*18432}\ns_add_u32 s48, s48, {WS_H}")
        k(f"s_mul_i32 s38, s{self.sJ}, {18*9216}\ns_add_u32 s38, s38, {WS_WINF}\ns_add_u32 s49, s38, s{self.sMT}\ns_add_u32 s53, s38, s39")
    def dma4T(self, gs):
        k = self.k; s, slot = gs % 9, gs % 4
        fl = " sc1" if "3" in self.ph else ""
        k(f"s_add_u32 s28, s48, {2048*s}\ns_add_u32 s29, s48, {2048*s + 18432 - 2048}\ns_add_u32 m0, s{self.sMT}, {slot*T_SLOT}")
        for q in range(4): k(f"buffer_load_dwordx4 v3, {ws}, s{28 if q < 2 else 29} offen offset:{q*1024}{fl} lds")
    def dma4W(self, gs):
        k = self.k; s, slot = gs % 9, gs % 4
        wo = (16 * 18 * 9216 if gs < 9 else 0) + 18432 * s
        k(f"s_add_u32 s30, s49, {wo}\ns_add_u32 m0, s{self.sMW}, {slot*W_SLOT}\ns_add_u32 s28, s53, {wo + 16384}")
        for n in range(4): k(f"buffer_load_dwordx4 v3, {ws}, s30 offen offset:{n*1024} lds")
        e = self.sE + 2 * (gs & 1)
        k(f"s_add_u32 m0, s{self.sMW5}, {slot*W_SLOT}\ns_mov_b64 exec, s[{e}:{e+1}]")
        k(f"buffer_load_dwordx4 v3, {ws}, s28 offen lds\ns_mov_b64 exec, -1")
    def dma4(self, gs): self.dma4T(gs); self.dma4W(gs)
    def cons4_setup(self):
        k = self.k
        k(f"v_add_u32 v5, {W_BASE}, v3\nv_add_u32 v6, {3*W_SLOT}, v5\nv_add_u32 v4, s{self.sMT}, v3")
    @staticmethod
    def reads4(c, gs, kk, buf):
        slot = gs % 4
        r = [f"ds_read_b128 {vr(c.T(buf,0,tt),4)}, v4 offset:{slot*T_SLOT + tt*2048 + kk*1024}" for tt in range(2)]
        for ft in range(9):
            o = (slot if slot < 3 else 0) * W_SLOT + kk * 9216 + ft * 1024
            r.append(f"ds_read_b128 {vr(c.W(buf,0,ft),4)}, v{5 + (1 if slot == 3 else 0)} offset:{o}")
        return r
    def p4B(self):
        k, st, sI, sJ = self.k, self.st, self.sI, self.sJ
        c = Cons(k, 2, 9, 1, self.ACC, self.FR0, "W", self.reads4, rdgaps=11)
        for s in range(3): self.dma4(s)
        self.cons4_setup()
        k("s_waitcnt vmcnt(17)\ns_barrier")
        self.dma4(3)
        for s in range(9):
            k(f"s_waitcnt vmcnt(17)\ns_barrier")
            st.tr(1 + s)
            self.dma4(s + 4)
        RR, NM, CS = 212, 10, 132
        k(f"s_lshl_b32 s38, s{sLW}, 8\ns_add_u32 s38, s38, {self.XR}\nv_and_b32 v8, 15, v1\nv_lshl_add_u32 v8, v8, 2, s38")
        k(f"v_lshrrev_b32 v9, 4, v1\nv_lshlrev_b32 v9, 4, v9\nv_add_u32 v9, {self.XC}, v9")
        k(f"ds_read2_b32 {vr(RR,2)}, v8 offset0:0 offset1:16\nds_read2_b32 {vr(NM,2)}, v8 offset0:32 offset1:48")
        for ft in range(9): k(f"ds_read_b128 {vr(CS+4*ft,4)}, v9 offset:{64*ft}")
        c.first_reads(9)
        if "5" in self.ph: self.p5B_pre()
        k("s_waitcnt lgkmcnt(11)")
        for ft in range(9):
            for tt in range(2):
                for h in range(2):
                    k(f"v_pk_mul_f32 {vr(c.acc(tt,ft)+2*h,2)}, {vr(CS+4*ft+2*h,2)}, {vr(NM,2)} op_sel:[0,{tt}] op_sel_hi:[1,{tt}]")
        nb = 2 if "5" in self.ph else 0
        for gs in range(9, 18):
            c.stage(gs, gs == 17, vm={9: 17 + nb, 10: 8 + nb, 11: 0}.get(gs), barrier=(gs < 17), post_barrier=(lambda gs=gs: st.tr(1 + gs) if gs < 17 else None))
        TMP = 214
        tiles = [(tt, ft) for tt in range(2) for ft in range(9)]
        if "5" not in self.ph:
            k(f"s_lshl_b32 s42, s{sI}, 4\ns_add_u32 s42, s42, s{sJ}\ns_lshl_b32 s42, s42, 2\ns_add_u32 s42, s42, s{sLW}\ns_mul_i32 s42, s42, 9216\ns_add_u32 s42, s42, {WS_Z1}")
        for q in range(9):
            seqs = []
            for u in range(2):
                tt, ft = tiles[2 * q + u]
                a = c.acc(tt, ft)
                pre = [f"v_pk_mul_f32 {vr(a+2*h,2)}, {vr(a+2*h,2)}, {vr(RR,2)} op_sel:[0,{tt}] op_sel_hi:[1,{tt}]" for h in range(2)]
                sq = gelu4(a, pre, 46, TMP + 4 * u)
                sq += [f"v_cvt_pk_bf16_f32 v{self.Z1+4*q+2*u+h}, v{a+2*h}, v{a+2*h+1}" for h in range(2)]
                seqs.append(sq)
            for x in interleave(*seqs): k(x)
            if "5" not in self.ph:
                k(f"buffer_store_dwordx4 {vr(self.Z1+4*q,4)}, v3, {ws}, s42 offen offset:{(q%4)*1024}")
                if q % 4 == 3: k("s_add_u32 s42, s42, 4096")
        st.tr(18)
    def p4A(self):
        k, st, sI, sJ, name = self.k, self.st, self.sI, self.sJ, self.name
        c = Cons(k, 2, 9, 1, self.ACC, self.FR0, "T", self.reads4, rdgaps=11)
        self.cons4_setup()
        RR, NM, CS, TMP = 176, 184, 192, 204
        k(f"s_lshl_b32 s38, s{sLW}, 8\ns_add_u32 s39, s38, {self.XR}\nv_lshrrev_b32 v8, 4, v1\nv_lshl_add_u32 v14, v8, 4, s39")
        k(f"s_add_u32 s39, s38, {self.XS}\nv_lshl_add_u32 v15, v8, 4, s39")
        k(f"v_and_b32 v13, 15, v1\nv_lshlrev_b32 v13, 2, v13\nv_add_u32 v13, {self.XC+576}, v13")
        ex = []
        for tt in range(2): ex += [f"ds_read_b128 {vr(RR+4*tt,4)}, v14 offset:{64*tt}", f"ds_read_b128 {vr(NM+4*tt,4)}, v14 offset:{128+64*tt}"]
        ex += [f"ds_read_b32 v{CS+ft}, v13 offset:{64*ft}" for ft in range(9)]
        HP, CP = 212, 220
        fl3 = " sc1" if "3" in self.ph else ""
        k(f"s_lshl_b32 s38, s{sI}, 2\ns_add_u32 s38, s38, s{sLW}\ns_lshl_b32 s38, s38, 11\ns_add_u32 s38, s38, {WS_HST}")
        for tt in range(2): k(f"buffer_load_dwordx4 {vr(HP+4*tt,4)}, v3, {ws}, s38 offen offset:{1024*tt}{fl3}")
        k(f"s_mul_i32 s38, s{sJ}, 576\ns_mul_i32 s39, s{sLW}, 288\ns_add_u32 s38, s38, s39\ns_cmp_ge_u32 s{sLW}, 2\ns_cselect_b32 s54, {2304*4-576}, 0\ns_add_u32 s38, s38, s54\ns_add_u32 s38, s38, {WS_CS}\ns_add_u32 s54, s38, {4608*4}")
        k(f"v_min_u32 v8, 35, v1\nv_lshlrev_b32 v8, 3, v8")
        k(f"buffer_load_dwordx2 {vr(CP,2)}, v8, {ws}, s38 offen\nbuffer_load_dwordx2 {vr(CP+2,2)}, v8, {ws}, s54 offen")
        k(f"s_add_u32 s39, s39, {self.XC}\nv_add_u32 v224, s39, v8")
        k(f"s_lshl_b32 s38, s{sLW}, 8\ns_add_u32 s38, s38, {self.XR}\nv_bfe_u32 v8, v1, 4, 1\nv_lshlrev_b32 v8, 6, v8\nv_and_b32 v9, 7, v1\nv_lshl_add_u32 v8, v9, 3, v8\nv_add_u32 v225, s38, v8")
        k(f"s_mov_b32 s54, {f2u(1.0/576)}\ns_mov_b32 s55, {f2u(1e-5)}")
        m1 = ["s_waitcnt vmcnt(0)"]
        m1 += [f"v_add_f32_dpp v{HP+e}, v{HP+e}, v{HP+e} row_ror:8 row_mask:0xf bank_mask:0xf" for e in range(8)]
        m1 += [f"v_add_f32 v{CP}, v{CP}, v{CP+2}", f"v_add_f32 v{CP+1}, v{CP+1}, v{CP+3}"]
        m1 += [f"v_permlane16_swap_b32 v{HP+e}, v{HP+4+e}" for e in range(4)]
        m1 += [f"ds_write_b64 v224, {vr(CP,2)}"]
        m1 += [f"v_add_f32 v{HP+e}, v{HP+e}, v{HP+4+e}" for e in range(4)]
        m1 += [f"v_mov_b32 v{HP+4+e}, v{HP+e}" for e in range(4)]
        m2 = [f"v_permlane32_swap_b32 v{HP+e}, v{HP+4+e}" for e in range(4)]
        m2 += [f"v_add_f32 v{HP+e}, v{HP+e}, v{HP+4+e}" for e in range(4)]
        m2 += [f"v_mul_f32 v{HP+6+e}, s54, v{HP+2*e}" for e in range(2)] + [f"v_mul_f32 v{HP+4+e}, s54, v{HP+2*e+1}" for e in range(2)]
        m2 += [f"v_fma_f32 v{HP+4+e}, -v{HP+6+e}, v{HP+6+e}, v{HP+4+e}" for e in range(2)] + [f"v_max_f32 v{HP+4+e}, 0, v{HP+4+e}" for e in range(2)]
        m2 += [f"v_add_f32 v{HP+4+e}, s55, v{HP+4+e}" for e in range(2)] + [f"v_rsq_f32 v{HP+4+e}, v{HP+4+e}" for e in range(2)] + [f"v_sub_f32 v{HP+6+e}, 0, v{HP+6+e}" for e in range(2)]
        m2 += [f"ds_write_b64 v225, {vr(HP+4,2)}", f"ds_write_b64 v225, {vr(HP+6,2)} offset:128"]
        k("s_barrier")
        st.tr(1)
        c.first_reads(0)
        for s in range(9):
            c.stage(s, s == 8, zero_c=(s == 0), extraA=(m1 if s == 2 else ()), extraB=(ex if s == 8 else m2 if s == 2 else ()), post_barrier=(lambda s=s: st.tr(2 + s)))
        k("s_waitcnt lgkmcnt(0)")
        SUM, SQ = 88, 96
        tiles = [(tt, ft) for ft in range(9) for tt in range(2)]
        for q in range(9):
            seqs = []
            for u in range(2):
                tt, ft = tiles[2 * q + u]
                a = c.acc(tt, ft)
                cp, hs = CS + (ft & ~1), ft & 1
                pre = [f"v_pk_fma_f32 {vr(a+2*h,2)}, {vr(NM+4*tt+2*h,2)}, {vr(cp,2)}, {vr(a+2*h,2)} op_sel:[0,{hs},0] op_sel_hi:[1,{hs},1]" for h in range(2)]
                pre += [f"v_pk_mul_f32 {vr(a+2*h,2)}, {vr(a+2*h,2)}, {vr(RR+4*tt+2*h,2)}" for h in range(2)]
                sq = gelu4(a, pre, 46, TMP + 4 * u)
                for h in range(2):
                    if ft == 0: sq.append(f"v_pk_mul_f32 {vr(SQ+4*tt+2*h,2)}, {vr(a+2*h,2)}, {vr(a+2*h,2)}")
                    else: sq.append(f"v_pk_fma_f32 {vr(SQ+4*tt+2*h,2)}, {vr(a+2*h,2)}, {vr(a+2*h,2)}, {vr(SQ+4*tt+2*h,2)}")
                    if ft == 1: sq.append(f"v_pk_add_f32 {vr(SUM+4*tt+2*h,2)}, {vr(a+2*h,2)}, {vr(c.acc(tt,0)+2*h,2)}")
                    elif ft > 1: sq.append(f"v_pk_add_f32 {vr(SUM+4*tt+2*h,2)}, {vr(SUM+4*tt+2*h,2)}, {vr(a+2*h,2)}")
                seqs.append(sq)
            for x in interleave(*seqs): k(x)
        Y, Z = 104, 112
        dm = "row_mask:0xf"
        for si, X in enumerate((SUM, SQ)):
            for r in range(4): k(f"v_add_f32_dpp v{Y+4*si+r}, v{X+r}, v{X+r} row_ror:8 {dm} bank_mask:0x3")
            for r in range(4): k(f"v_add_f32_dpp v{Y+4*si+r}, v{X+4+r}, v{X+4+r} row_ror:8 {dm} bank_mask:0xc")
        for si in range(2):
            for q in range(2): k(f"v_add_f32_dpp v{Z+2*si+q}, v{Y+4*si+q}, v{Y+4*si+q} row_shl:4 {dm} bank_mask:0x5")
        for si in range(2):
            for q in range(2): k(f"v_add_f32_dpp v{Z+2*si+q}, v{Y+4*si+2+q}, v{Y+4*si+2+q} row_shr:4 {dm} bank_mask:0xa")
        for perm in ("[1,0,3,2]", "[2,3,0,1]"):
            for e in range(4): k(f"v_add_f32_dpp v{Z+e}, v{Z+e}, v{Z+e} quad_perm:{perm} {dm} bank_mask:0xf")
        k(f"v_cndmask_b32 v{Y}, v{Z}, v{Z+1}, vcc\nv_cndmask_b32 v{Y+1}, v{Z+2}, v{Z+3}, vcc\nv_and_b32 v{Y+1}, 0x7fffffff, v{Y+1}")
        k(f"buffer_store_dwordx2 {vr(Y,2)}, v12, {ws}, s43 offen sc1")
        st.tr(11)
        PL, P = 104, 128
        fl = " sc1" if "5" in self.ph else ""
        k(f"s_add_u32 s43, s42, 4096\ns_add_u32 s50, s42, 8192\ns_add_u32 s51, s42, 12288")
        pl = [f"buffer_load_dwordx2 {vr(PL+2*q,2)}, v11, {ws}, s{[42,43,50,51][q>>1]} offen offset:{2048*(q&1)} sc1" for q in range(8)]
        def norm(fts):
            for ft in fts:
                o = P + 4 * ft
                for tt in range(2):
                    a = c.acc(tt, ft)
                    for h in range(2): k(f"v_pk_fma_f32 {vr(a+2*h,2)}, {vr(a+2*h,2)}, {vr(RR+4*tt+2*h,2)}, {vr(NM+4*tt+2*h,2)}")
                for tt in range(2):
                    a = c.acc(tt, ft)
                    for h in range(2): k(f"v_cvt_pk_bf16_f32 v{o+2*tt+h}, v{a+2*h}, v{a+2*h+1}")
                k(f"v_permlane32_swap_b32 v{o}, v{o+2}\nv_permlane32_swap_b32 v{o+1}, v{o+3}\nv_permlane16_swap_b32 v{o}, v{o+2}\nv_permlane16_swap_b32 v{o+1}, v{o+3}")
                k(f"buffer_store_dwordx4 {vr(o,4)}, v3, {ws}, s42 offen offset:{(ft%4)*1024}{fl}")
                if ft % 4 == 3: k("s_add_u32 s42, s42, 4096")
        ntile = {12: (0, 2), 13: (2, 4), 14: (4, 7), 15: (7, 9)}
        for bar in range(9, 17):
            vm = {12: 25, 13: 17 + 2, 14: 17 + 4, 15: 8 + 7, 16: 7}.get(bar)
            if vm is not None: k(f"s_waitcnt vmcnt({vm})")
            k("s_barrier")
            if bar == 11:
                for x in pl: k(x)
            if bar + 4 <= 17: self.dma4(bar + 4)
            if bar == 11:
                poll(k, f"{name}_zpoll", pl, [PL + 1 + 2 * q for q in range(8)], first_wait=8)
                st.tr(12)
                for st_ in (2, 4, 8):
                    for q in range(0, 16, 2 * st_):
                        for e in range(2): k(f"v_add_f32 v{PL+q+e}, v{PL+q+e}, v{PL+q+st_+e}")
                k(f"v_mov_b32 v{PL+2}, v{PL}\nv_mov_b32 v{PL+3}, v{PL+1}\nv_permlane32_swap_b32 v{PL+2}, v{PL}\nv_permlane32_swap_b32 v{PL+3}, v{PL+1}\nv_add_f32 v{PL}, v{PL}, v{PL+2}\nv_add_f32 v{PL+1}, v{PL+1}, v{PL+3}")
                finish_stats(k, PL, 2304, 9, 10)
                k(f"v_mul_f32 v10, v10, v9\nv_sub_f32 v10, 0, v10")
                k("ds_write_b32 v7, v9\nds_write_b32 v7, v10 offset:128")
                for tt in range(2): k(f"ds_read_b128 {vr(RR+4*tt,4)}, v15 offset:{64*tt}\nds_read_b128 {vr(NM+4*tt,4)}, v15 offset:{128+64*tt}")
                k(f"s_lshl_b32 s42, s{sJ}, 6\ns_lshl_b32 s38, s{sI}, 2\ns_add_u32 s42, s42, s38\ns_add_u32 s42, s42, s{sLW}\ns_lshl_b32 s43, s42, 2\ns_add_u32 s43, s43, {WS_FL4}\ns_mul_i32 s42, s42, 9216\ns_add_u32 s42, s42, {WS_Z2}")
                st.tr(13)
            if bar in ntile:
                if bar == 12: k("s_waitcnt lgkmcnt(0)")
                norm(range(*ntile[bar]))
        st.tr(14)
    def p4A_setup(self):
        k, sI, sJ = self.k, self.sI, self.sJ
        k("v_and_b32 v8, 1, v1\nv_bfe_u32 v9, v1, 3, 1\nv_lshl_add_u32 v12, v9, 4, v8\nv_lshrrev_b32 v9, 4, v1\nv_lshl_add_u32 v12, v9, 2, v12\nv_bfe_u32 v9, v1, 2, 1\nv_lshl_add_u32 v12, v9, 1, v12\nv_lshlrev_b32 v12, 3, v12")
        k(f"v_and_b32 v9, 2, v1\nv_cmp_eq_u32 vcc, 0, v9\nv_mov_b32 v9, {OOB}\nv_cndmask_b32 v12, v9, v12, vcc\nv_cmp_eq_u32 vcc, 1, v8")
        k(f"s_lshl_b32 s42, s{sI}, 14\ns_lshl_b32 s38, s{sLW}, 8\ns_add_u32 s42, s42, s38\ns_add_u32 s42, s42, {WS_ZST}\ns_lshl_b32 s43, s{sJ}, 10\ns_add_u32 s43, s43, s42")
        k(f"v_and_b32 v7, 31, v1\nv_lshlrev_b32 v11, 3, v7\nv_lshrrev_b32 v9, 5, v1\nv_lshl_add_u32 v11, v9, 10, v11")
        k(f"s_add_u32 s38, s38, {self.XS}\nv_lshl_add_u32 v7, v7, 2, s38")
    def p5A(self):
        k, st, sI, sJ, name, lead = self.k, self.st, self.sI, self.sJ, self.name, self.lead
        NST = 32
        sT, sT2, sF, sF5, sCNT = 28, 29, 30, 44, 43
        set_flag(k, 43)
        t_dma_setup(k, 4, 5, 4096)
        k(f"v_subrev_u32 v5, 1024, v5\nv_lshlrev_b32 v6, 2, v1")
        k(f"s_lshl_b32 s38, s{sI}, 19\ns_lshl_b32 s39, s{sLW}, 17\ns_add_u32 s{sT}, s38, s39\ns_add_u32 s{sT2}, s{sT}, {65536-2048}")
        k(f"s_mul_i32 s38, s{sJ}, {64*9216}\ns_add_u32 s38, s38, {WS_Z2}\ns_add_u32 s{sF}, s38, s{self.sMT}")
        k(f"s_and_b32 s39, s{sLW}, 1\ns_lshl_b32 s39, s39, 10\ns_add_u32 s{sF5}, s38, s39\ns_add_u32 s{sF5}, s{sF5}, 16384")
        k(f"s_add_u32 s45, s{sI}, s{sJ}\ns_and_b32 s45, s45, 3\ns_mov_b32 s46, {lead*128}\ns_mov_b32 s47, {lead*18432}")
        k(f"s_lshl_b32 s42, s{sJ}, 8\ns_add_u32 s42, s42, {WS_FL4}")
        srd(k, 8, 4, 0, S * S * 2)
        def dT(s):
            slot = (s + 2) % 4
            k(f"s_cmp_eq_u32 s45, {s%4}\ns_cselect_b32 s38, s46, 0\ns_add_u32 s48, s{sT}, s38\ns_add_u32 s49, s{sT2}, s38\ns_add_u32 m0, s{self.sMT}, {slot*T_SLOT}\ns_add_u32 s{sT}, s{sT}, 128")
            for q in range(4): k(f"buffer_load_dwordx4 v{4+(q&1)}, s[8:11], s{48 if q < 2 else 49} offen offset:{q*1024} lds")
            k(f"s_add_u32 s{sT2}, s{sT2}, 128")
        def dF(s):
            slot = (s + 2) % 4
            k(f"s_cmp_eq_u32 s45, {s%4}\ns_cselect_b32 s39, s47, 0\ns_add_u32 s50, s{sF}, s39\ns_add_u32 s51, s{sF5}, s39\ns_add_u32 m0, s{self.sMW}, {slot*W_SLOT}\ns_add_u32 s{sF}, s{sF}, 18432")
            for n in range(4): k(f"buffer_load_dwordx4 v3, {ws}, s50 offen offset:{n*1024} sc1 lds")
            e = self.sE + 2 * (s & 1)
            k(f"s_add_u32 m0, s{self.sMW5}, {slot*W_SLOT}\ns_mov_b64 exec, s[{e}:{e+1}]")
            k(f"buffer_load_dwordx4 v3, {ws}, s51 offen sc1 lds\ns_mov_b64 exec, -1\ns_add_u32 s{sF5}, s{sF5}, 18432")
        for s in range(3): dT(s)
        poll(k, f"{name}_f4poll", [f"buffer_load_dword v10, v6, {ws}, s42 offen sc1"], [10])
        st.tr(15)
        for s in range(3): dF(s)
        k("s_waitcnt vmcnt(9)\ns_barrier")
        st.tr(16)
        dT(3); dF(3)
        def lstage(s, vm=None):
            if vm is None: vm = 17 if s + 3 < NST else (8 if s + 2 < NST else 0)
            k(f"s_waitcnt vmcnt({vm})\ns_barrier")
            if s + 4 < NST: dT(s + 4); dF(s + 4)
        lstage(0, 12)
        for s in range(1, 4): lstage(s)
        k(f"s_mov_b32 s{sCNT}, 6")
        k(f"{name}_l5loop:")
        k(f"s_cmp_le_u32 s{sCNT}, {lead//4}\ns_cselect_b32 s46, {((lead-32)*128) & 0xffffffff}, s46\ns_cselect_b32 s47, {((lead-32)*18432) & 0xffffffff}, s47")
        for s in range(4, 8): lstage(s)
        k(f"s_sub_u32 s{sCNT}, s{sCNT}, 1\ns_cmp_lg_u32 s{sCNT}, 0\ns_cbranch_scc1 {name}_l5loop")
        for s in range(28, 31): lstage(s)
        st.tr(17)
    def p5B_pre(self):
        k = self.k
        srd(k, 24, 6, 0, S * 2)
        k(f"s_lshl_b32 s38, s{self.sI}, 8\ns_lshl_b32 s39, s{sLW}, 6\ns_add_u32 s38, s38, s39\nv_and_b32 v12, 15, v1\nv_lshlrev_b32 v12, 1, v12")
        k(f"buffer_load_ushort v14, v12, s[24:27], s38 offen\nbuffer_load_ushort v15, v12, s[24:27], s38 offen offset:32")
    def p5B(self):
        k, st, sI, sJ, name = self.k, self.st, self.sI, self.sJ, self.name
        NST, ACC, Z1, sCNT = 32, self.ACC, self.Z1, 43
        t_swz_read_setup(k, 4, 7, sLW, t0=10)
        def reads(c, s, kk, buf):
            slot = (s + 2) % 4
            r = [f"ds_read_b128 {vr(c.T(buf,0,tt),4)}, v{4 if kk == 0 else 7} offset:{slot*T_SLOT + tt*2048}" for tt in range(2)]
            for ft in range(9):
                o = (slot if slot < 3 else 0) * W_SLOT + kk * 9216 + ft * 1024
                r.append(f"ds_read_b128 {vr(c.W(buf,0,ft),4)}, v{5 + (1 if slot == 3 else 0)} offset:{o}")
            return r
        c = Cons(k, 2, 9, 1, ACC, self.FR0, "W", reads, rdgaps=11)
        k("s_waitcnt vmcnt(0)\nv_lshlrev_b32 v14, 16, v14\nv_lshlrev_b32 v15, 16, v15")
        for tt in range(2):
            for r in range(36): k(f"v_mov_b32 v{ACC+tt*36+r}, v{14+tt}")
        k("s_barrier")
        c.first_reads(0)
        k(f"s_mov_b32 s{sCNT}, 7")
        k(f"{name}_c5loop:")
        for s in range(4): c.stage(s, False)
        k(f"s_sub_u32 s{sCNT}, s{sCNT}, 1\ns_cmp_lg_u32 s{sCNT}, 0\ns_cbranch_scc1 {name}_c5loop")
        for s in range(28, 32): c.stage(s, s == 31, barrier=(s < 31))
        st.tr(19)
        P = 88
        fl = " sc1" if "6" in self.ph else ""
        k(f"s_lshl_b32 s38, s{sI}, 2\ns_add_u32 s38, s38, s{sLW}\ns_lshl_b32 s48, s38, 6\ns_lshl_b32 s39, s{sJ}, 2\ns_add_u32 s48, s48, s39\ns_add_u32 s48, s48, {WS_FL5}\ns_mul_i32 s38, s38, {2*72*1024}")
        k(f"s_lshr_b32 s39, s{sJ}, 1\ns_mul_i32 s39, s39, 9216\ns_add_u32 s38, s38, s39\ns_add_u32 s38, s38, {WS_U}")
        k(f"s_add_u32 s39, s38, {72*1024}\ns_add_u32 s43, s38, 4096\ns_add_u32 s44, s39, 4096\ns_add_u32 s45, s38, 8192\ns_add_u32 s46, s39, 8192")
        for e in range(36):
            a = ACC + 2 * e
            t = 8 + 2 * (e % 2)
            k(f"v_lshlrev_b32 v{t}, 16, v{Z1+e}\nv_and_b32 v{t+1}, 0xffff0000, v{Z1+e}")
            k(f"v_pk_mul_f32 {vr(a,2)}, {vr(a,2)}, {vr(t,2)}")
            if e > 0: k(f"v_cvt_pk_bf16_f32 v{P+e-1}, v{a-2}, v{a-1}")
        k(f"v_cvt_pk_bf16_f32 v{P+35}, v{ACC+70}, v{ACC+71}")
        k(f"s_bitcmp1_b32 s{sJ}, 0\ns_cbranch_scc1 {name}_odd")
        for tt, (b0, b1) in enumerate(((38, 43), (39, 44))):
            for p in range(4): k(f"buffer_store_dwordx4 {vr(P+tt*18+4*p,4)}, v3, {ws}, s{b0} offen offset:{p*1024}{fl}")
            k(f"buffer_store_dwordx2 {vr(P+tt*18+16,2)}, v3, {ws}, s{b1} offen{fl}")
        k(f"s_branch {name}_ustored")
        k(f"{name}_odd:")
        for tt, (b1, b2) in enumerate(((43, 45), (44, 46))):
            k(f"buffer_store_dwordx2 {vr(P+tt*18,2)}, v3, {ws}, s{b1} offen offset:8{fl}")
            for p in range(3): k(f"buffer_store_dwordx4 {vr(P+tt*18+2+4*p,4)}, v3, {ws}, s{b1} offen offset:{(p+1)*1024}{fl}")
            k(f"buffer_store_dwordx4 {vr(P+tt*18+14,4)}, v3, {ws}, s{b2} offen{fl}")
        k(f"{name}_ustored:")
    def build(self):
        k, st, name = self.k, self.st, self.name
        prologue(k, name, 256, sW, st)
        k(f"s_load_dwordx4 s[4:7], s[0:1], {KA_WSP}\ns_load_dwordx2 s[40:41], s[0:1], {KA_WS}")
        wave_lane(k, sW)
        k(f"s_and_b32 s{sLW}, s{sW}, 3")
        self.common45()
        k("s_waitcnt lgkmcnt(0)")
        srd(k, SRD_WS, 40, 0, WS_SIZE)
        k(f"s_cmp_lt_u32 s{sW}, 4\ns_cbranch_scc1 {name}_A")
        self.p4B()
        if "5" in self.ph: self.p5B()
        st.trflush(20, sW, SRD_WS, self.kidx); st.flush(2, sW, SRD_WS, self.kidx)
        k("s_endpgm")
        k(f"{name}_A:")
        self.p4A_setup()
        self.p4A()
        if "5" in self.ph: self.p5A()
        st.trflush(18, sW, SRD_WS, self.kidx); st.flush(2, sW, SRD_WS, self.kidx)
        k(f"{name}_end:\ns_endpgm")
        for x in k.tail: k(x)
        return k
def mega(phases, name=None, **kw): return Mega(name or f"k{phases}_kernel", phases, **kw).build()
if __name__ == "__main__":
    ks = [mega("4", stamps="trace"), mega("45", stamps="trace")]
    open("megat.s", "w").write(build(ks))
    for q in ks: print(q.name, q.stats, q.nops, len(q.lines))
```

```python
from common import *
import gen
def stampk(name, idx, final=False, n=0):
    k = K(name, 1, 64, lds=0)
    k(f"s_cmp_ge_u32 s2, 1\ns_cbranch_scc1 {name}_end")
    k(f"s_memrealtime s[10:11]\ns_load_dwordx4 s[4:7], s[0:1], {KA_DBG}\ns_waitcnt lgkmcnt(0)")
    srd(k, 16, 6, 0, WS_SIZE)
    srd(k, 20, 4, 0, 256)
    k(f"v_mov_b32 v2, s10\nv_mov_b32 v3, {WS_DBG + 4*idx}\nv_mov_b32 v4, {1000+idx}\nv_mov_b32 v5, 60")
    k("s_mov_b64 exec, 1\nbuffer_store_dword v2, v3, s[16:19], 0 offen\nbuffer_store_dword v4, v5, s[20:23], 0 offen\ns_mov_b64 exec, -1")
    if final:
        k(f"s_waitcnt vmcnt(0)\nv_lshlrev_b32 v6, 2, v0\nv_add_u32 v7, {WS_DBG}, v6\nbuffer_load_dword v8, v7, s[16:19], 0 offen sc1\ns_waitcnt vmcnt(0)")
        k(f"v_cmp_gt_u32 vcc, {n}, v0\nv_mov_b32 v9, 0x4000\nv_cndmask_b32 v6, v9, v6, vcc\nbuffer_store_dword v8, v6, s[20:23], 0 offen")
    k(f"{name}_end:\ns_endpgm")
    return k
t, ks = gen.make(False)
st = [stampk(f"s{i}_kernel", i, final=(i == len(ks)), n=len(ks) + 1) for i in range(len(ks) + 1)]
la = []
for i, q in enumerate(ks): la += [st[i], q]
la.append(st[-1])
open("v_tl.s", "w").write(build(st + ks, la, header=gen.HDR))
```

```python
from common import *
from k1 import t_dma_setup, t_swz_read_setup, f2u
from k4 import ij_map, interleave, C0, C1
OOB = 0x40000000
sW, sLW, SRD_WS = 20, 23, 16
ws = S4(SRD_WS)

def poll(k, name, loads, regs_check, sCnt=52, tmp=9, first_wait=None):
    def check():
        r = list(regs_check); o = []
        if len(r) == 1: return [f"v_cmp_eq_u32 vcc, -1, v{r[0]}"]
        cur = r.pop(0)
        while r:
            if len(r) >= 2: o.append(f"v_max3_u32 v{tmp}, v{cur}, v{r[0]}, v{r[1]}"); r = r[2:]
            else: o.append(f"v_max_u32 v{tmp}, v{cur}, v{r[0]}"); r = r[1:]
            cur = tmp
        return o + [f"v_cmp_eq_u32 vcc, -1, v{tmp}"]
    if first_wait is None:
        for x in loads: k(x)
    k(f"s_mov_b32 s{sCnt}, 0x20000\ns_waitcnt vmcnt({first_wait or 0})")
    for x in check(): k(x)
    k(f"s_cbranch_vccnz {name}\n{name}_ok:")
    t = [f"{name}:"] + list(loads) + ["s_waitcnt vmcnt(0)"] + check()
    t += [f"s_sub_u32 s{sCnt}, s{sCnt}, 1", f"s_cbranch_vccz {name}_ok", f"s_cmp_eq_u32 s{sCnt}, 0", f"s_cbranch_scc1 {name}_ok", f"s_branch {name}"]
    k.tail += t
def set_flag(k, sOff):
    k(f"s_waitcnt vmcnt(0)\nv_mov_b32 v8, 0\ns_mov_b64 exec, 1")
    k(f"buffer_store_dword v8, v8, {ws}, s{sOff} offen sc1\ns_mov_b64 exec, -1")

def gelu4(a, pre, sC, t):
    o = list(pre)
    for h in range(2): o.append(f"v_pk_mul_f32 {vr(t+2*h,2)}, {vr(a+2*h,2)}, {vr(a+2*h,2)}")
    for h in range(2): o.append(f"v_pk_fma_f32 {vr(t+2*h,2)}, {vr(t+2*h,2)}, s[{sC}:{sC+1}], s[{sC}:{sC+1}] op_sel:[0,0,1] op_sel_hi:[1,0,1]")
    for h in range(2): o.append(f"v_pk_mul_f32 {vr(t+2*h,2)}, {vr(t+2*h,2)}, {vr(a+2*h,2)}")
    for e in range(4): o.append(f"v_exp_f32 v{t+e}, v{t+e}")
    for h in range(2): o.append(f"v_pk_add_f32 {vr(t+2*h,2)}, {vr(t+2*h,2)}, 1.0 op_sel_hi:[1,0]")
    for e in range(4): o.append(f"v_rcp_f32 v{t+e}, v{t+e}")
    for h in range(2): o.append(f"v_pk_mul_f32 {vr(a+2*h,2)}, {vr(a+2*h,2)}, {vr(t+2*h,2)}")
    return o
def finish_stats(k, S_, n, vR, vM):
    k(f"s_mov_b32 s38, {f2u(1.0/n)}\nv_mul_f32 v{vM}, s38, v{S_}\nv_mul_f32 v{vR}, s38, v{S_+1}\nv_fma_f32 v{vR}, -v{vM}, v{vM}, v{vR}")
    k(f"v_max_f32 v{vR}, 0, v{vR}\nv_add_f32 v{vR}, {f2u(1e-5)}, v{vR}\nv_rsq_f32 v{vR}, v{vR}")

class Mega:
    def __init__(self, name, phases, stamps=False, li=3, lead=0):
        self.name, self.ph, self.li, self.lead = name, phases, li, lead
        self.k = K(name, 256, 512, lds=163840)
        self.k.tail = []
        self.st = Stamps(self.k, stamps)
        self.kidx = int(phases[0]) - 1
    sI, sJ = 21, 22
    sMT, sMW, sMW5, sE = 31, 32, 33, 34
    ACC, FR0, Z1 = 16, 88, 176
    XR = X_BASE
    XC = X_BASE + 1024
    XS = X_BASE + 2304
    def common45(self):
        k = self.k
        ij_map(k, self.sI, self.sJ, self.li)
        k(f"s_lshl_b32 s{self.sMT}, s{sLW}, 12\ns_add_u32 s{self.sMW}, s{self.sMT}, {W_BASE}")
        k(f"s_and_b32 s39, s{sLW}, 1\ns_lshl_b32 s39, s39, 10\ns_add_u32 s{self.sMW5}, s39, {W_BASE+16384}")
        k(f"s_cmp_lt_u32 s{sLW}, 2\ns_cselect_b64 s[{self.sE}:{self.sE+1}], -1, 0\ns_cselect_b64 s[{self.sE+2}:{self.sE+3}], 0, -1")
        k(f"s_mov_b32 s46, {f2u(C1)}\ns_mov_b32 s47, {f2u(C0)}")
        k("v_lshlrev_b32 v3, 4, v1")
        k(f"s_lshl_b32 s48, s{self.sI}, 2\ns_add_u32 s48, s48, s{sLW}\ns_mul_i32 s48, s48, {2*18432}\ns_add_u32 s48, s48, {WS_H}")
        k(f"s_mul_i32 s38, s{self.sJ}, {18*9216}\ns_add_u32 s38, s38, {WS_WINF}\ns_add_u32 s49, s38, s{self.sMT}\ns_add_u32 s53, s38, s39")
    def dma4T(self, gs):
        k = self.k; s, slot = gs % 9, gs % 4
        fl = " sc1" if "3" in self.ph else ""
        k(f"s_add_u32 s28, s48, {2048*s}\ns_add_u32 s29, s48, {2048*s + 18432 - 2048}\ns_add_u32 m0, s{self.sMT}, {slot*T_SLOT}")
        for q in range(4): k(f"buffer_load_dwordx4 v3, {ws}, s{28 if q < 2 else 29} offen offset:{q*1024}{fl} lds")
    def dma4W(self, gs):
        k = self.k; s, slot = gs % 9, gs % 4
        wo = (16 * 18 * 9216 if gs < 9 else 0) + 18432 * s
        k(f"s_add_u32 s30, s49, {wo}\ns_add_u32 m0, s{self.sMW}, {slot*W_SLOT}\ns_add_u32 s28, s53, {wo + 16384}")
        for n in range(4): k(f"buffer_load_dwordx4 v3, {ws}, s30 offen offset:{n*1024} lds")
        e = self.sE + 2 * (gs & 1)
        k(f"s_add_u32 m0, s{self.sMW5}, {slot*W_SLOT}\ns_mov_b64 exec, s[{e}:{e+1}]")
        k(f"buffer_load_dwordx4 v3, {ws}, s28 offen lds\ns_mov_b64 exec, -1")
    def dma4(self, gs): self.dma4T(gs); self.dma4W(gs)
    def cons4_setup(self):
        k = self.k
        k(f"v_add_u32 v5, {W_BASE}, v3\nv_add_u32 v6, {3*W_SLOT}, v5\nv_add_u32 v4, s{self.sMT}, v3")
    @staticmethod
    def reads4(c, gs, kk, buf):
        slot = gs % 4
        r = [f"ds_read_b128 {vr(c.T(buf,0,tt),4)}, v4 offset:{slot*T_SLOT + tt*2048 + kk*1024}" for tt in range(2)]
        for ft in range(9):
            o = (slot if slot < 3 else 0) * W_SLOT + kk * 9216 + ft * 1024
            r.append(f"ds_read_b128 {vr(c.W(buf,0,ft),4)}, v{5 + (1 if slot == 3 else 0)} offset:{o}")
        return r
    def p4B(self):
        k, st, sI, sJ = self.k, self.st, self.sI, self.sJ
        c = Cons(k, 2, 9, 1, self.ACC, self.FR0, "W", self.reads4, rdgaps=11)
        for s in range(3): self.dma4(s)
        self.cons4_setup()
        k("s_waitcnt vmcnt(17)\ns_barrier")
        self.dma4(3)
        for s in range(9):
            k(f"s_waitcnt vmcnt(17)\ns_barrier")
            st.tr(1 + s)
            self.dma4(s + 4)
        RR, NM, CS = 212, 10, 132
        k(f"s_lshl_b32 s38, s{sLW}, 8\ns_add_u32 s38, s38, {self.XR}\nv_and_b32 v8, 15, v1\nv_lshl_add_u32 v8, v8, 2, s38")
        k(f"v_lshrrev_b32 v9, 4, v1\nv_lshlrev_b32 v9, 4, v9\nv_add_u32 v9, {self.XC}, v9")
        k(f"ds_read2_b32 {vr(RR,2)}, v8 offset0:0 offset1:16\nds_read2_b32 {vr(NM,2)}, v8 offset0:32 offset1:48")
        for ft in range(9): k(f"ds_read_b128 {vr(CS+4*ft,4)}, v9 offset:{64*ft}")
        c.first_reads(9)
        if "5" in self.ph: self.p5B_pre()
        k("s_waitcnt lgkmcnt(11)")
        for ft in range(9):
            for tt in range(2):
                for h in range(2):
                    k(f"v_pk_mul_f32 {vr(c.acc(tt,ft)+2*h,2)}, {vr(CS+4*ft+2*h,2)}, {vr(NM,2)} op_sel:[0,{tt}] op_sel_hi:[1,{tt}]")
        nb = 2 if "5" in self.ph else 0
        for gs in range(9, 18):
            c.stage(gs, gs == 17, vm={9: 17 + nb, 10: 8 + nb, 11: 0}.get(gs), barrier=(gs < 17), post_barrier=(lambda gs=gs: st.tr(1 + gs) if gs < 16 else None))
        TMP = 214
        tiles = [(tt, ft) for tt in range(2) for ft in range(9)]
        if "5" not in self.ph:
            k(f"s_lshl_b32 s42, s{sI}, 4\ns_add_u32 s42, s42, s{sJ}\ns_lshl_b32 s42, s42, 2\ns_add_u32 s42, s42, s{sLW}\ns_mul_i32 s42, s42, 9216\ns_add_u32 s42, s42, {WS_Z1}")
        for q in range(9):
            seqs = []
            for u in range(2):
                tt, ft = tiles[2 * q + u]
                a = c.acc(tt, ft)
                pre = [f"v_pk_mul_f32 {vr(a+2*h,2)}, {vr(a+2*h,2)}, {vr(RR,2)} op_sel:[0,{tt}] op_sel_hi:[1,{tt}]" for h in range(2)]
                sq = gelu4(a, pre, 46, TMP + 4 * u)
                sq += [f"v_cvt_pk_bf16_f32 v{self.Z1+4*q+2*u+h}, v{a+2*h}, v{a+2*h+1}" for h in range(2)]
                seqs.append(sq)
            for x in interleave(*seqs): k(x)
            if "5" not in self.ph:
                k(f"buffer_store_dwordx4 {vr(self.Z1+4*q,4)}, v3, {ws}, s42 offen offset:{(q%4)*1024}")
                if q % 4 == 3: k("s_add_u32 s42, s42, 4096")
        st.tr(18)
    def p4A(self):
        k, st, sI, sJ, name = self.k, self.st, self.sI, self.sJ, self.name
        c = Cons(k, 2, 9, 1, self.ACC, self.FR0, "T", self.reads4, rdgaps=11)
        self.cons4_setup()
        RR, NM, CS, TMP = 176, 184, 192, 204
        k(f"s_lshl_b32 s38, s{sLW}, 8\ns_add_u32 s39, s38, {self.XR}\nv_lshrrev_b32 v8, 4, v1\nv_lshl_add_u32 v14, v8, 4, s39")
        k(f"s_add_u32 s39, s38, {self.XS}\nv_lshl_add_u32 v15, v8, 4, s39")
        k(f"v_and_b32 v13, 15, v1\nv_lshlrev_b32 v13, 2, v13\nv_add_u32 v13, {self.XC+576}, v13")
        ex = []
        for tt in range(2): ex += [f"ds_read_b128 {vr(RR+4*tt,4)}, v14 offset:{64*tt}", f"ds_read_b128 {vr(NM+4*tt,4)}, v14 offset:{128+64*tt}"]
        ex += [f"ds_read_b32 v{CS+ft}, v13 offset:{64*ft}" for ft in range(9)]
        HP, CP = 212, 220
        fl3 = " sc1" if "3" in self.ph else ""
        k(f"s_lshl_b32 s38, s{sI}, 2\ns_add_u32 s38, s38, s{sLW}\ns_lshl_b32 s38, s38, 11\ns_add_u32 s38, s38, {WS_HST}")
        for tt in range(2): k(f"buffer_load_dwordx4 {vr(HP+4*tt,4)}, v3, {ws}, s38 offen offset:{1024*tt}{fl3}")
        k(f"s_mul_i32 s38, s{sJ}, 576\ns_mul_i32 s39, s{sLW}, 288\ns_add_u32 s38, s38, s39\ns_cmp_ge_u32 s{sLW}, 2\ns_cselect_b32 s54, {2304*4-576}, 0\ns_add_u32 s38, s38, s54\ns_add_u32 s38, s38, {WS_CS}\ns_add_u32 s54, s38, {4608*4}")
        k(f"v_min_u32 v8, 35, v1\nv_lshlrev_b32 v8, 3, v8")
        k(f"buffer_load_dwordx2 {vr(CP,2)}, v8, {ws}, s38 offen\nbuffer_load_dwordx2 {vr(CP+2,2)}, v8, {ws}, s54 offen")
        k(f"s_add_u32 s39, s39, {self.XC}\nv_add_u32 v224, s39, v8")
        k(f"s_lshl_b32 s38, s{sLW}, 8\ns_add_u32 s38, s38, {self.XR}\nv_bfe_u32 v8, v1, 4, 1\nv_lshlrev_b32 v8, 6, v8\nv_and_b32 v9, 7, v1\nv_lshl_add_u32 v8, v9, 3, v8\nv_add_u32 v225, s38, v8")
        k(f"s_mov_b32 s54, {f2u(1.0/576)}\ns_mov_b32 s55, {f2u(1e-5)}")
        m1 = ["s_waitcnt vmcnt(0)"]
        m1 += [f"v_add_f32_dpp v{HP+e}, v{HP+e}, v{HP+e} row_ror:8 row_mask:0xf bank_mask:0xf" for e in range(8)]
        m1 += [f"v_add_f32 v{CP}, v{CP}, v{CP+2}", f"v_add_f32 v{CP+1}, v{CP+1}, v{CP+3}"]
        m1 += [f"v_permlane16_swap_b32 v{HP+e}, v{HP+4+e}" for e in range(4)]
        m1 += [f"ds_write_b64 v224, {vr(CP,2)}"]
        m1 += [f"v_add_f32 v{HP+e}, v{HP+e}, v{HP+4+e}" for e in range(4)]
        m1 += [f"v_mov_b32 v{HP+4+e}, v{HP+e}" for e in range(4)]
        m2 = [f"v_permlane32_swap_b32 v{HP+e}, v{HP+4+e}" for e in range(4)]
        m2 += [f"v_add_f32 v{HP+e}, v{HP+e}, v{HP+4+e}" for e in range(4)]
        m2 += [f"v_mul_f32 v{HP+6+e}, s54, v{HP+2*e}" for e in range(2)] + [f"v_mul_f32 v{HP+4+e}, s54, v{HP+2*e+1}" for e in range(2)]
        m2 += [f"v_fma_f32 v{HP+4+e}, -v{HP+6+e}, v{HP+6+e}, v{HP+4+e}" for e in range(2)] + [f"v_max_f32 v{HP+4+e}, 0, v{HP+4+e}" for e in range(2)]
        m2 += [f"v_add_f32 v{HP+4+e}, s55, v{HP+4+e}" for e in range(2)] + [f"v_rsq_f32 v{HP+4+e}, v{HP+4+e}" for e in range(2)] + [f"v_sub_f32 v{HP+6+e}, 0, v{HP+6+e}" for e in range(2)]
        m2 += [f"ds_write_b64 v225, {vr(HP+4,2)}", f"ds_write_b64 v225, {vr(HP+6,2)} offset:128"]
        k("s_barrier")
        st.tr(1)
        c.first_reads(0)
        for s in range(9):
            c.stage(s, s == 8, zero_c=(s == 0), extraA=(m1 if s == 2 else ()), extraB=(ex if s == 8 else m2 if s == 2 else ()), post_barrier=(lambda s=s: st.tr(2 + s)))
        k("s_waitcnt lgkmcnt(0)")
        SUM, SQ = 88, 96
        tiles = [(tt, ft) for ft in range(9) for tt in range(2)]
        for q in range(9):
            seqs = []
            for u in range(2):
                tt, ft = tiles[2 * q + u]
                a = c.acc(tt, ft)
                cp, hs = CS + (ft & ~1), ft & 1
                pre = [f"v_pk_fma_f32 {vr(a+2*h,2)}, {vr(NM+4*tt+2*h,2)}, {vr(cp,2)}, {vr(a+2*h,2)} op_sel:[0,{hs},0] op_sel_hi:[1,{hs},1]" for h in range(2)]
                pre += [f"v_pk_mul_f32 {vr(a+2*h,2)}, {vr(a+2*h,2)}, {vr(RR+4*tt+2*h,2)}" for h in range(2)]
                sq = gelu4(a, pre, 46, TMP + 4 * u)
                for h in range(2):
                    if ft == 0: sq.append(f"v_pk_mul_f32 {vr(SQ+4*tt+2*h,2)}, {vr(a+2*h,2)}, {vr(a+2*h,2)}")
                    else: sq.append(f"v_pk_fma_f32 {vr(SQ+4*tt+2*h,2)}, {vr(a+2*h,2)}, {vr(a+2*h,2)}, {vr(SQ+4*tt+2*h,2)}")
                    if ft == 1: sq.append(f"v_pk_add_f32 {vr(SUM+4*tt+2*h,2)}, {vr(a+2*h,2)}, {vr(c.acc(tt,0)+2*h,2)}")
                    elif ft > 1: sq.append(f"v_pk_add_f32 {vr(SUM+4*tt+2*h,2)}, {vr(SUM+4*tt+2*h,2)}, {vr(a+2*h,2)}")
                seqs.append(sq)
            for x in interleave(*seqs): k(x)
        Y, Z = 104, 112
        dm = "row_mask:0xf"
        for si, X in enumerate((SUM, SQ)):
            for r in range(4): k(f"v_add_f32_dpp v{Y+4*si+r}, v{X+r}, v{X+r} row_ror:8 {dm} bank_mask:0x3")
            for r in range(4): k(f"v_add_f32_dpp v{Y+4*si+r}, v{X+4+r}, v{X+4+r} row_ror:8 {dm} bank_mask:0xc")
        for si in range(2):
            for q in range(2): k(f"v_add_f32_dpp v{Z+2*si+q}, v{Y+4*si+q}, v{Y+4*si+q} row_shl:4 {dm} bank_mask:0x5")
        for si in range(2):
            for q in range(2): k(f"v_add_f32_dpp v{Z+2*si+q}, v{Y+4*si+2+q}, v{Y+4*si+2+q} row_shr:4 {dm} bank_mask:0xa")
        for perm in ("[1,0,3,2]", "[2,3,0,1]"):
            for e in range(4): k(f"v_add_f32_dpp v{Z+e}, v{Z+e}, v{Z+e} quad_perm:{perm} {dm} bank_mask:0xf")
        k(f"v_cndmask_b32 v{Y}, v{Z}, v{Z+1}, vcc\nv_cndmask_b32 v{Y+1}, v{Z+2}, v{Z+3}, vcc\nv_and_b32 v{Y+1}, 0x7fffffff, v{Y+1}")
        k(f"buffer_store_dwordx2 {vr(Y,2)}, v12, {ws}, s43 offen sc1")
        st.tr(11)
        PL, P = 104, 128
        fl = " sc1" if "5" in self.ph else ""
        k(f"s_add_u32 s43, s42, 4096\ns_add_u32 s50, s42, 8192\ns_add_u32 s51, s42, 12288")
        pl = [f"buffer_load_dwordx2 {vr(PL+2*q,2)}, v11, {ws}, s{[42,43,50,51][q>>1]} offen offset:{2048*(q&1)} sc1" for q in range(8)]
        def norm(fts):
            for ft in fts:
                o = P + 4 * ft
                for tt in range(2):
                    a = c.acc(tt, ft)
                    for h in range(2): k(f"v_pk_fma_f32 {vr(a+2*h,2)}, {vr(a+2*h,2)}, {vr(RR+4*tt+2*h,2)}, {vr(NM+4*tt+2*h,2)}")
                for tt in range(2):
                    a = c.acc(tt, ft)
                    for h in range(2): k(f"v_cvt_pk_bf16_f32 v{o+2*tt+h}, v{a+2*h}, v{a+2*h+1}")
                k(f"v_permlane32_swap_b32 v{o}, v{o+2}\nv_permlane32_swap_b32 v{o+1}, v{o+3}\nv_permlane16_swap_b32 v{o}, v{o+2}\nv_permlane16_swap_b32 v{o+1}, v{o+3}")
                k(f"buffer_store_dwordx4 {vr(o,4)}, v3, {ws}, s42 offen offset:{(ft%4)*1024}{fl}")
                if ft % 4 == 3: k("s_add_u32 s42, s42, 4096")
        ntile = {12: (0, 2), 13: (2, 4), 14: (4, 7), 15: (7, 9)}
        for bar in range(9, 17):
            vm = {12: 25, 13: 17 + 2, 14: 17 + 4, 15: 8 + 7, 16: 7}.get(bar)
            if vm is not None: k(f"s_waitcnt vmcnt({vm})")
            k("s_barrier")
            if bar == 11:
                for x in pl: k(x)
            if bar + 4 <= 17: self.dma4(bar + 4)
            if bar == 11:
                poll(k, f"{name}_zpoll", pl, [PL + 1 + 2 * q for q in range(8)], first_wait=8)
                st.tr(12)
                for st_ in (2, 4, 8):
                    for q in range(0, 16, 2 * st_):
                        for e in range(2): k(f"v_add_f32 v{PL+q+e}, v{PL+q+e}, v{PL+q+st_+e}")
                k(f"v_mov_b32 v{PL+2}, v{PL}\nv_mov_b32 v{PL+3}, v{PL+1}\nv_permlane32_swap_b32 v{PL+2}, v{PL}\nv_permlane32_swap_b32 v{PL+3}, v{PL+1}\nv_add_f32 v{PL}, v{PL}, v{PL+2}\nv_add_f32 v{PL+1}, v{PL+1}, v{PL+3}")
                finish_stats(k, PL, 2304, 9, 10)
                k(f"v_mul_f32 v10, v10, v9\nv_sub_f32 v10, 0, v10")
                k("ds_write_b32 v7, v9\nds_write_b32 v7, v10 offset:128")
                for tt in range(2): k(f"ds_read_b128 {vr(RR+4*tt,4)}, v15 offset:{64*tt}\nds_read_b128 {vr(NM+4*tt,4)}, v15 offset:{128+64*tt}")
                k(f"s_lshl_b32 s42, s{sJ}, 6\ns_lshl_b32 s38, s{sI}, 2\ns_add_u32 s42, s42, s38\ns_add_u32 s42, s42, s{sLW}\ns_lshl_b32 s43, s42, 2\ns_add_u32 s43, s43, {WS_FL4}\ns_mul_i32 s42, s42, 9216\ns_add_u32 s42, s42, {WS_Z2}")
                st.tr(13)
            if bar in ntile:
                if bar == 12: k("s_waitcnt lgkmcnt(0)")
                norm(range(*ntile[bar]))
        st.tr(14)
    def p4A_setup(self):
        k, sI, sJ = self.k, self.sI, self.sJ
        k("v_and_b32 v8, 1, v1\nv_bfe_u32 v9, v1, 3, 1\nv_lshl_add_u32 v12, v9, 4, v8\nv_lshrrev_b32 v9, 4, v1\nv_lshl_add_u32 v12, v9, 2, v12\nv_bfe_u32 v9, v1, 2, 1\nv_lshl_add_u32 v12, v9, 1, v12\nv_lshlrev_b32 v12, 3, v12")
        k(f"v_and_b32 v9, 2, v1\nv_cmp_eq_u32 vcc, 0, v9\nv_mov_b32 v9, {OOB}\nv_cndmask_b32 v12, v9, v12, vcc\nv_cmp_eq_u32 vcc, 1, v8")
        k(f"s_lshl_b32 s42, s{sI}, 14\ns_lshl_b32 s38, s{sLW}, 8\ns_add_u32 s42, s42, s38\ns_add_u32 s42, s42, {WS_ZST}\ns_lshl_b32 s43, s{sJ}, 10\ns_add_u32 s43, s43, s42")
        k(f"v_and_b32 v7, 31, v1\nv_lshlrev_b32 v11, 3, v7\nv_lshrrev_b32 v9, 5, v1\nv_lshl_add_u32 v11, v9, 10, v11")
        k(f"s_add_u32 s38, s38, {self.XS}\nv_lshl_add_u32 v7, v7, 2, s38")
    def p5A(self):
        k, st, sI, sJ, name, lead = self.k, self.st, self.sI, self.sJ, self.name, self.lead
        NST = 32
        sT, sT2, sF, sF5, sCNT = 28, 29, 30, 44, 43
        set_flag(k, 43)
        t_dma_setup(k, 4, 5, 4096)
        k(f"v_subrev_u32 v5, 1024, v5\nv_lshlrev_b32 v6, 2, v1")
        k(f"s_lshl_b32 s38, s{sI}, 19\ns_lshl_b32 s39, s{sLW}, 17\ns_add_u32 s{sT}, s38, s39\ns_add_u32 s{sT2}, s{sT}, {65536-2048}")
        k(f"s_mul_i32 s38, s{sJ}, {64*9216}\ns_add_u32 s38, s38, {WS_Z2}\ns_add_u32 s{sF}, s38, s{self.sMT}")
        k(f"s_and_b32 s39, s{sLW}, 1\ns_lshl_b32 s39, s39, 10\ns_add_u32 s{sF5}, s38, s39\ns_add_u32 s{sF5}, s{sF5}, 16384")
        k(f"s_add_u32 s45, s{sI}, s{sJ}\ns_and_b32 s45, s45, 3\ns_mov_b32 s46, {lead*128}\ns_mov_b32 s47, {lead*18432}")
        k(f"s_lshl_b32 s42, s{sJ}, 8\ns_add_u32 s42, s42, {WS_FL4}")
        srd(k, 8, 4, 0, S * S * 2)
        def dT(s):
            slot = (s + 2) % 4
            k(f"s_cmp_eq_u32 s45, {s%4}\ns_cselect_b32 s38, s46, 0\ns_add_u32 s48, s{sT}, s38\ns_add_u32 s49, s{sT2}, s38\ns_add_u32 m0, s{self.sMT}, {slot*T_SLOT}\ns_add_u32 s{sT}, s{sT}, 128")
            for q in range(4): k(f"buffer_load_dwordx4 v{4+(q&1)}, s[8:11], s{48 if q < 2 else 49} offen offset:{q*1024} lds")
            k(f"s_add_u32 s{sT2}, s{sT2}, 128")
        def dF(s):
            slot = (s + 2) % 4
            k(f"s_cmp_eq_u32 s45, {s%4}\ns_cselect_b32 s39, s47, 0\ns_add_u32 s50, s{sF}, s39\ns_add_u32 s51, s{sF5}, s39\ns_add_u32 m0, s{self.sMW}, {slot*W_SLOT}\ns_add_u32 s{sF}, s{sF}, 18432")
            for n in range(4): k(f"buffer_load_dwordx4 v3, {ws}, s50 offen offset:{n*1024} sc1 lds")
            e = self.sE + 2 * (s & 1)
            k(f"s_add_u32 m0, s{self.sMW5}, {slot*W_SLOT}\ns_mov_b64 exec, s[{e}:{e+1}]")
            k(f"buffer_load_dwordx4 v3, {ws}, s51 offen sc1 lds\ns_mov_b64 exec, -1\ns_add_u32 s{sF5}, s{sF5}, 18432")
        for s in range(3): dT(s)
        poll(k, f"{name}_f4poll", [f"buffer_load_dword v10, v6, {ws}, s42 offen sc1"], [10])
        st.tr(15)
        for s in range(3): dF(s)
        k("s_waitcnt vmcnt(9)\ns_barrier")
        st.tr(16)
        dT(3); dF(3)
        def lstage(s, vm=None):
            if vm is None: vm = 17 if s + 3 < NST else (8 if s + 2 < NST else 0)
            k(f"s_waitcnt vmcnt({vm})\ns_barrier")
            if s + 4 < NST: dT(s + 4); dF(s + 4)
        lstage(0, 12)
        for s in range(1, 4): lstage(s)
        k(f"s_mov_b32 s{sCNT}, 6")
        k(f"{name}_l5loop:")
        k(f"s_cmp_le_u32 s{sCNT}, {lead//4}\ns_cselect_b32 s46, {((lead-32)*128) & 0xffffffff}, s46\ns_cselect_b32 s47, {((lead-32)*18432) & 0xffffffff}, s47")
        for s in range(4, 8): lstage(s)
        k(f"s_sub_u32 s{sCNT}, s{sCNT}, 1\ns_cmp_lg_u32 s{sCNT}, 0\ns_cbranch_scc1 {name}_l5loop")
        if "6" in self.ph:
            self.p6A_setup()
            lstage(28); lstage(29); self.dma6W(0); lstage(30, 5); self.dma6W(1)
            k("s_barrier")
        else:
            for s in range(28, 31): lstage(s)
        st.tr(17)
    def p5B_pre(self):
        k = self.k
        srd(k, 24, 6, 0, S * 2)
        k(f"s_lshl_b32 s38, s{self.sI}, 8\ns_lshl_b32 s39, s{sLW}, 6\ns_add_u32 s38, s38, s39\nv_and_b32 v12, 15, v1\nv_lshlrev_b32 v12, 1, v12")
        k(f"buffer_load_ushort v14, v12, s[24:27], s38 offen\nbuffer_load_ushort v15, v12, s[24:27], s38 offen offset:32")
    def p5B(self):
        k, st, sI, sJ, name = self.k, self.st, self.sI, self.sJ, self.name
        NST, ACC, Z1, sCNT = 32, self.ACC, self.Z1, 43
        t_swz_read_setup(k, 4, 7, sLW, t0=10)
        def reads(c, s, kk, buf):
            slot = (s + 2) % 4
            r = [f"ds_read_b128 {vr(c.T(buf,0,tt),4)}, v{4 if kk == 0 else 7} offset:{slot*T_SLOT + tt*2048}" for tt in range(2)]
            for ft in range(9):
                o = (slot if slot < 3 else 0) * W_SLOT + kk * 9216 + ft * 1024
                r.append(f"ds_read_b128 {vr(c.W(buf,0,ft),4)}, v{5 + (1 if slot == 3 else 0)} offset:{o}")
            return r
        c = Cons(k, 2, 9, 1, ACC, self.FR0, "W", reads, rdgaps=11)
        k("s_waitcnt vmcnt(0)\nv_lshlrev_b32 v14, 16, v14\nv_lshlrev_b32 v15, 16, v15")
        for tt in range(2):
            for r in range(36): k(f"v_mov_b32 v{ACC+tt*36+r}, v{14+tt}")
        if "6" in self.ph: self.p6B_pre()
        k("s_barrier")
        c.first_reads(0)
        k(f"s_mov_b32 s{sCNT}, 7")
        k(f"{name}_c5loop:")
        for s in range(4): c.stage(s, False)
        k(f"s_sub_u32 s{sCNT}, s{sCNT}, 1\ns_cmp_lg_u32 s{sCNT}, 0\ns_cbranch_scc1 {name}_c5loop")
        for s in range(28, 32): c.stage(s, s == 31, barrier=(s < 31 or "6" in self.ph))
        st.tr(19)
        P = 88
        fl = " sc1" if "6" in self.ph else ""
        k(f"s_lshl_b32 s38, s{sI}, 2\ns_add_u32 s38, s38, s{sLW}\ns_lshl_b32 s48, s38, 6\ns_lshl_b32 s39, s{sJ}, 2\ns_add_u32 s48, s48, s39\ns_add_u32 s48, s48, {WS_FL5}\ns_mul_i32 s38, s38, {2*72*1024}")
        k(f"s_lshr_b32 s39, s{sJ}, 1\ns_mul_i32 s39, s39, 9216\ns_add_u32 s38, s38, s39\ns_add_u32 s38, s38, {WS_U}")
        k(f"s_add_u32 s39, s38, {72*1024}\ns_add_u32 s43, s38, 4096\ns_add_u32 s44, s39, 4096\ns_add_u32 s45, s38, 8192\ns_add_u32 s46, s39, 8192")
        for e in range(36):
            a = ACC + 2 * e
            t = 8 + 2 * (e % 2)
            k(f"v_lshlrev_b32 v{t}, 16, v{Z1+e}\nv_and_b32 v{t+1}, 0xffff0000, v{Z1+e}")
            k(f"v_pk_mul_f32 {vr(a,2)}, {vr(a,2)}, {vr(t,2)}")
            if e > 0: k(f"v_cvt_pk_bf16_f32 v{P+e-1}, v{a-2}, v{a-1}")
        k(f"v_cvt_pk_bf16_f32 v{P+35}, v{ACC+70}, v{ACC+71}")
        k(f"s_bitcmp1_b32 s{sJ}, 0\ns_cbranch_scc1 {name}_odd")
        for tt, (b0, b1) in enumerate(((38, 43), (39, 44))):
            for p in range(4): k(f"buffer_store_dwordx4 {vr(P+tt*18+4*p,4)}, v3, {ws}, s{b0} offen offset:{p*1024}{fl}")
            k(f"buffer_store_dwordx2 {vr(P+tt*18+16,2)}, v3, {ws}, s{b1} offen{fl}")
        k(f"s_branch {name}_ustored")
        k(f"{name}_odd:")
        for tt, (b1, b2) in enumerate(((43, 45), (44, 46))):
            k(f"buffer_store_dwordx2 {vr(P+tt*18,2)}, v3, {ws}, s{b1} offen offset:8{fl}")
            for p in range(3): k(f"buffer_store_dwordx4 {vr(P+tt*18+2+4*p,4)}, v3, {ws}, s{b1} offen offset:{(p+1)*1024}{fl}")
            k(f"buffer_store_dwordx4 {vr(P+tt*18+14,4)}, v3, {ws}, s{b2} offen{fl}")
        k(f"{name}_ustored:")
    RES = 222
    def rb_map(self, sRB, sB):
        k = self.k
        k(f"s_and_b32 s38, s2, 3\ns_lshl_b32 s38, s38, 3\ns_bfe_u32 s39, s2, 0x30003\ns_add_u32 s{sRB}, s38, s39")
        k(f"s_bfe_u32 s38, s2, 0x10002\ns_lshl_b32 s38, s38, 2\ns_lshr_b32 s39, s2, 6\ns_add_u32 s{sB}, s38, s39")
    def p6A_setup(self):
        k = self.k
        self.rb_map(24, 25)
        k(f"s_mul_i32 s38, s25, {72*5120}\ns_add_u32 s38, s38, {WS_WOUTF}\ns_mul_i32 s12, s{sLW}, 5120\ns_add_u32 s26, s38, s12\ns_add_u32 s27, s26, 4096\ns_add_u32 s12, s12, {W_BASE}")
        k(f"s_lshl_b32 s13, s24, 2\ns_add_u32 s13, s13, s{sLW}\ns_mul_i32 s13, s13, {72*1024}\ns_add_u32 s13, s13, {WS_U}")
        k(f"s_lshl_b32 s14, s24, 7\ns_add_u32 s14, s14, {WS_FL5}\nv_and_b32 v6, 31, v1\nv_lshlrev_b32 v6, 2, v6")
    def dma6W(self, s):
        k = self.k; slot = (s + 2) % 4
        fl = " sc1" if "2" in self.ph else ""
        k(f"s_add_u32 m0, s12, {slot*20480}")
        for n in range(4): k(f"buffer_load_dwordx4 v3, {ws}, s26 offen offset:{n*1024}{fl} lds")
        k(f"s_add_u32 m0, s12, {slot*20480 + 4096}\ns_add_u32 s26, s26, 20480")
        k(f"buffer_load_dwordx4 v3, {ws}, s27 offen{fl} lds\ns_add_u32 s27, s27, 20480")
    def dma6T(self, s):
        k = self.k; slot = (s + 2) % 4
        k(f"s_add_u32 m0, s{self.sMT}, {slot*16384}")
        for q in range(4): k(f"buffer_load_dwordx4 v3, {ws}, s13 offen offset:{q*1024} sc1 lds")
        k("s_add_u32 s13, s13, 4096")
    def p6A(self):
        k, st, name = self.k, self.st, self.name
        NST, sCNT = 18, 43
        self.dma6W(2); self.dma6W(3)
        poll(k, f"{name}_f5poll", [f"buffer_load_dword v10, v6, {ws}, s14 offen sc1"], [10])
        st.tr(18)
        for s in range(3): self.dma6T(s)
        k("s_waitcnt vmcnt(8)\ns_barrier")
        st.tr(19)
        self.dma6T(3)
        def lstage(s, vm=None):
            if vm is None: vm = 9 * (min(NST - 1, s + 3) - (s + 1))
            k(f"s_waitcnt vmcnt({vm})\ns_barrier")
            if s + 4 < NST: self.dma6T(s + 4); self.dma6W(s + 4)
        lstage(0, 8); lstage(1, 13)
        k(f"s_mov_b32 s{sCNT}, 3")
        k(f"{name}_l6loop:")
        for s in range(2, 6): lstage(s)
        k(f"s_sub_u32 s{sCNT}, s{sCNT}, 1\ns_cmp_lg_u32 s{sCNT}, 0\ns_cbranch_scc1 {name}_l6loop")
        for s in range(14, NST - 1): lstage(s)
    def p6B_pre(self):
        k, RES = self.k, self.RES
        self.rb_map(24, 25)
        fl = " sc1" if "3" in self.ph else ""
        k(f"s_lshl_b32 s26, s24, 2\ns_add_u32 s26, s26, s{sLW}")
        k(f"s_mul_i32 s12, s26, 18432\ns_add_u32 s12, s12, {WS_H}\ns_lshl_b32 s38, s25, 8\ns_add_u32 s13, s12, s38\ns_add_u32 s13, s13, 16384\ns_lshl_b32 s38, s25, 11\ns_add_u32 s12, s12, s38")
        k(f"v_and_b32 v11, 15, v1\nv_lshrrev_b32 v12, 4, v1\nv_mov_b32 v13, {OOB}\nv_lshlrev_b32 v8, 4, v11\nv_lshl_add_u32 v8, v12, 3, v8\nv_cmp_gt_u32 vcc, 32, v1\nv_cndmask_b32 v8, v13, v8, vcc")
        k(f"buffer_load_dwordx4 {vr(RES,4)}, v3, {ws}, s12 offen{fl}\nbuffer_load_dwordx4 {vr(RES+4,4)}, v3, {ws}, s12 offen offset:1024{fl}\nbuffer_load_dwordx2 {vr(RES+8,2)}, v8, {ws}, s13 offen{fl}")
        k(f"s_mul_i32 s14, s26, {16*1152}\ns_mul_i32 s38, s25, 144\ns_add_u32 s14, s14, s38")
        k(f"v_mul_u32_u24 v8, 1152, v11\nv_and_b32 v9, 1, v12\nv_lshlrev_b32 v9, 5, v9\nv_lshrrev_b32 v10, 1, v12\nv_lshl_add_u32 v9, v10, 4, v9\nv_add_u32 v232, v9, v8")
        k(f"v_lshl_add_u32 v8, v12, 3, v8\nv_cndmask_b32 v233, v13, v8, vcc")
    def p6B(self):
        k, st, name, RES = self.k, self.st, self.name, self.RES
        NST, sCNT, ACC = 18, 43, 16
        set_flag(k, 48)
        k(f"s_load_dwordx2 s[8:9], s[0:1], {KA_OUT}")
        k(f"v_add_u32 v4, s{self.sMT}, v3\nv_add_u32 v6, 61440, v5")
        def reads(c, s, blk, buf):
            slot = (s + 2) % 4
            r = []
            for kb in range(2):
                ks = blk * 2 + kb
                r.append(f"ds_read_b128 {vr(c.T(buf,kb,0),4)}, v4 offset:{slot*16384 + ks*1024}")
                for ft in range(5):
                    o = (slot if slot < 3 else 0) * 20480 + ks * 5120 + 1024 * ft
                    r.append(f"ds_read_b128 {vr(c.W(buf,kb,ft),4)}, v{5 if slot < 3 else 6} offset:{o}")
            return r
        c = Cons(k, 1, 5, 2, ACC, 36, "W", reads, rdgaps=6)
        for r in range(20): k(f"v_mov_b32 v{ACC+r}, 0")
        k("s_waitcnt lgkmcnt(0)\ns_mov_b32 s10, %d\ns_mov_b32 s11, 0x20000" % (S * D * 2))
        k("s_barrier")
        c.first_reads(0)
        k(f"s_mov_b32 s{sCNT}, 4")
        k(f"{name}_c6loop:")
        for s in range(4): c.stage(s, False)
        k(f"s_sub_u32 s{sCNT}, s{sCNT}, 1\ns_cmp_lg_u32 s{sCNT}, 0\ns_cbranch_scc1 {name}_c6loop")
        for s in range(16, NST): c.stage(s, s == NST - 1, barrier=(s < NST - 1))
        st.tr(17)
        P = 40
        for e in range(10): k(f"v_lshlrev_b32 v{60+2*e}, 16, v{RES+e}\nv_and_b32 v{61+2*e}, 0xffff0000, v{RES+e}")
        for e in range(10): k(f"v_pk_add_f32 {vr(ACC+2*e,2)}, {vr(ACC+2*e,2)}, {vr(60+2*e,2)}")
        for e in range(10): k(f"v_cvt_pk_bf16_f32 v{P+e}, v{ACC+2*e}, v{ACC+2*e+1}")
        for p in range(2): k(f"v_permlane16_swap_b32 v{P+4*p}, v{P+4*p+2}\nv_permlane16_swap_b32 v{P+4*p+1}, v{P+4*p+3}")
        k(f"buffer_store_dwordx4 {vr(P,4)}, v232, s[8:11], s14 offen\nbuffer_store_dwordx4 {vr(P+4,4)}, v232, s[8:11], s14 offen offset:64")
        k(f"buffer_store_dwordx2 {vr(P+8,2)}, v233, s[8:11], s14 offen offset:128")
    def build(self):
        k, st, name = self.k, self.st, self.name
        prologue(k, name, 256, sW, st)
        k(f"s_load_dwordx4 s[4:7], s[0:1], {KA_WSP}\ns_load_dwordx2 s[40:41], s[0:1], {KA_WS}")
        wave_lane(k, sW)
        k(f"s_and_b32 s{sLW}, s{sW}, 3")
        self.common45()
        k("s_waitcnt lgkmcnt(0)")
        srd(k, SRD_WS, 40, 0, WS_SIZE)
        k(f"s_cmp_lt_u32 s{sW}, 4\ns_cbranch_scc1 {name}_A")
        self.p4B()
        if "5" in self.ph: self.p5B()
        if "6" in self.ph: self.p6B()
        st.trflush(20, sW, SRD_WS, self.kidx); st.flush(2, sW, SRD_WS, self.kidx)
        k("s_endpgm")
        k(f"{name}_A:")
        self.p4A_setup()
        self.p4A()
        if "5" in self.ph: self.p5A()
        if "6" in self.ph: self.p6A()
        st.trflush(20, sW, SRD_WS, self.kidx); st.flush(2, sW, SRD_WS, self.kidx)
        k(f"{name}_end:\ns_endpgm")
        for x in k.tail: k(x)
        return k
def mega(phases, name=None, **kw): return Mega(name or f"k{phases}_kernel", phases, **kw).build()
if __name__ == "__main__":
    ks = [mega("4", stamps="trace"), mega("45", stamps="trace")]
    open("megat.s", "w").write(build(ks))
    for q in ks: print(q.name, q.stats, q.nops, len(q.lines))
```

```python
from common import *
from relayout import *

def k2(name="k2_kernel", stamps=False, PREF=False):
    VB, KTB = 16384, 40960
    RB, JB = KTB + 2048, KTB + 2048 + 3 * 5120
    k = K(name, 256, 512, lds=JB + 4096)
    st = Stamps(k, stamps)
    sW, sQB, sH = 20, 21, 22
    SRD_WS = 16
    OOB = 0x40000000
    prologue(k, name, 256, sW, st)
    k(f"s_load_dwordx2 s[40:41], s[0:1], {KA_WS}\ns_load_dwordx2 s[4:5], s[0:1], {KA_WSP}\ns_load_dwordx2 s[6:7], s[0:1], {KA_WOUT}")
    wave_lane(k, sW)
    k(f"s_bfe_u32 s{sQB}, s2, 0x30003\ns_and_b32 s38, s2, 7\ns_lshl_b32 s38, s38, 2\ns_lshr_b32 s{sH}, s2, 6\ns_add_u32 s{sH}, s{sH}, s38")
    k(f"s_cmp_eq_u32 s{sQB}, 0\ns_cselect_b32 s23, 32, 0")
    k(f"v_mov_b32 v15, {OOB}")
    for i in range(3):
        k(f"s_lshl_b32 s38, s{sW}, 6\ns_add_u32 s38, s38, {512*i}\nv_add_u32 v11, s38, v1")
        vdiv(k, 12, 13, 11, 19, 1536)
        k(f"v_mul_u32_u24 v14, 9728, v12\nv_lshl_add_u32 v{3+i}, v13, 4, v14")
        k(f"v_cmp_gt_u32 vcc, s23, v12\nv_cndmask_b32 v{3+i}, v{3+i}, v15, vcc")
        if i == 2: k(f"v_cmp_lt_u32 vcc, 63, v12\nv_cndmask_b32 v{3+i}, v{3+i}, v15, vcc")
    k("v_lshlrev_b32 v6, 4, v1\nv_lshlrev_b32 v7, 2, v1")
    k(f"s_lshl_b32 s24, s{sH}, 16\ns_lshl_b32 s25, s{sQB}, 13\ns_add_u32 s24, s24, s25\ns_lshl_b32 s25, s{sW}, 10")
    k(f"s_add_u32 s26, s24, s25\ns_add_u32 s26, s26, {WS_QM}")
    k(f"s_lshl_b32 s25, s{sW}, 11\ns_add_u32 s27, s24, s25\ns_add_u32 s27, s27, {WS_KM - 8192}")
    k(f"s_lshr_b32 s24, s24, 3")
    k(f"s_lshl_b32 s25, s{sW}, 7\ns_add_u32 s28, s24, s25\ns_add_u32 s28, s28, {WS_QT}")
    k(f"s_lshl_b32 s25, s{sW}, 8\ns_add_u32 s29, s24, s25\ns_add_u32 s29, s29, {WS_KT - 1024}")
    k(f"s_mul_i32 s30, s{sQB}, {32*9728}\ns_mul_i32 s25, s{sH}, 304\ns_add_u32 s30, s30, s25\ns_add_u32 s30, s30, {WS_VF - 32*9728}")
    k(f"s_lshl_b32 s25, s{sQB}, 3\ns_add_u32 s31, s25, s{sW}")
    k(f"s_cmp_lt_u32 s31, 4\ns_cselect_b32 s27, {OOB}, s27\ns_cselect_b32 s29, {OOB}, s29")
    k("s_waitcnt lgkmcnt(0)")
    srd(k, SRD_WS, 40, 0, WS_SIZE)
    QM, QT = 16, 20
    ws = S4(SRD_WS)
    k(f"s_lshl_b32 s25, s{sW}, 11\ns_mov_b32 m0, s25")
    k(f"buffer_load_dwordx4 v6, {ws}, s27 offen lds\nbuffer_load_dwordx4 v6, {ws}, s27 offen offset:1024 lds")
    k(f"s_lshl_b32 s25, s{sW}, 8\ns_add_u32 m0, s25, {KTB}")
    k(f"buffer_load_dword v7, {ws}, s29 offen lds")
    k(f"buffer_load_dwordx4 {vr(QM,4)}, v6, {ws}, s26 offen")
    k(f"v_cmp_gt_u32 vcc, 32, v1\nv_cndmask_b32 v8, v15, v7, vcc")
    k(f"buffer_load_dword v{QT}, v8, {ws}, s28 offen")
    k(f"s_lshl_b32 s25, s{sW}, 10")
    for i in range(3):
        k(f"s_add_u32 m0, s25, {VB + 8192*i}")
        k(f"buffer_load_dwordx4 v{3+i}, {ws}, s30 offen lds")
    vKa, vKt, vVa = 3, 4, 5
    KT = 24
    MK = 44
    KF = 52
    VF = 64
    O = 80
    SB = 96
    k(f"v_cndmask_b32 v{QT+1}, 0, 1.0, vcc\nv_lshrrev_b32 v{QT+1}, 16, v{QT+1}\nv_mov_b32 v{QT+2}, 0\nv_mov_b32 v{QT+3}, 0")
    k(f"s_lshl_b32 s25, s{sW}, 10\nv_add_u32 v{vKa}, s25, v6")
    k(f"v_and_b32 v11, 31, v1\nv_lshrrev_b32 v12, 5, v1")
    k(f"s_lshl_b32 s25, s{sW}, 7\ns_add_u32 s25, s25, {KTB}\nv_lshl_add_u32 v{vKt}, v11, 2, s25")
    k(f"s_mul_i32 s25, s{sW}, {4*304}\ns_add_u32 s25, s25, {VB}\nv_min_u32 v13, 18, v11\nv_mul_u32_u24 v14, 304, v12\nv_lshl_add_u32 v13, v13, 4, v14\nv_add_u32 v{vVa}, s25, v13")
    for kt in range(10):
        if kt < 8:
            k(f"s_cmp_lt_u32 s31, {8-kt}\ns_cselect_b32 s25, 0xff7f, 0\nv_mov_b32 v{KT+2*kt+1}, s25")
        else: k(f"v_mov_b32 v{KT+2*kt+1}, 0")
    k(f"v_mov_b32 v{KT+18}, 0")
    k(f"v_lshlrev_b32 v14, 2, v12\nv_sub_u32 v14, v11, v14")
    for r in range(16):
        k(f"v_cmp_gt_i32 s[{44+2*r}:{45+2*r}], {8*(r>>2)+(r&3)}, v14")
    k("v_mov_b32 v9, 0xffff\nv_mov_b32 v10, 0xffff0000")
    for e in range(8):
        k(f"v_cndmask_b32 v13, 0, v9, s[{44+4*e}:{45+4*e}]\nv_cndmask_b32 v{MK+e}, 0, v10, s[{46+4*e}:{47+4*e}]\nv_or_b32 v{MK+e}, v{MK+e}, v13")
    k(f"v_lshrrev_b32 v13, 4, v11\nv_mul_u32_u24 v13, 18432, v13\nv_and_b32 v14, 15, v1\nv_lshl_add_u32 v9, v14, 4, v13")
    k(f"v_lshl_add_u32 v8, v12, 8, v9\nv_cndmask_b32 v9, v15, v9, vcc")
    k(f"s_mul_i32 s32, s31, {2*18*1024}\ns_add_u32 s32, s32, {WS_O}\ns_lshl_b32 s25, s{sH}, 9\ns_add_u32 s33, s32, s25")
    k(f"s_lshr_b32 s25, s{sH}, 2\ns_lshl_b32 s25, s25, 8\ns_add_u32 s34, s32, s25\ns_and_b32 s25, s{sH}, 3\ns_lshl_b32 s25, s25, 2\ns_add_u32 s34, s34, s25\ns_add_u32 s34, s34, 16384")
    DR = 240
    k(f"s_lshl_b32 s35, s2, 1\ns_add_u32 s35, s35, s{sW}\ns_add_u32 s36, s2, 512\ns_cmp_eq_u32 s{sW}, 2\ns_cselect_b32 s35, s36, s35")
    k(f"s_cmp_gt_u32 s{sW}, 2\ns_cselect_b32 s35, 576, s35")
    k(f"s_lshr_b32 s36, s35, 3\ns_and_b32 s37, s35, 7\ns_mul_i32 s25, s37, 144")
    k(f"s_lshr_b32 s76, s36, 2\ns_mul_i32 s76, s76, 144\ns_and_b32 s39, s36, 3\ns_lshl_b32 s39, s39, 5\ns_add_u32 s76, s76, s39")
    k(f"s_mul_i32 s39, s36, 288\ns_sub_u32 s39, s39, {288*64-128}\ns_cmp_ge_u32 s36, 64\ns_cselect_b32 s76, s39, s76\ns_cselect_b32 s39, {128*1152}, 0")
    k(f"s_mul_i32 s76, s76, 1152\ns_add_u32 s76, s76, s25")
    for i in range(5):
        k(f"v_add_u32 v245, {64*i}, v1")
        vdiv(k, 246, 247, 245, 10, 320)
        k(f"v_mul_u32_u24 v{DR+i}, 1152, v246\nv_lshl_add_u32 v{DR+i}, v247, 4, v{DR+i}\nv_lshrrev_b32 v246, 4, v246\nv_mad_u32_u24 v{DR+i}, v246, s39, v{DR+i}")
    k(f"s_mul_i32 s37, s37, 72\ns_add_u32 s37, s37, s36\ns_mul_i32 s37, s37, 5120\ns_add_u32 s37, s37, {WS_WOUTF}")
    k(f"s_min_u32 s77, s{sW}, 2\ns_mul_i32 s77, s77, 5120\ns_add_u32 s77, s77, {RB}")
    srd(k, 8, 4, 0, S * S * 2)
    srd(k, 12, 6, 0, FH * D * 2)
    k(f"s_lshl_b32 s36, s2, 3\ns_add_u32 s36, s36, s{sW}\ns_lshl_b32 s36, s36, 12")
    k("s_waitcnt vmcnt(0)\ns_barrier")
    st(1)
    if PREF:
        k(f"s_mov_b32 m0, {JB}")
        for q in range(4): k(f"buffer_load_dwordx4 v6, s[8:11], s36 offen offset:{1024*q} lds")
    k(f"s_cmp_ge_u32 s35, 576\ns_cbranch_scc1 {name}_nou")
    unit_issue(k, DR, 5, 12, 76, 77)
    k(f"{name}_nou:")
    order = [0, 8, 1, 2, 3, 4, 5, 6, 7]
    for kt in order: k(f"ds_read_b32 v{KT+2*kt}, v{vKt} offset:{128*kt}")
    NB = 3
    for i in range(NB): k(f"ds_read_b128 {vr(KF+4*i,4)}, v{vKa} offset:{1024*order[i]}")
    def Sx(kt): return SB + 16 * kt
    M0, M1 = 10, 11
    def maxes(kt, first):
        s = Sx(kt); out = []
        for q in range(8):
            m = M0 if q % 2 == 0 else M1
            if first and q < 2: out.append(f"v_max_f32 v{m}, v{s+2*q}, v{s+2*q+1}")
            else: out.append(f"v_max3_f32 v{m}, v{s+2*q}, v{s+2*q+1}, v{m}")
        return out
    pend = []
    for i, kt in enumerate(order):
        left = min(NB - 1, 8 - i)
        k(f"s_waitcnt lgkmcnt({left})")
        k(f"v_mfma_f32_32x32x16_bf16 {vr(Sx(kt),16)}, {vr(KF+4*(i%NB),4)}, {vr(QM,4)}, 0")
        for _ in range(min(4, len(pend))): k(pend.pop(0))
        k(f"v_mfma_f32_32x32x16_bf16 {vr(Sx(kt),16)}, {vr(KT+2*kt,4)}, {vr(QT,4)}, {vr(Sx(kt),16)}")
        if i + NB < 9: k(f"ds_read_b128 {vr(KF+4*(i%NB),4)}, v{vKa} offset:{1024*order[i+NB]}")
        for _ in range(min(6, len(pend))): k(pend.pop(0))
        if i == 2:
            pend += [f"v_cndmask_b32 v{Sx(0)+r}, v{Sx(8)+r}, v{Sx(0)+r}, s[{44+2*r}:{45+2*r}]" for r in range(16)] + maxes(0, True)
        elif i > 3: pend += maxes(order[i - 2], False)
    def vread(kt, j, buf): return f"ds_read_b128 {vr(VF+4*buf,4)}, v{vVa} offset:{(4*kt+2*j)*304}"
    for b, (kt, j) in enumerate(((0, 0), (0, 1), (8, 0), (8, 1))): k(vread(kt, j, b))
    for x in pend: k(x)
    for x in maxes(6, False) + maxes(7, False): k(x)
    st(2)
    k(f"v_max_f32 v{M0}, v{M0}, v{M1}\nv_mov_b32 v{M1}, v{M0}\nv_permlane32_swap_b32 v{M1}, v{M0}\nv_max_f32 v{M0}, v{M0}, v{M1}")
    def softmax_tile(kt):
        s = Sx(kt); out = []
        for e in range(8):
            out.append(f"v_pk_add_f32 {vr(s+2*e,2)}, {vr(s+2*e,2)}, {vr(M0,2)} op_sel_hi:[1,0] neg_lo:[0,1] neg_hi:[0,1]")
        seq = []
        seq.append(out[0])
        for e in range(8):
            if e + 1 < 8: seq.append(out[e + 1])
            seq.append(f"v_exp_f32 v{s+2*e}, v{s+2*e}")
            seq.append(f"v_exp_f32 v{s+2*e+1}, v{s+2*e+1}")
            if e > 0: seq.append(f"v_cvt_pk_bf16_f32 v{s+e-1}, v{s+2*e-2}, v{s+2*e-1}")
        seq.append(f"v_cvt_pk_bf16_f32 v{s+7}, v{s+14}, v{s+15}")
        return seq
    for x in softmax_tile(0): k(x)
    s0 = Sx(0)
    for e in range(8): k(f"v_and_b32 v{s0+8+e}, v{MK+e}, v{s0+e}")
    for e in range(8): k(f"v_xor_b32 v{s0+e}, v{s0+8+e}, v{s0+e}")
    mq = [(0, s0 + 8), (1, s0 + 12), (2, s0), (3, s0 + 4)]
    first = True
    nxt = [(kt, j) for kt in range(1, 8) for j in range(2)]
    outstanding = 4
    freeb = []
    for kt in range(1, 9):
        seq = softmax_tile(kt) if kt < 8 else []
        n = len(mq)
        gap = max(1, len(seq) // max(n, 1)) if seq else 0
        pos = 0
        for qi, (b, p) in enumerate(mq):
            k(f"s_waitcnt lgkmcnt({outstanding-1})"); outstanding -= 1
            k(f"v_mfma_f32_32x32x16_bf16 {vr(O,16)}, {vr(VF+4*b,4)}, {vr(p,4)}, {'0' if first else vr(O,16)}")
            first = False
            if nxt:
                t, j = nxt.pop(0); k(vread(t, j, b)); outstanding += 1; freeb.append(b)
            for x in seq[pos:pos + gap]: k(x)
            pos += gap
        for x in seq[pos:]: k(x)
        if kt < 8:
            mq = [(freeb.pop(0), Sx(kt)), (freeb.pop(0), Sx(kt) + 4)]
    st(3)
    k(f"v_rcp_f32 v10, v{O+10}")
    for r in range(0, 10, 2): k(f"v_pk_mul_f32 {vr(O+r,2)}, {vr(O+r,2)}, v[10:11] op_sel_hi:[1,0]")
    for e in range(5): k(f"v_cvt_pk_bf16_f32 v{VF+e}, v{O+2*e}, v{O+2*e+1}")
    k(f"s_cmp_lt_u32 s35, 576\ns_cbranch_scc1 {name}_u2")
    k(f"buffer_store_dwordx4 {vr(VF,4)}, v8, {ws}, s33 offen\nbuffer_store_dword v{VF+4}, v9, {ws}, s34 offen")
    st.flush(5, sW, SRD_WS, 1)
    k("s_endpgm")
    k(f"{name}_u2:")
    k("s_waitcnt vmcnt(0)")
    k(f"buffer_store_dwordx4 {vr(VF,4)}, v8, {ws}, s33 offen\nbuffer_store_dword v{VF+4}, v9, {ws}, s34 offen")
    unit_read(k, SB, 5, 77, t0=12)
    k("s_waitcnt lgkmcnt(0)")
    unit_store(k, SB, 5, 6, SRD_WS, 37)
    st.flush(5, sW, SRD_WS, 1)
    k(f"{name}_end:\ns_endpgm")
    return k
if __name__ == "__main__":
    ks = [k2(stamps=True)]
    ks[0].verbose = True
    open("k2t.s", "w").write(build(ks))
    for q in ks: print(q.name, q.stats, q.nops, len(q.lines))
```

```python
from common import *
from k1 import t_dma_setup, t_swz_read_setup, f2u
from k4 import ij_map, interleave, C0, C1
OOB = 0x40000000
sW, sLW, SRD_WS = 20, 23, 16
ws = S4(SRD_WS)

def poll(k, name, loads, regs_check, sCnt=52, tmp=9, first_wait=None):
    def check():
        r = list(regs_check); o = []
        if len(r) == 1: return [f"v_cmp_eq_u32 vcc, -1, v{r[0]}"]
        cur = r.pop(0)
        while r:
            if len(r) >= 2: o.append(f"v_max3_u32 v{tmp}, v{cur}, v{r[0]}, v{r[1]}"); r = r[2:]
            else: o.append(f"v_max_u32 v{tmp}, v{cur}, v{r[0]}"); r = r[1:]
            cur = tmp
        return o + [f"v_cmp_eq_u32 vcc, -1, v{tmp}"]
    if first_wait is None:
        for x in loads: k(x)
    k(f"s_mov_b32 s{sCnt}, 0x20000\ns_waitcnt vmcnt({first_wait or 0})")
    for x in check(): k(x)
    k(f"s_cbranch_vccnz {name}\n{name}_ok:")
    t = [f"{name}:"] + list(loads) + ["s_waitcnt vmcnt(0)"] + check()
    t += [f"s_sub_u32 s{sCnt}, s{sCnt}, 1", f"s_cbranch_vccz {name}_ok", f"s_cmp_eq_u32 s{sCnt}, 0", f"s_cbranch_scc1 {name}_ok", f"s_branch {name}"]
    k.tail += t
def set_flag(k, sOff, st=None, idx=None):
    k(f"s_waitcnt vmcnt(0)\nv_mov_b32 v8, 0\ns_mov_b64 exec, 1")
    if st: st.tr(idx)
    k(f"buffer_store_dword v8, v8, {ws}, s{sOff} offen sc1\ns_mov_b64 exec, -1")

def gelu4(a, pre, sC, t):
    o = list(pre)
    for h in range(2): o.append(f"v_pk_mul_f32 {vr(t+2*h,2)}, {vr(a+2*h,2)}, {vr(a+2*h,2)}")
    for h in range(2): o.append(f"v_pk_fma_f32 {vr(t+2*h,2)}, {vr(t+2*h,2)}, s[{sC}:{sC+1}], s[{sC}:{sC+1}] op_sel:[0,0,1] op_sel_hi:[1,0,1]")
    for h in range(2): o.append(f"v_pk_mul_f32 {vr(t+2*h,2)}, {vr(t+2*h,2)}, {vr(a+2*h,2)}")
    for e in range(4): o.append(f"v_exp_f32 v{t+e}, v{t+e}")
    for h in range(2): o.append(f"v_pk_add_f32 {vr(t+2*h,2)}, {vr(t+2*h,2)}, 1.0 op_sel_hi:[1,0]")
    for e in range(4): o.append(f"v_rcp_f32 v{t+e}, v{t+e}")
    for h in range(2): o.append(f"v_pk_mul_f32 {vr(a+2*h,2)}, {vr(a+2*h,2)}, {vr(t+2*h,2)}")
    return o
def finish_stats(k, S_, n, vR, vM):
    k(f"s_mov_b32 s38, {f2u(1.0/n)}\nv_mul_f32 v{vM}, s38, v{S_}\nv_mul_f32 v{vR}, s38, v{S_+1}\nv_fma_f32 v{vR}, -v{vM}, v{vM}, v{vR}")
    k(f"v_max_f32 v{vR}, 0, v{vR}\nv_add_f32 v{vR}, {f2u(1e-5)}, v{vR}\nv_rsq_f32 v{vR}, v{vR}")

class Mega:
    def __init__(self, name, phases, stamps=False, li=3, lead=0):
        self.name, self.ph, self.li, self.lead = name, phases, li, lead
        self.k = K(name, 256, 512, lds=163840)
        self.k.tail = []
        self.st = Stamps(self.k, stamps)
        self.kidx = int(phases[0]) - 1
    sI, sJ = 21, 22
    sMT, sMW, sMW5, sE = 31, 32, 33, 34
    ACC, FR0, Z1 = 16, 88, 176
    XR = X_BASE
    XC = X_BASE + 1024
    XS = X_BASE + 2304
    def common45(self):
        k = self.k
        ij_map(k, self.sI, self.sJ, self.li)
        k(f"s_lshl_b32 s{self.sMT}, s{sLW}, 12\ns_add_u32 s{self.sMW}, s{self.sMT}, {W_BASE}")
        k(f"s_and_b32 s39, s{sLW}, 1\ns_lshl_b32 s39, s39, 10\ns_add_u32 s{self.sMW5}, s39, {W_BASE+16384}")
        k(f"s_cmp_lt_u32 s{sLW}, 2\ns_cselect_b64 s[{self.sE}:{self.sE+1}], -1, 0\ns_cselect_b64 s[{self.sE+2}:{self.sE+3}], 0, -1")
        k(f"s_mov_b32 s46, {f2u(C1)}\ns_mov_b32 s47, {f2u(C0)}")
        k("v_lshlrev_b32 v3, 4, v1")
        k(f"s_lshl_b32 s48, s{self.sI}, 2\ns_add_u32 s48, s48, s{sLW}\ns_mul_i32 s48, s48, {2*18432}\ns_add_u32 s48, s48, {WS_H}")
        k(f"s_mul_i32 s38, s{self.sJ}, {18*9216}\ns_add_u32 s38, s38, {WS_WINF}\ns_add_u32 s49, s38, s{self.sMT}\ns_add_u32 s53, s38, s39")
    def dma4T(self, gs):
        k = self.k; s, slot = gs % 9, gs % 4
        fl = " sc1" if "3" in self.ph else ""
        k(f"s_add_u32 s28, s48, {2048*s}\ns_add_u32 s29, s48, {2048*s + 18432 - 2048}\ns_add_u32 m0, s{self.sMT}, {slot*T_SLOT}")
        for q in range(4): k(f"buffer_load_dwordx4 v3, {ws}, s{28 if q < 2 else 29} offen offset:{q*1024}{fl} lds")
    def dma4W(self, gs):
        k = self.k; s, slot = gs % 9, gs % 4
        wo = (16 * 18 * 9216 if gs < 9 else 0) + 18432 * s
        k(f"s_add_u32 s30, s49, {wo}\ns_add_u32 m0, s{self.sMW}, {slot*W_SLOT}\ns_add_u32 s28, s53, {wo + 16384}")
        for n in range(4): k(f"buffer_load_dwordx4 v3, {ws}, s30 offen offset:{n*1024} lds")
        e = self.sE + 2 * (gs & 1)
        k(f"s_add_u32 m0, s{self.sMW5}, {slot*W_SLOT}\ns_mov_b64 exec, s[{e}:{e+1}]")
        k(f"buffer_load_dwordx4 v3, {ws}, s28 offen lds\ns_mov_b64 exec, -1")
    def dma4(self, gs): self.dma4T(gs); self.dma4W(gs)
    def cons4_setup(self):
        k = self.k
        k(f"v_add_u32 v5, {W_BASE}, v3\nv_add_u32 v6, {3*W_SLOT}, v5\nv_add_u32 v4, s{self.sMT}, v3")
    @staticmethod
    def reads4(c, gs, kk, buf):
        slot = gs % 4
        r = [f"ds_read_b128 {vr(c.T(buf,0,tt),4)}, v4 offset:{slot*T_SLOT + tt*2048 + kk*1024}" for tt in range(2)]
        for ft in range(9):
            o = (slot if slot < 3 else 0) * W_SLOT + kk * 9216 + ft * 1024
            r.append(f"ds_read_b128 {vr(c.W(buf,0,ft),4)}, v{5 + (1 if slot == 3 else 0)} offset:{o}")
        return r
    def p4B(self):
        k, st, sI, sJ = self.k, self.st, self.sI, self.sJ
        c = Cons(k, 2, 9, 1, self.ACC, self.FR0, "W", self.reads4, rdgaps=11)
        for s in range(3): self.dma4(s)
        self.cons4_setup()
        k("s_waitcnt vmcnt(17)\ns_barrier")
        self.dma4(3)
        for s in range(9):
            k(f"s_waitcnt vmcnt(17)\ns_barrier")
            st.tr(1 + s)
            self.dma4(s + 4)
        RR, NM, CS = 212, 10, 132
        k(f"s_lshl_b32 s38, s{sLW}, 8\ns_add_u32 s38, s38, {self.XR}\nv_and_b32 v8, 15, v1\nv_lshl_add_u32 v8, v8, 2, s38")
        k(f"v_lshrrev_b32 v9, 4, v1\nv_lshlrev_b32 v9, 4, v9\nv_add_u32 v9, {self.XC}, v9")
        k(f"ds_read2_b32 {vr(RR,2)}, v8 offset0:0 offset1:16\nds_read2_b32 {vr(NM,2)}, v8 offset0:32 offset1:48")
        for ft in range(9): k(f"ds_read_b128 {vr(CS+4*ft,4)}, v9 offset:{64*ft}")
        c.first_reads(9)
        if "5" in self.ph: self.p5B_pre()
        k("s_waitcnt lgkmcnt(11)")
        for ft in range(9):
            for tt in range(2):
                for h in range(2):
                    k(f"v_pk_mul_f32 {vr(c.acc(tt,ft)+2*h,2)}, {vr(CS+4*ft+2*h,2)}, {vr(NM,2)} op_sel:[0,{tt}] op_sel_hi:[1,{tt}]")
        nb = 2 if "5" in self.ph else 0
        for gs in range(9, 18):
            c.stage(gs, gs == 17, vm={9: 17 + nb, 10: 8 + nb, 11: 0}.get(gs), barrier=(gs < 17), post_barrier=(lambda gs=gs: st.tr(1 + gs) if gs < 14 else None))
        TMP = 214
        tiles = [(tt, ft) for tt in range(2) for ft in range(9)]
        if "5" not in self.ph:
            k(f"s_lshl_b32 s42, s{sI}, 4\ns_add_u32 s42, s42, s{sJ}\ns_lshl_b32 s42, s42, 2\ns_add_u32 s42, s42, s{sLW}\ns_mul_i32 s42, s42, 9216\ns_add_u32 s42, s42, {WS_Z1}")
        for q in range(9):
            seqs = []
            for u in range(2):
                tt, ft = tiles[2 * q + u]
                a = c.acc(tt, ft)
                pre = [f"v_pk_mul_f32 {vr(a+2*h,2)}, {vr(a+2*h,2)}, {vr(RR,2)} op_sel:[0,{tt}] op_sel_hi:[1,{tt}]" for h in range(2)]
                sq = gelu4(a, pre, 46, TMP + 4 * u)
                sq += [f"v_cvt_pk_bf16_f32 v{self.Z1+4*q+2*u+h}, v{a+2*h}, v{a+2*h+1}" for h in range(2)]
                seqs.append(sq)
            for x in interleave(*seqs): k(x)
            if "5" not in self.ph:
                k(f"buffer_store_dwordx4 {vr(self.Z1+4*q,4)}, v3, {ws}, s42 offen offset:{(q%4)*1024}")
                if q % 4 == 3: k("s_add_u32 s42, s42, 4096")
        st.tr(18)
    def p4A(self):
        k, st, sI, sJ, name = self.k, self.st, self.sI, self.sJ, self.name
        c = Cons(k, 2, 9, 1, self.ACC, self.FR0, "T", self.reads4, rdgaps=11)
        self.cons4_setup()
        RR, NM, CS, TMP = 176, 184, 192, 204
        k(f"s_lshl_b32 s38, s{sLW}, 8\ns_add_u32 s39, s38, {self.XR}\nv_lshrrev_b32 v8, 4, v1\nv_lshl_add_u32 v14, v8, 4, s39")
        k(f"s_add_u32 s39, s38, {self.XS}\nv_lshl_add_u32 v15, v8, 4, s39")
        k(f"v_and_b32 v13, 15, v1\nv_lshlrev_b32 v13, 2, v13\nv_add_u32 v13, {self.XC+576}, v13")
        ex = []
        for tt in range(2): ex += [f"ds_read_b128 {vr(RR+4*tt,4)}, v14 offset:{64*tt}", f"ds_read_b128 {vr(NM+4*tt,4)}, v14 offset:{128+64*tt}"]
        ex += [f"ds_read_b32 v{CS+ft}, v13 offset:{64*ft}" for ft in range(9)]
        HP, CP = 212, 220
        fl3 = " sc1" if "3" in self.ph else ""
        k(f"s_lshl_b32 s38, s{sI}, 2\ns_add_u32 s38, s38, s{sLW}\ns_lshl_b32 s38, s38, 11\ns_add_u32 s38, s38, {WS_HST}")
        for tt in range(2): k(f"buffer_load_dwordx4 {vr(HP+4*tt,4)}, v3, {ws}, s38 offen offset:{1024*tt}{fl3}")
        k(f"s_mul_i32 s38, s{sJ}, 576\ns_mul_i32 s39, s{sLW}, 288\ns_add_u32 s38, s38, s39\ns_cmp_ge_u32 s{sLW}, 2\ns_cselect_b32 s54, {2304*4-576}, 0\ns_add_u32 s38, s38, s54\ns_add_u32 s38, s38, {WS_CS}\ns_add_u32 s54, s38, {4608*4}")
        k(f"v_min_u32 v8, 35, v1\nv_lshlrev_b32 v8, 3, v8")
        k(f"buffer_load_dwordx2 {vr(CP,2)}, v8, {ws}, s38 offen\nbuffer_load_dwordx2 {vr(CP+2,2)}, v8, {ws}, s54 offen")
        k(f"s_add_u32 s39, s39, {self.XC}\nv_add_u32 v224, s39, v8")
        k(f"s_lshl_b32 s38, s{sLW}, 8\ns_add_u32 s38, s38, {self.XR}\nv_bfe_u32 v8, v1, 4, 1\nv_lshlrev_b32 v8, 6, v8\nv_and_b32 v9, 7, v1\nv_lshl_add_u32 v8, v9, 3, v8\nv_add_u32 v225, s38, v8")
        k(f"s_mov_b32 s54, {f2u(1.0/576)}\ns_mov_b32 s55, {f2u(1e-5)}")
        m1 = ["s_waitcnt vmcnt(0)"]
        m1 += [f"v_add_f32_dpp v{HP+e}, v{HP+e}, v{HP+e} row_ror:8 row_mask:0xf bank_mask:0xf" for e in range(8)]
        m1 += [f"v_add_f32 v{CP}, v{CP}, v{CP+2}", f"v_add_f32 v{CP+1}, v{CP+1}, v{CP+3}"]
        m1 += [f"v_permlane16_swap_b32 v{HP+e}, v{HP+4+e}" for e in range(4)]
        m1 += [f"ds_write_b64 v224, {vr(CP,2)}"]
        m1 += [f"v_add_f32 v{HP+e}, v{HP+e}, v{HP+4+e}" for e in range(4)]
        m1 += [f"v_mov_b32 v{HP+4+e}, v{HP+e}" for e in range(4)]
        m2 = [f"v_permlane32_swap_b32 v{HP+e}, v{HP+4+e}" for e in range(4)]
        m2 += [f"v_add_f32 v{HP+e}, v{HP+e}, v{HP+4+e}" for e in range(4)]
        m2 += [f"v_mul_f32 v{HP+6+e}, s54, v{HP+2*e}" for e in range(2)] + [f"v_mul_f32 v{HP+4+e}, s54, v{HP+2*e+1}" for e in range(2)]
        m2 += [f"v_fma_f32 v{HP+4+e}, -v{HP+6+e}, v{HP+6+e}, v{HP+4+e}" for e in range(2)] + [f"v_max_f32 v{HP+4+e}, 0, v{HP+4+e}" for e in range(2)]
        m2 += [f"v_add_f32 v{HP+4+e}, s55, v{HP+4+e}" for e in range(2)] + [f"v_rsq_f32 v{HP+4+e}, v{HP+4+e}" for e in range(2)] + [f"v_sub_f32 v{HP+6+e}, 0, v{HP+6+e}" for e in range(2)]
        m2 += [f"ds_write_b64 v225, {vr(HP+4,2)}", f"ds_write_b64 v225, {vr(HP+6,2)} offset:128"]
        k("s_barrier")
        st.tr(1)
        c.first_reads(0)
        for s in range(9):
            c.stage(s, s == 8, zero_c=(s == 0), extraA=(m1 if s == 2 else ()), extraB=(ex if s == 8 else m2 if s == 2 else ()), post_barrier=(lambda s=s: st.tr(2 + s)))
        k("s_waitcnt lgkmcnt(0)")
        SUM, SQ = 88, 96
        tiles = [(tt, ft) for ft in range(9) for tt in range(2)]
        for q in range(9):
            seqs = []
            for u in range(2):
                tt, ft = tiles[2 * q + u]
                a = c.acc(tt, ft)
                cp, hs = CS + (ft & ~1), ft & 1
                pre = [f"v_pk_fma_f32 {vr(a+2*h,2)}, {vr(NM+4*tt+2*h,2)}, {vr(cp,2)}, {vr(a+2*h,2)} op_sel:[0,{hs},0] op_sel_hi:[1,{hs},1]" for h in range(2)]
                pre += [f"v_pk_mul_f32 {vr(a+2*h,2)}, {vr(a+2*h,2)}, {vr(RR+4*tt+2*h,2)}" for h in range(2)]
                sq = gelu4(a, pre, 46, TMP + 4 * u)
                for h in range(2):
                    if ft == 0: sq.append(f"v_pk_mul_f32 {vr(SQ+4*tt+2*h,2)}, {vr(a+2*h,2)}, {vr(a+2*h,2)}")
                    else: sq.append(f"v_pk_fma_f32 {vr(SQ+4*tt+2*h,2)}, {vr(a+2*h,2)}, {vr(a+2*h,2)}, {vr(SQ+4*tt+2*h,2)}")
                    if ft == 1: sq.append(f"v_pk_add_f32 {vr(SUM+4*tt+2*h,2)}, {vr(a+2*h,2)}, {vr(c.acc(tt,0)+2*h,2)}")
                    elif ft > 1: sq.append(f"v_pk_add_f32 {vr(SUM+4*tt+2*h,2)}, {vr(SUM+4*tt+2*h,2)}, {vr(a+2*h,2)}")
                seqs.append(sq)
            for x in interleave(*seqs): k(x)
        Y, Z = 104, 112
        dm = "row_mask:0xf"
        for si, X in enumerate((SUM, SQ)):
            for r in range(4): k(f"v_add_f32_dpp v{Y+4*si+r}, v{X+r}, v{X+r} row_ror:8 {dm} bank_mask:0x3")
            for r in range(4): k(f"v_add_f32_dpp v{Y+4*si+r}, v{X+4+r}, v{X+4+r} row_ror:8 {dm} bank_mask:0xc")
        for si in range(2):
            for q in range(2): k(f"v_add_f32_dpp v{Z+2*si+q}, v{Y+4*si+q}, v{Y+4*si+q} row_shl:4 {dm} bank_mask:0x5")
        for si in range(2):
            for q in range(2): k(f"v_add_f32_dpp v{Z+2*si+q}, v{Y+4*si+2+q}, v{Y+4*si+2+q} row_shr:4 {dm} bank_mask:0xa")
        for perm in ("[1,0,3,2]", "[2,3,0,1]"):
            for e in range(4): k(f"v_add_f32_dpp v{Z+e}, v{Z+e}, v{Z+e} quad_perm:{perm} {dm} bank_mask:0xf")
        k(f"v_cndmask_b32 v{Y}, v{Z}, v{Z+1}, vcc\nv_cndmask_b32 v{Y+1}, v{Z+2}, v{Z+3}, vcc\nv_and_b32 v{Y+1}, 0x7fffffff, v{Y+1}")
        k(f"buffer_store_dwordx2 {vr(Y,2)}, v12, {ws}, s43 offen sc1")
        st.tr(11)
        PL, P = 104, 128
        fl = " sc1" if "5" in self.ph else ""
        k(f"s_add_u32 s43, s42, 4096\ns_add_u32 s50, s42, 8192\ns_add_u32 s51, s42, 12288")
        pl = [f"buffer_load_dwordx2 {vr(PL+2*q,2)}, v11, {ws}, s{[42,43,50,51][q>>1]} offen offset:{2048*(q&1)} sc1" for q in range(8)]
        def norm(fts):
            for ft in fts:
                o = P + 4 * ft
                for tt in range(2):
                    a = c.acc(tt, ft)
                    for h in range(2): k(f"v_pk_fma_f32 {vr(a+2*h,2)}, {vr(a+2*h,2)}, {vr(RR+4*tt+2*h,2)}, {vr(NM+4*tt+2*h,2)}")
                for tt in range(2):
                    a = c.acc(tt, ft)
                    for h in range(2): k(f"v_cvt_pk_bf16_f32 v{o+2*tt+h}, v{a+2*h}, v{a+2*h+1}")
                k(f"v_permlane32_swap_b32 v{o}, v{o+2}\nv_permlane32_swap_b32 v{o+1}, v{o+3}\nv_permlane16_swap_b32 v{o}, v{o+2}\nv_permlane16_swap_b32 v{o+1}, v{o+3}")
                k(f"buffer_store_dwordx4 {vr(o,4)}, v3, {ws}, s42 offen offset:{(ft%4)*1024}{fl}")
                if ft % 4 == 3: k("s_add_u32 s42, s42, 4096")
        ntile = {12: (0, 2), 13: (2, 4), 14: (4, 7), 15: (7, 9)}
        for bar in range(9, 17):
            vm = {12: 25, 13: 17 + 2, 14: 17 + 4, 15: 8 + 7, 16: 7}.get(bar)
            if vm is not None: k(f"s_waitcnt vmcnt({vm})")
            k("s_barrier")
            if bar == 11:
                for x in pl: k(x)
            if bar + 4 <= 17: self.dma4(bar + 4)
            if bar == 11:
                poll(k, f"{name}_zpoll", pl, [PL + 1 + 2 * q for q in range(8)], first_wait=8)
                st.tr(12)
                for st_ in (2, 4, 8):
                    for q in range(0, 16, 2 * st_):
                        for e in range(2): k(f"v_add_f32 v{PL+q+e}, v{PL+q+e}, v{PL+q+st_+e}")
                k(f"v_mov_b32 v{PL+2}, v{PL}\nv_mov_b32 v{PL+3}, v{PL+1}\nv_permlane32_swap_b32 v{PL+2}, v{PL}\nv_permlane32_swap_b32 v{PL+3}, v{PL+1}\nv_add_f32 v{PL}, v{PL}, v{PL+2}\nv_add_f32 v{PL+1}, v{PL+1}, v{PL+3}")
                finish_stats(k, PL, 2304, 9, 10)
                k(f"v_mul_f32 v10, v10, v9\nv_sub_f32 v10, 0, v10")
                k("ds_write_b32 v7, v9\nds_write_b32 v7, v10 offset:128")
                for tt in range(2): k(f"ds_read_b128 {vr(RR+4*tt,4)}, v15 offset:{64*tt}\nds_read_b128 {vr(NM+4*tt,4)}, v15 offset:{128+64*tt}")
                k(f"s_lshl_b32 s42, s{sJ}, 6\ns_lshl_b32 s38, s{sI}, 2\ns_add_u32 s42, s42, s38\ns_add_u32 s42, s42, s{sLW}\ns_lshl_b32 s43, s42, 2\ns_add_u32 s43, s43, {WS_FL4}\ns_mul_i32 s42, s42, 9216\ns_add_u32 s42, s42, {WS_Z2}")
            if bar in ntile:
                if bar == 12: k("s_waitcnt lgkmcnt(0)")
                norm(range(*ntile[bar]))
        st.tr(14)
    def p4A_setup(self):
        k, sI, sJ = self.k, self.sI, self.sJ
        k("v_and_b32 v8, 1, v1\nv_bfe_u32 v9, v1, 3, 1\nv_lshl_add_u32 v12, v9, 4, v8\nv_lshrrev_b32 v9, 4, v1\nv_lshl_add_u32 v12, v9, 2, v12\nv_bfe_u32 v9, v1, 2, 1\nv_lshl_add_u32 v12, v9, 1, v12\nv_lshlrev_b32 v12, 3, v12")
        k(f"v_and_b32 v9, 2, v1\nv_cmp_eq_u32 vcc, 0, v9\nv_mov_b32 v9, {OOB}\nv_cndmask_b32 v12, v9, v12, vcc\nv_cmp_eq_u32 vcc, 1, v8")
        k(f"s_lshl_b32 s42, s{sI}, 14\ns_lshl_b32 s38, s{sLW}, 8\ns_add_u32 s42, s42, s38\ns_add_u32 s42, s42, {WS_ZST}\ns_lshl_b32 s43, s{sJ}, 10\ns_add_u32 s43, s43, s42")
        k(f"v_and_b32 v7, 31, v1\nv_lshlrev_b32 v11, 3, v7\nv_lshrrev_b32 v9, 5, v1\nv_lshl_add_u32 v11, v9, 10, v11")
        k(f"s_add_u32 s38, s38, {self.XS}\nv_lshl_add_u32 v7, v7, 2, s38")
    def p5A(self):
        k, st, sI, sJ, name, lead = self.k, self.st, self.sI, self.sJ, self.name, self.lead
        NST = 32
        sT, sT2, sF, sF5, sCNT = 28, 29, 30, 44, 43
        set_flag(k, 43, st, 13)
        t_dma_setup(k, 4, 5, 4096)
        k(f"v_subrev_u32 v5, 1024, v5\nv_lshlrev_b32 v6, 2, v1")
        k(f"s_lshl_b32 s38, s{sI}, 19\ns_lshl_b32 s39, s{sLW}, 17\ns_add_u32 s{sT}, s38, s39\ns_add_u32 s{sT2}, s{sT}, {65536-2048}")
        k(f"s_mul_i32 s38, s{sJ}, {64*9216}\ns_add_u32 s38, s38, {WS_Z2}\ns_add_u32 s{sF}, s38, s{self.sMT}")
        k(f"s_and_b32 s39, s{sLW}, 1\ns_lshl_b32 s39, s39, 10\ns_add_u32 s{sF5}, s38, s39\ns_add_u32 s{sF5}, s{sF5}, 16384")
        k(f"s_add_u32 s45, s{sI}, s{sJ}\ns_and_b32 s45, s45, 3\ns_mov_b32 s46, {lead*128}\ns_mov_b32 s47, {lead*18432}")
        k(f"s_lshl_b32 s42, s{sJ}, 8\ns_add_u32 s42, s42, {WS_FL4}")
        srd(k, 8, 4, 0, S * S * 2)
        def dT(s):
            slot = (s + 2) % 4
            k(f"s_cmp_eq_u32 s45, {s%4}\ns_cselect_b32 s38, s46, 0\ns_add_u32 s48, s{sT}, s38\ns_add_u32 s49, s{sT2}, s38\ns_add_u32 m0, s{self.sMT}, {slot*T_SLOT}\ns_add_u32 s{sT}, s{sT}, 128")
            for q in range(4): k(f"buffer_load_dwordx4 v{4+(q&1)}, s[8:11], s{48 if q < 2 else 49} offen offset:{q*1024} lds")
            k(f"s_add_u32 s{sT2}, s{sT2}, 128")
        def dF(s):
            slot = (s + 2) % 4
            k(f"s_cmp_eq_u32 s45, {s%4}\ns_cselect_b32 s39, s47, 0\ns_add_u32 s50, s{sF}, s39\ns_add_u32 s51, s{sF5}, s39\ns_add_u32 m0, s{self.sMW}, {slot*W_SLOT}\ns_add_u32 s{sF}, s{sF}, 18432")
            for n in range(4): k(f"buffer_load_dwordx4 v3, {ws}, s50 offen offset:{n*1024} sc1 lds")
            e = self.sE + 2 * (s & 1)
            k(f"s_add_u32 m0, s{self.sMW5}, {slot*W_SLOT}\ns_mov_b64 exec, s[{e}:{e+1}]")
            k(f"buffer_load_dwordx4 v3, {ws}, s51 offen sc1 lds\ns_mov_b64 exec, -1\ns_add_u32 s{sF5}, s{sF5}, 18432")
        dT(0)
        poll(k, f"{name}_f4poll", [f"buffer_load_dword v10, v6, {ws}, s42 offen sc1"], [10])
        st.tr(15)
        dF(0); dT(1); dF(1); dT(2); dF(2)
        k("s_waitcnt vmcnt(17)\ns_barrier")
        st.tr(16)
        dT(3); dF(3)
        def lstage(s, vm=None):
            if vm is None: vm = 17 if s + 3 < NST else (8 if s + 2 < NST else 0)
            k(f"s_waitcnt vmcnt({vm})\ns_barrier")
            if s + 4 < NST: dT(s + 4); dF(s + 4)
        for s in range(0, 4): lstage(s)
        k(f"s_mov_b32 s{sCNT}, 6")
        k(f"{name}_l5loop:")
        k(f"s_cmp_le_u32 s{sCNT}, {lead//4}\ns_cselect_b32 s46, {((lead-32)*128) & 0xffffffff}, s46\ns_cselect_b32 s47, {((lead-32)*18432) & 0xffffffff}, s47")
        for s in range(4, 8): lstage(s)
        k(f"s_sub_u32 s{sCNT}, s{sCNT}, 1\ns_cmp_lg_u32 s{sCNT}, 0\ns_cbranch_scc1 {name}_l5loop")
        if "6" in self.ph:
            self.p6A_setup()
            lstage(28); lstage(29); self.dma6W(0); lstage(30, 5); self.dma6W(1)
            k("s_barrier")
        else:
            for s in range(28, 31): lstage(s)
        st.tr(17)
    def p5B_pre(self):
        k = self.k
        srd(k, 24, 6, 0, S * 2)
        k(f"s_lshl_b32 s38, s{self.sI}, 8\ns_lshl_b32 s39, s{sLW}, 6\ns_add_u32 s38, s38, s39\nv_and_b32 v12, 15, v1\nv_lshlrev_b32 v12, 1, v12")
        k(f"buffer_load_ushort v14, v12, s[24:27], s38 offen\nbuffer_load_ushort v15, v12, s[24:27], s38 offen offset:32")
    def p5B(self):
        k, st, sI, sJ, name = self.k, self.st, self.sI, self.sJ, self.name
        NST, ACC, Z1, sCNT = 32, self.ACC, self.Z1, 43
        t_swz_read_setup(k, 4, 7, sLW, t0=10)
        def reads(c, s, kk, buf):
            slot = (s + 2) % 4
            r = [f"ds_read_b128 {vr(c.T(buf,0,tt),4)}, v{4 if kk == 0 else 7} offset:{slot*T_SLOT + tt*2048}" for tt in range(2)]
            for ft in range(9):
                o = (slot if slot < 3 else 0) * W_SLOT + kk * 9216 + ft * 1024
                r.append(f"ds_read_b128 {vr(c.W(buf,0,ft),4)}, v{5 + (1 if slot == 3 else 0)} offset:{o}")
            return r
        c = Cons(k, 2, 9, 1, ACC, self.FR0, "W", reads, rdgaps=11)
        k("s_waitcnt vmcnt(0)\nv_lshlrev_b32 v14, 16, v14\nv_lshlrev_b32 v15, 16, v15")
        for tt in range(2):
            for r in range(36): k(f"v_mov_b32 v{ACC+tt*36+r}, v{14+tt}")
        if "6" in self.ph: self.p6B_pre()
        k("s_barrier")
        c.first_reads(0)
        k(f"s_mov_b32 s{sCNT}, 7")
        k(f"{name}_c5loop:")
        for s in range(4): c.stage(s, False)
        k(f"s_sub_u32 s{sCNT}, s{sCNT}, 1\ns_cmp_lg_u32 s{sCNT}, 0\ns_cbranch_scc1 {name}_c5loop")
        for s in range(28, 32): c.stage(s, s == 31, barrier=(s < 31 or "6" in self.ph))
        st.tr(19)
        P = 88
        fl = " sc1" if "6" in self.ph else ""
        k(f"s_lshl_b32 s38, s{sI}, 2\ns_add_u32 s38, s38, s{sLW}\ns_lshl_b32 s48, s38, 4\ns_add_u32 s48, s48, s{sJ}\ns_lshl_b32 s43, s48, 10\ns_add_u32 s43, s43, {WS_US}\ns_lshl_b32 s48, s48, 2\ns_add_u32 s48, s48, {WS_FL5}")
        k(f"s_lshl_b32 s38, s38, 17\ns_lshl_b32 s39, s{sJ}, 12\ns_add_u32 s38, s38, s39\ns_add_u32 s38, s38, {WS_U}\ns_add_u32 s39, s38, 65536")
        dst = lambda e: P + (e if e < 16 else 32 + e - 16 if e < 18 else 16 + e - 18 if e < 34 else 34 + e - 34)
        def stores(e):
            if e % 18 < 16 and e % 18 % 4 == 3:
                k(f"buffer_store_dwordx4 {vr(dst(e)-3,4)}, v3, {ws}, s{38 + e // 18} offen offset:{(e % 18 // 4)*1024}{fl}")
            if e == 35: k(f"buffer_store_dwordx4 {vr(P+32,4)}, v3, {ws}, s43 offen{fl}")
        for e in range(36):
            a = ACC + 2 * e
            t = 8 + 2 * (e % 2)
            k(f"v_lshlrev_b32 v{t}, 16, v{Z1+e}\nv_and_b32 v{t+1}, 0xffff0000, v{Z1+e}")
            k(f"v_pk_mul_f32 {vr(a,2)}, {vr(a,2)}, {vr(t,2)}")
            if e > 0:
                k(f"v_cvt_pk_bf16_f32 v{dst(e-1)}, v{a-2}, v{a-1}"); stores(e - 1)
        k(f"v_cvt_pk_bf16_f32 v{dst(35)}, v{ACC+70}, v{ACC+71}"); stores(35)
    RES = 222
    def rb_map(self, sRB, sB):
        k = self.k
        k(f"s_and_b32 s38, s2, 3\ns_lshl_b32 s38, s38, 3\ns_bfe_u32 s39, s2, 0x30003\ns_add_u32 s{sRB}, s38, s39")
        k(f"s_bfe_u32 s38, s2, 0x10002\ns_lshl_b32 s38, s38, 2\ns_lshr_b32 s39, s2, 6\ns_add_u32 s{sB}, s38, s39")
    def p6A_setup(self):
        k = self.k
        self.rb_map(24, 25)
        k(f"s_mul_i32 s38, s25, {72*5120}\ns_add_u32 s38, s38, {WS_WOUTF}\ns_mul_i32 s12, s{sLW}, 5120\ns_add_u32 s26, s38, s12\ns_add_u32 s27, s26, 4096\ns_add_u32 s12, s12, {W_BASE}")
        k(f"s_lshl_b32 s13, s24, 2\ns_add_u32 s13, s13, s{sLW}\ns_lshr_b32 s15, s13, 1\ns_lshl_b32 s13, s13, 16\ns_add_u32 s13, s13, {WS_U}")
        k(f"s_lshl_b32 s15, s15, 4\ns_and_b32 s38, s{sLW}, 1\ns_add_u32 s15, s15, s38\ns_lshl_b32 s15, s15, 10\ns_add_u32 s15, s15, {WS_US}")
        k(f"s_lshl_b32 s14, s24, 7\ns_add_u32 s14, s14, {WS_FL5}\nv_and_b32 v6, 31, v1\nv_lshlrev_b32 v6, 2, v6")
    def dma6W(self, s):
        k = self.k; slot = (s + 2) % 4
        fl = " sc1" if "2" in self.ph else ""
        k(f"s_add_u32 m0, s12, {slot*20480}")
        for n in range(4): k(f"buffer_load_dwordx4 v3, {ws}, s26 offen offset:{n*1024}{fl} lds")
        k(f"s_add_u32 m0, s12, {slot*20480 + 4096}\ns_add_u32 s26, s26, 20480")
        k(f"buffer_load_dwordx4 v3, {ws}, s27 offen{fl} lds\ns_add_u32 s27, s27, 20480")
    def dma6T(self, s):
        k = self.k; slot = (s + 2) % 4
        k(f"s_add_u32 m0, s{self.sMT}, {slot*16384}")
        fl = " sc1" if "5" in self.ph else ""
        if s < 16:
            for q in range(4): k(f"buffer_load_dwordx4 v3, {ws}, s13 offen offset:{q*1024}{fl} lds")
            k("s_add_u32 s13, s13, 4096")
        else:
            for q in range(4): k(f"buffer_load_dwordx4 v3, {ws}, s15 offen offset:{q*1024}{fl} lds\ns_add_u32 s15, s15, 1024")
            k("s_add_u32 s15, s15, 4096")
    def p6A(self):
        k, st, name = self.k, self.st, self.name
        NST, sCNT = 18, 43
        self.dma6W(2); self.dma6W(3)
        poll(k, f"{name}_f5poll", [f"buffer_load_dword v10, v6, {ws}, s14 offen sc1"], [10])
        st.tr(18)
        for s in range(3): self.dma6T(s)
        k("s_waitcnt vmcnt(8)\ns_barrier")
        st.tr(19)
        self.dma6T(3)
        def lstage(s, vm=None):
            if vm is None: vm = 9 * (min(NST - 1, s + 3) - (s + 1))
            k(f"s_waitcnt vmcnt({vm})\ns_barrier")
            if s + 4 < NST: self.dma6T(s + 4); self.dma6W(s + 4)
        lstage(0, 8); lstage(1, 13); lstage(2); lstage(3)
        k(f"s_mov_b32 s{sCNT}, 2")
        k(f"{name}_l6loop:")
        for s in range(4, 8): lstage(s)
        k(f"s_sub_u32 s{sCNT}, s{sCNT}, 1\ns_cmp_lg_u32 s{sCNT}, 0\ns_cbranch_scc1 {name}_l6loop")
        for s in range(12, NST - 1): lstage(s)
    def p6B_pre(self):
        k, RES = self.k, self.RES
        self.rb_map(24, 25)
        fl = " sc1" if "3" in self.ph else ""
        k(f"s_lshl_b32 s26, s24, 2\ns_add_u32 s26, s26, s{sLW}")
        k(f"s_mul_i32 s12, s26, 18432\ns_add_u32 s12, s12, {WS_H}\ns_lshl_b32 s38, s25, 8\ns_add_u32 s13, s12, s38\ns_add_u32 s13, s13, 16384\ns_lshl_b32 s38, s25, 11\ns_add_u32 s12, s12, s38")
        k(f"v_and_b32 v11, 15, v1\nv_lshrrev_b32 v12, 4, v1\nv_mov_b32 v13, {OOB}\nv_lshlrev_b32 v8, 4, v11\nv_lshl_add_u32 v8, v12, 3, v8\nv_cmp_gt_u32 vcc, 32, v1\nv_cndmask_b32 v8, v13, v8, vcc")
        k(f"buffer_load_dwordx4 {vr(RES,4)}, v3, {ws}, s12 offen{fl}\nbuffer_load_dwordx4 {vr(RES+4,4)}, v3, {ws}, s12 offen offset:1024{fl}\nbuffer_load_dwordx2 {vr(RES+8,2)}, v8, {ws}, s13 offen{fl}")
        k(f"s_mul_i32 s14, s26, {16*1152}\ns_mul_i32 s38, s25, 144\ns_add_u32 s14, s14, s38")
        k(f"v_mul_u32_u24 v8, 1152, v11\nv_and_b32 v9, 1, v12\nv_lshlrev_b32 v9, 5, v9\nv_lshrrev_b32 v10, 1, v12\nv_lshl_add_u32 v9, v10, 4, v9\nv_add_u32 v232, v9, v8")
        k(f"v_lshl_add_u32 v8, v12, 3, v8\nv_cndmask_b32 v233, v13, v8, vcc")
    def p6B(self):
        k, st, name, RES = self.k, self.st, self.name, self.RES
        NST, sCNT, ACC = 18, 43, 16
        st.tr(15); set_flag(k, 48, st, 16)
        k(f"s_load_dwordx2 s[8:9], s[0:1], {KA_OUT}")
        k(f"v_add_u32 v4, s{self.sMT}, v3\nv_add_u32 v6, 61440, v5")
        k(f"s_and_b32 s38, s{sLW}, 2\ns_lshl_b32 s38, s38, 12\ns_and_b32 s39, s{sLW}, 1\ns_lshl_b32 s39, s39, 3\ns_add_u32 s38, s38, s39\nv_add_u32 v7, s38, v3")
        def reads(c, s, blk, buf):
            slot = (s + 2) % 4
            r = []
            for kb in range(2):
                ks = blk * 2 + kb
                if s < 16: r.append(f"ds_read_b128 {vr(c.T(buf,kb,0),4)}, v4 offset:{slot*16384 + ks*1024}")
                else: r += [f"ds_read_b64 {vr(c.T(buf,kb,0)+2*h,2)}, v7 offset:{slot*16384 + ks*1024 + 4096*h}" for h in range(2)]
                for ft in range(5):
                    o = (slot if slot < 3 else 0) * 20480 + ks * 5120 + 1024 * ft
                    r.append(f"ds_read_b128 {vr(c.W(buf,kb,ft),4)}, v{5 if slot < 3 else 6} offset:{o}")
            return r
        c = Cons(k, 1, 5, 2, ACC, 36, "W", reads, rdgaps=6)
        for r in range(20): k(f"v_mov_b32 v{ACC+r}, 0")
        k("s_waitcnt lgkmcnt(0)\ns_mov_b32 s10, %d\ns_mov_b32 s11, 0x20000" % (S * D * 2))
        k("s_barrier")
        c.first_reads(0)
        k(f"s_mov_b32 s{sCNT}, 3")
        k(f"{name}_c6loop:")
        for s in range(4): c.stage(s, False)
        k(f"s_sub_u32 s{sCNT}, s{sCNT}, 1\ns_cmp_lg_u32 s{sCNT}, 0\ns_cbranch_scc1 {name}_c6loop")
        for s in range(12, NST): c.stage(s, s == NST - 1, barrier=(s < NST - 1))
        st.tr(17)
        P = 40
        for e in range(10): k(f"v_lshlrev_b32 v{60+2*e}, 16, v{RES+e}\nv_and_b32 v{61+2*e}, 0xffff0000, v{RES+e}")
        for e in range(10): k(f"v_pk_add_f32 {vr(ACC+2*e,2)}, {vr(ACC+2*e,2)}, {vr(60+2*e,2)}")
        for e in range(10): k(f"v_cvt_pk_bf16_f32 v{P+e}, v{ACC+2*e}, v{ACC+2*e+1}")
        for p in range(2): k(f"v_permlane16_swap_b32 v{P+4*p}, v{P+4*p+2}\nv_permlane16_swap_b32 v{P+4*p+1}, v{P+4*p+3}")
        k(f"buffer_store_dwordx4 {vr(P,4)}, v232, s[8:11], s14 offen\nbuffer_store_dwordx4 {vr(P+4,4)}, v232, s[8:11], s14 offen offset:64")
        k(f"buffer_store_dwordx2 {vr(P+8,2)}, v233, s[8:11], s14 offen offset:128")
    def build(self):
        k, st, name = self.k, self.st, self.name
        prologue(k, name, 256, sW, st)
        k(f"s_load_dwordx4 s[4:7], s[0:1], {KA_WSP}\ns_load_dwordx2 s[40:41], s[0:1], {KA_WS}")
        wave_lane(k, sW)
        k(f"s_and_b32 s{sLW}, s{sW}, 3")
        self.common45()
        k("s_waitcnt lgkmcnt(0)")
        srd(k, SRD_WS, 40, 0, WS_SIZE)
        k(f"s_cmp_lt_u32 s{sW}, 4\ns_cbranch_scc1 {name}_A")
        self.p4B()
        if "5" in self.ph: self.p5B()
        if "6" in self.ph: self.p6B()
        st.trflush(20, sW, SRD_WS, self.kidx); st.flush(2, sW, SRD_WS, self.kidx)
        k("s_endpgm")
        k(f"{name}_A:")
        self.p4A_setup()
        self.p4A()
        if "5" in self.ph: self.p5A()
        if "6" in self.ph: self.p6A()
        st.trflush(20, sW, SRD_WS, self.kidx); st.flush(2, sW, SRD_WS, self.kidx)
        k(f"{name}_end:\ns_endpgm")
        for x in k.tail: k(x)
        return k
def mega(phases, name=None, **kw): return Mega(name or f"k{phases}_kernel", phases, **kw).build()
if __name__ == "__main__":
    ks = [mega("4", stamps="trace"), mega("45", stamps="trace")]
    open("megat.s", "w").write(build(ks))
    for q in ks: print(q.name, q.stats, q.nops, len(q.lines))
```

```python
from common import *
from k1 import t_dma_setup, t_swz_read_setup, f2u
from k4 import ij_map, interleave, C0, C1
OOB = 0x40000000
sW, sLW, SRD_WS = 20, 23, 16
ws = S4(SRD_WS)

def poll(k, name, loads, regs_check, sCnt=52, tmp=9, first_wait=None):
    def check():
        r = list(regs_check); o = []
        if len(r) == 1: return [f"v_cmp_eq_u32 vcc, -1, v{r[0]}"]
        cur = r.pop(0)
        while r:
            if len(r) >= 2: o.append(f"v_max3_u32 v{tmp}, v{cur}, v{r[0]}, v{r[1]}"); r = r[2:]
            else: o.append(f"v_max_u32 v{tmp}, v{cur}, v{r[0]}"); r = r[1:]
            cur = tmp
        return o + [f"v_cmp_eq_u32 vcc, -1, v{tmp}"]
    if first_wait is None:
        for x in loads: k(x)
    k(f"s_mov_b32 s{sCnt}, 0x20000\ns_waitcnt vmcnt({first_wait or 0})")
    for x in check(): k(x)
    k(f"s_cbranch_vccnz {name}\n{name}_ok:")
    t = [f"{name}:"] + list(loads) + ["s_waitcnt vmcnt(0)"] + check()
    t += [f"s_sub_u32 s{sCnt}, s{sCnt}, 1", f"s_cbranch_vccz {name}_ok", f"s_cmp_eq_u32 s{sCnt}, 0", f"s_cbranch_scc1 {name}_ok", f"s_branch {name}"]
    k.tail += t
XF = X_BASE + 12288
def poll1(k, name, load, idx, sleep=4):
    k(f"s_mov_b32 s52, 0x20000\nv_mov_b32 v9, {XF + 4*idx}\ns_cmp_lg_u32 s{sLW}, 0\ns_cbranch_scc1 {name}_l")
    k(f"{name}_g:\n{load}\ns_waitcnt vmcnt(0)\nv_cmp_eq_u32 vcc, -1, v10\ns_sub_u32 s52, s52, 1\ns_cbranch_vccnz {name}_gr")
    k(f"{name}_gd:\nv_mov_b32 v10, 1\nds_write_b32 v9, v10\n{name}_ok:")
    k.tail += [f"{name}_gr:", "s_cmp_eq_u32 s52, 0", f"s_cbranch_scc1 {name}_gd", f"s_sleep {sleep}", f"s_branch {name}_g",
               f"{name}_l:", "ds_read_b32 v10, v9", "s_waitcnt lgkmcnt(0)", "v_cmp_ne_u32 vcc, 0, v10", "s_sub_u32 s52, s52, 1", f"s_cbranch_vccnz {name}_ok",
               "s_cmp_eq_u32 s52, 0", f"s_cbranch_scc1 {name}_ok", "s_sleep 1", f"s_branch {name}_l"]
def set_flag(k, sOff, st=None, idx=None):
    k(f"s_waitcnt vmcnt(0)\nv_mov_b32 v8, 0\ns_mov_b64 exec, 1")
    if st: st.tr(idx)
    k(f"buffer_store_dword v8, v8, {ws}, s{sOff} offen sc1\ns_mov_b64 exec, -1")

def gelu4(a, pre, sC, t):
    o = list(pre)
    for h in range(2): o.append(f"v_pk_mul_f32 {vr(t+2*h,2)}, {vr(a+2*h,2)}, {vr(a+2*h,2)}")
    for h in range(2): o.append(f"v_pk_fma_f32 {vr(t+2*h,2)}, {vr(t+2*h,2)}, s[{sC}:{sC+1}], s[{sC}:{sC+1}] op_sel:[0,0,1] op_sel_hi:[1,0,1]")
    for h in range(2): o.append(f"v_pk_mul_f32 {vr(t+2*h,2)}, {vr(t+2*h,2)}, {vr(a+2*h,2)}")
    for e in range(4): o.append(f"v_exp_f32 v{t+e}, v{t+e}")
    for h in range(2): o.append(f"v_pk_add_f32 {vr(t+2*h,2)}, {vr(t+2*h,2)}, 1.0 op_sel_hi:[1,0]")
    for e in range(4): o.append(f"v_rcp_f32 v{t+e}, v{t+e}")
    for h in range(2): o.append(f"v_pk_mul_f32 {vr(a+2*h,2)}, {vr(a+2*h,2)}, {vr(t+2*h,2)}")
    return o
def finish_stats(k, S_, n, vR, vM):
    k(f"s_mov_b32 s38, {f2u(1.0/n)}\nv_mul_f32 v{vM}, s38, v{S_}\nv_mul_f32 v{vR}, s38, v{S_+1}\nv_fma_f32 v{vR}, -v{vM}, v{vM}, v{vR}")
    k(f"v_max_f32 v{vR}, 0, v{vR}\nv_add_f32 v{vR}, {f2u(1e-5)}, v{vR}\nv_rsq_f32 v{vR}, v{vR}")

class Mega:
    def __init__(self, name, phases, stamps=False, li=3, lead=0):
        self.name, self.ph, self.li, self.lead = name, phases, li, lead
        self.k = K(name, 256, 512, lds=163840)
        self.k.tail = []
        self.st = Stamps(self.k, stamps)
        self.kidx = int(phases[0]) - 1
    sI, sJ = 21, 22
    sMT, sMW, sMW5, sE = 31, 32, 33, 34
    ACC, FR0, Z1 = 16, 88, 176
    XR = X_BASE
    XC = X_BASE + 1024
    XS = X_BASE + 2304
    def common45(self):
        k = self.k
        ij_map(k, self.sI, self.sJ, self.li)
        k(f"s_lshl_b32 s{self.sMT}, s{sLW}, 12\ns_add_u32 s{self.sMW}, s{self.sMT}, {W_BASE}")
        k(f"s_and_b32 s39, s{sLW}, 1\ns_lshl_b32 s39, s39, 10\ns_add_u32 s{self.sMW5}, s39, {W_BASE+16384}")
        k(f"s_cmp_lt_u32 s{sLW}, 2\ns_cselect_b64 s[{self.sE}:{self.sE+1}], -1, 0\ns_cselect_b64 s[{self.sE+2}:{self.sE+3}], 0, -1")
        k(f"s_mov_b32 s46, {f2u(C1)}\ns_mov_b32 s47, {f2u(C0)}")
        k("v_lshlrev_b32 v3, 4, v1")
        k(f"s_lshl_b32 s48, s{self.sI}, 2\ns_add_u32 s48, s48, s{sLW}\ns_mul_i32 s48, s48, {2*18432}\ns_add_u32 s48, s48, {WS_H}")
        k(f"s_mul_i32 s38, s{self.sJ}, {18*9216}\ns_add_u32 s38, s38, {WS_WINF}\ns_add_u32 s49, s38, s{self.sMT}\ns_add_u32 s53, s38, s39")
    def dma4T(self, gs):
        k = self.k; s, slot = gs % 9, gs % 4
        fl = " sc1" if "3" in self.ph else ""
        k(f"s_add_u32 s28, s48, {2048*s}\ns_add_u32 s29, s48, {2048*s + 18432 - 2048}\ns_add_u32 m0, s{self.sMT}, {slot*T_SLOT}")
        for q in range(4): k(f"buffer_load_dwordx4 v3, {ws}, s{28 if q < 2 else 29} offen offset:{q*1024}{fl} lds")
    def dma4W(self, gs):
        k = self.k; s, slot = gs % 9, gs % 4
        wo = (16 * 18 * 9216 if gs < 9 else 0) + 18432 * s
        k(f"s_add_u32 s30, s49, {wo}\ns_add_u32 m0, s{self.sMW}, {slot*W_SLOT}\ns_add_u32 s28, s53, {wo + 16384}")
        for n in range(4): k(f"buffer_load_dwordx4 v3, {ws}, s30 offen offset:{n*1024} lds")
        e = self.sE + 2 * (gs & 1)
        k(f"s_add_u32 m0, s{self.sMW5}, {slot*W_SLOT}\ns_mov_b64 exec, s[{e}:{e+1}]")
        k(f"buffer_load_dwordx4 v3, {ws}, s28 offen lds\ns_mov_b64 exec, -1")
    def dma4(self, gs): self.dma4T(gs); self.dma4W(gs)
    def cons4_setup(self):
        k = self.k
        k(f"v_add_u32 v5, {W_BASE}, v3\nv_add_u32 v6, {3*W_SLOT}, v5\nv_add_u32 v4, s{self.sMT}, v3")
    @staticmethod
    def reads4(c, gs, kk, buf):
        slot = gs % 4
        r = [f"ds_read_b128 {vr(c.T(buf,0,tt),4)}, v4 offset:{slot*T_SLOT + tt*2048 + kk*1024}" for tt in range(2)]
        for ft in range(9):
            o = (slot if slot < 3 else 0) * W_SLOT + kk * 9216 + ft * 1024
            r.append(f"ds_read_b128 {vr(c.W(buf,0,ft),4)}, v{5 + (1 if slot == 3 else 0)} offset:{o}")
        return r
    def p4B(self):
        k, st, sI, sJ = self.k, self.st, self.sI, self.sJ
        c = Cons(k, 2, 9, 1, self.ACC, self.FR0, "W", self.reads4, rdgaps=11)
        for s in range(3): self.dma4(s)
        self.cons4_setup()
        k("s_waitcnt vmcnt(17)\ns_barrier")
        self.dma4(3)
        for s in range(9):
            k(f"s_waitcnt vmcnt(17)\ns_barrier")
            st.tr(1 + s)
            self.dma4(s + 4)
        RR, NM, CS = 212, 10, 132
        k(f"s_lshl_b32 s38, s{sLW}, 8\ns_add_u32 s38, s38, {self.XR}\nv_and_b32 v8, 15, v1\nv_lshl_add_u32 v8, v8, 2, s38")
        k(f"v_lshrrev_b32 v9, 4, v1\nv_lshlrev_b32 v9, 4, v9\nv_add_u32 v9, {self.XC}, v9")
        k(f"ds_read2_b32 {vr(RR,2)}, v8 offset0:0 offset1:16\nds_read2_b32 {vr(NM,2)}, v8 offset0:32 offset1:48")
        for ft in range(9): k(f"ds_read_b128 {vr(CS+4*ft,4)}, v9 offset:{64*ft}")
        c.first_reads(9)
        if "5" in self.ph: self.p5B_pre()
        k("s_waitcnt lgkmcnt(11)")
        for ft in range(9):
            for tt in range(2):
                for h in range(2):
                    k(f"v_pk_mul_f32 {vr(c.acc(tt,ft)+2*h,2)}, {vr(CS+4*ft+2*h,2)}, {vr(NM,2)} op_sel:[0,{tt}] op_sel_hi:[1,{tt}]")
        nb = 2 if "5" in self.ph else 0
        for gs in range(9, 18):
            c.stage(gs, gs == 17, vm={9: 17 + nb, 10: 8 + nb, 11: 0}.get(gs), barrier=(gs < 17), post_barrier=(lambda gs=gs: st.tr(1 + gs) if gs < 14 else None))
        TMP = 214
        tiles = [(tt, ft) for tt in range(2) for ft in range(9)]
        if "5" not in self.ph:
            k(f"s_lshl_b32 s42, s{sI}, 4\ns_add_u32 s42, s42, s{sJ}\ns_lshl_b32 s42, s42, 2\ns_add_u32 s42, s42, s{sLW}\ns_mul_i32 s42, s42, 9216\ns_add_u32 s42, s42, {WS_Z1}")
        for q in range(9):
            seqs = []
            for u in range(2):
                tt, ft = tiles[2 * q + u]
                a = c.acc(tt, ft)
                pre = [f"v_pk_mul_f32 {vr(a+2*h,2)}, {vr(a+2*h,2)}, {vr(RR,2)} op_sel:[0,{tt}] op_sel_hi:[1,{tt}]" for h in range(2)]
                sq = gelu4(a, pre, 46, TMP + 4 * u)
                sq += [f"v_cvt_pk_bf16_f32 v{self.Z1+4*q+2*u+h}, v{a+2*h}, v{a+2*h+1}" for h in range(2)]
                seqs.append(sq)
            for x in interleave(*seqs): k(x)
            if "5" not in self.ph:
                k(f"buffer_store_dwordx4 {vr(self.Z1+4*q,4)}, v3, {ws}, s42 offen offset:{(q%4)*1024}")
                if q % 4 == 3: k("s_add_u32 s42, s42, 4096")
        st.tr(18)
    def p4A(self):
        k, st, sI, sJ, name = self.k, self.st, self.sI, self.sJ, self.name
        c = Cons(k, 2, 9, 1, self.ACC, self.FR0, "T", self.reads4, rdgaps=11)
        self.cons4_setup()
        RR, NM, CS, TMP = 176, 184, 192, 204
        k(f"s_lshl_b32 s38, s{sLW}, 8\ns_add_u32 s39, s38, {self.XR}\nv_lshrrev_b32 v8, 4, v1\nv_lshl_add_u32 v14, v8, 4, s39")
        k(f"s_add_u32 s39, s38, {self.XS}\nv_lshl_add_u32 v15, v8, 4, s39")
        k(f"v_and_b32 v13, 15, v1\nv_lshlrev_b32 v13, 2, v13\nv_add_u32 v13, {self.XC+576}, v13")
        ex = []
        for tt in range(2): ex += [f"ds_read_b128 {vr(RR+4*tt,4)}, v14 offset:{64*tt}", f"ds_read_b128 {vr(NM+4*tt,4)}, v14 offset:{128+64*tt}"]
        ex += [f"ds_read_b32 v{CS+ft}, v13 offset:{64*ft}" for ft in range(9)]
        HP, CP = 212, 220
        fl3 = " sc1" if "3" in self.ph else ""
        k(f"s_lshl_b32 s38, s{sI}, 2\ns_add_u32 s38, s38, s{sLW}\ns_lshl_b32 s38, s38, 11\ns_add_u32 s38, s38, {WS_HST}")
        for tt in range(2): k(f"buffer_load_dwordx4 {vr(HP+4*tt,4)}, v3, {ws}, s38 offen offset:{1024*tt}{fl3}")
        k(f"s_mul_i32 s38, s{sJ}, 576\ns_mul_i32 s39, s{sLW}, 288\ns_add_u32 s38, s38, s39\ns_cmp_ge_u32 s{sLW}, 2\ns_cselect_b32 s54, {2304*4-576}, 0\ns_add_u32 s38, s38, s54\ns_add_u32 s38, s38, {WS_CS}\ns_add_u32 s54, s38, {4608*4}")
        k(f"v_min_u32 v8, 35, v1\nv_lshlrev_b32 v8, 3, v8")
        k(f"buffer_load_dwordx2 {vr(CP,2)}, v8, {ws}, s38 offen\nbuffer_load_dwordx2 {vr(CP+2,2)}, v8, {ws}, s54 offen")
        k(f"s_add_u32 s39, s39, {self.XC}\nv_add_u32 v224, s39, v8")
        k(f"s_lshl_b32 s38, s{sLW}, 8\ns_add_u32 s38, s38, {self.XR}\nv_bfe_u32 v8, v1, 4, 1\nv_lshlrev_b32 v8, 6, v8\nv_and_b32 v9, 7, v1\nv_lshl_add_u32 v8, v9, 3, v8\nv_add_u32 v225, s38, v8")
        k(f"s_mov_b32 s54, {f2u(1.0/576)}\ns_mov_b32 s55, {f2u(1e-5)}")
        m1 = ["s_waitcnt vmcnt(0)"]
        m1 += [f"v_add_f32_dpp v{HP+e}, v{HP+e}, v{HP+e} row_ror:8 row_mask:0xf bank_mask:0xf" for e in range(8)]
        m1 += [f"v_add_f32 v{CP}, v{CP}, v{CP+2}", f"v_add_f32 v{CP+1}, v{CP+1}, v{CP+3}"]
        m1 += [f"v_permlane16_swap_b32 v{HP+e}, v{HP+4+e}" for e in range(4)]
        m1 += [f"ds_write_b64 v224, {vr(CP,2)}"]
        m1 += [f"v_add_f32 v{HP+e}, v{HP+e}, v{HP+4+e}" for e in range(4)]
        m1 += [f"v_mov_b32 v{HP+4+e}, v{HP+e}" for e in range(4)]
        m2 = [f"v_permlane32_swap_b32 v{HP+e}, v{HP+4+e}" for e in range(4)]
        m2 += [f"v_add_f32 v{HP+e}, v{HP+e}, v{HP+4+e}" for e in range(4)]
        m2 += [f"v_mul_f32 v{HP+6+e}, s54, v{HP+2*e}" for e in range(2)] + [f"v_mul_f32 v{HP+4+e}, s54, v{HP+2*e+1}" for e in range(2)]
        m2 += [f"v_fma_f32 v{HP+4+e}, -v{HP+6+e}, v{HP+6+e}, v{HP+4+e}" for e in range(2)] + [f"v_max_f32 v{HP+4+e}, 0, v{HP+4+e}" for e in range(2)]
        m2 += [f"v_add_f32 v{HP+4+e}, s55, v{HP+4+e}" for e in range(2)] + [f"v_rsq_f32 v{HP+4+e}, v{HP+4+e}" for e in range(2)] + [f"v_sub_f32 v{HP+6+e}, 0, v{HP+6+e}" for e in range(2)]
        m2 += [f"ds_write_b64 v225, {vr(HP+4,2)}", f"ds_write_b64 v225, {vr(HP+6,2)} offset:128"]
        k("s_barrier")
        st.tr(1)
        c.first_reads(0)
        for s in range(9):
            c.stage(s, s == 8, zero_c=(s == 0), extraA=(m1 if s == 2 else ()), extraB=(ex if s == 8 else m2 if s == 2 else ()), post_barrier=(lambda s=s: st.tr(2 + s)))
        k("s_waitcnt lgkmcnt(0)")
        SUM, SQ = 88, 96
        tiles = [(tt, ft) for ft in range(9) for tt in range(2)]
        for q in range(9):
            seqs = []
            for u in range(2):
                tt, ft = tiles[2 * q + u]
                a = c.acc(tt, ft)
                cp, hs = CS + (ft & ~1), ft & 1
                pre = [f"v_pk_fma_f32 {vr(a+2*h,2)}, {vr(NM+4*tt+2*h,2)}, {vr(cp,2)}, {vr(a+2*h,2)} op_sel:[0,{hs},0] op_sel_hi:[1,{hs},1]" for h in range(2)]
                pre += [f"v_pk_mul_f32 {vr(a+2*h,2)}, {vr(a+2*h,2)}, {vr(RR+4*tt+2*h,2)}" for h in range(2)]
                sq = gelu4(a, pre, 46, TMP + 4 * u)
                for h in range(2):
                    if ft == 0: sq.append(f"v_pk_mul_f32 {vr(SQ+4*tt+2*h,2)}, {vr(a+2*h,2)}, {vr(a+2*h,2)}")
                    else: sq.append(f"v_pk_fma_f32 {vr(SQ+4*tt+2*h,2)}, {vr(a+2*h,2)}, {vr(a+2*h,2)}, {vr(SQ+4*tt+2*h,2)}")
                    if ft == 1: sq.append(f"v_pk_add_f32 {vr(SUM+4*tt+2*h,2)}, {vr(a+2*h,2)}, {vr(c.acc(tt,0)+2*h,2)}")
                    elif ft > 1: sq.append(f"v_pk_add_f32 {vr(SUM+4*tt+2*h,2)}, {vr(SUM+4*tt+2*h,2)}, {vr(a+2*h,2)}")
                seqs.append(sq)
            for x in interleave(*seqs): k(x)
        Y, Z = 104, 112
        dm = "row_mask:0xf"
        for si, X in enumerate((SUM, SQ)):
            for r in range(4): k(f"v_add_f32_dpp v{Y+4*si+r}, v{X+r}, v{X+r} row_ror:8 {dm} bank_mask:0x3")
            for r in range(4): k(f"v_add_f32_dpp v{Y+4*si+r}, v{X+4+r}, v{X+4+r} row_ror:8 {dm} bank_mask:0xc")
        for si in range(2):
            for q in range(2): k(f"v_add_f32_dpp v{Z+2*si+q}, v{Y+4*si+q}, v{Y+4*si+q} row_shl:4 {dm} bank_mask:0x5")
        for si in range(2):
            for q in range(2): k(f"v_add_f32_dpp v{Z+2*si+q}, v{Y+4*si+2+q}, v{Y+4*si+2+q} row_shr:4 {dm} bank_mask:0xa")
        for perm in ("[1,0,3,2]", "[2,3,0,1]"):
            for e in range(4): k(f"v_add_f32_dpp v{Z+e}, v{Z+e}, v{Z+e} quad_perm:{perm} {dm} bank_mask:0xf")
        k(f"v_cndmask_b32 v{Y}, v{Z}, v{Z+1}, vcc\nv_cndmask_b32 v{Y+1}, v{Z+2}, v{Z+3}, vcc\nv_and_b32 v{Y+1}, 0x7fffffff, v{Y+1}")
        k(f"buffer_store_dwordx2 {vr(Y,2)}, v12, {ws}, s43 offen sc1")
        st.tr(11)
        PL, P = 104, 128
        fl = " sc1" if "5" in self.ph else ""
        k(f"s_add_u32 s43, s42, 4096\ns_add_u32 s50, s42, 8192\ns_add_u32 s51, s42, 12288")
        pl = [f"buffer_load_dwordx2 {vr(PL+2*q,2)}, v11, {ws}, s{[42,43,50,51][q>>1]} offen offset:{2048*(q&1)} sc1" for q in range(8)]
        def norm(fts):
            for ft in fts:
                o = P + 4 * ft
                for tt in range(2):
                    a = c.acc(tt, ft)
                    for h in range(2): k(f"v_pk_fma_f32 {vr(a+2*h,2)}, {vr(a+2*h,2)}, {vr(RR+4*tt+2*h,2)}, {vr(NM+4*tt+2*h,2)}")
                for tt in range(2):
                    a = c.acc(tt, ft)
                    for h in range(2): k(f"v_cvt_pk_bf16_f32 v{o+2*tt+h}, v{a+2*h}, v{a+2*h+1}")
                k(f"v_permlane32_swap_b32 v{o}, v{o+2}\nv_permlane32_swap_b32 v{o+1}, v{o+3}\nv_permlane16_swap_b32 v{o}, v{o+2}\nv_permlane16_swap_b32 v{o+1}, v{o+3}")
                k(f"buffer_store_dwordx4 {vr(o,4)}, v3, {ws}, s42 offen offset:{(ft%4)*1024}{fl}")
                if ft % 4 == 3: k("s_add_u32 s42, s42, 4096")
        ntile = {12: (0, 2), 13: (2, 4), 14: (4, 7), 15: (7, 9)}
        for bar in range(9, 17):
            vm = {12: 25, 13: 17 + 2, 14: 17 + 4, 15: 8 + 7, 16: 7}.get(bar)
            if vm is not None: k(f"s_waitcnt vmcnt({vm})")
            k("s_barrier")
            if bar == 11:
                for x in pl: k(x)
            if bar + 4 <= 17: self.dma4(bar + 4)
            if bar == 11:
                poll(k, f"{name}_zpoll", pl, [PL + 1 + 2 * q for q in range(8)], first_wait=8)
                st.tr(12)
                for st_ in (2, 4, 8):
                    for q in range(0, 16, 2 * st_):
                        for e in range(2): k(f"v_add_f32 v{PL+q+e}, v{PL+q+e}, v{PL+q+st_+e}")
                k(f"v_mov_b32 v{PL+2}, v{PL}\nv_mov_b32 v{PL+3}, v{PL+1}\nv_permlane32_swap_b32 v{PL+2}, v{PL}\nv_permlane32_swap_b32 v{PL+3}, v{PL+1}\nv_add_f32 v{PL}, v{PL}, v{PL+2}\nv_add_f32 v{PL+1}, v{PL+1}, v{PL+3}")
                finish_stats(k, PL, 2304, 9, 10)
                k(f"v_mul_f32 v10, v10, v9\nv_sub_f32 v10, 0, v10")
                k("ds_write_b32 v7, v9\nds_write_b32 v7, v10 offset:128")
                for tt in range(2): k(f"ds_read_b128 {vr(RR+4*tt,4)}, v15 offset:{64*tt}\nds_read_b128 {vr(NM+4*tt,4)}, v15 offset:{128+64*tt}")
                k(f"s_lshl_b32 s42, s{sJ}, 6\ns_lshl_b32 s38, s{sI}, 2\ns_add_u32 s42, s42, s38\ns_add_u32 s42, s42, s{sLW}\ns_lshl_b32 s43, s42, 2\ns_add_u32 s43, s43, {WS_FL4}\ns_mul_i32 s42, s42, 9216\ns_add_u32 s42, s42, {WS_Z2}")
            if bar in ntile:
                if bar == 12: k("s_waitcnt lgkmcnt(0)")
                norm(range(*ntile[bar]))
        st.tr(14)
    def p4A_setup(self):
        k, sI, sJ = self.k, self.sI, self.sJ
        k("v_and_b32 v8, 1, v1\nv_bfe_u32 v9, v1, 3, 1\nv_lshl_add_u32 v12, v9, 4, v8\nv_lshrrev_b32 v9, 4, v1\nv_lshl_add_u32 v12, v9, 2, v12\nv_bfe_u32 v9, v1, 2, 1\nv_lshl_add_u32 v12, v9, 1, v12\nv_lshlrev_b32 v12, 3, v12")
        k(f"v_and_b32 v9, 2, v1\nv_cmp_eq_u32 vcc, 0, v9\nv_mov_b32 v9, {OOB}\nv_cndmask_b32 v12, v9, v12, vcc\nv_cmp_eq_u32 vcc, 1, v8")
        k(f"s_lshl_b32 s42, s{sI}, 14\ns_lshl_b32 s38, s{sLW}, 8\ns_add_u32 s42, s42, s38\ns_add_u32 s42, s42, {WS_ZST}\ns_lshl_b32 s43, s{sJ}, 10\ns_add_u32 s43, s43, s42")
        k(f"v_and_b32 v7, 31, v1\nv_lshlrev_b32 v11, 3, v7\nv_lshrrev_b32 v9, 5, v1\nv_lshl_add_u32 v11, v9, 10, v11")
        k(f"s_add_u32 s38, s38, {self.XS}\nv_lshl_add_u32 v7, v7, 2, s38")
    def p5A(self):
        k, st, sI, sJ, name, lead = self.k, self.st, self.sI, self.sJ, self.name, self.lead
        NST = 32
        sT, sT2, sF, sF5, sCNT = 28, 29, 30, 44, 43
        set_flag(k, 43, st, 13)
        t_dma_setup(k, 4, 5, 4096)
        k(f"v_subrev_u32 v5, 1024, v5\nv_lshlrev_b32 v6, 2, v1")
        k(f"s_lshl_b32 s38, s{sI}, 19\ns_lshl_b32 s39, s{sLW}, 17\ns_add_u32 s{sT}, s38, s39\ns_add_u32 s{sT2}, s{sT}, {65536-2048}")
        k(f"s_mul_i32 s38, s{sJ}, {64*9216}\ns_add_u32 s38, s38, {WS_Z2}\ns_add_u32 s{sF}, s38, s{self.sMT}")
        k(f"s_and_b32 s39, s{sLW}, 1\ns_lshl_b32 s39, s39, 10\ns_add_u32 s{sF5}, s38, s39\ns_add_u32 s{sF5}, s{sF5}, 16384")
        k(f"s_add_u32 s45, s{sI}, s{sJ}\ns_and_b32 s45, s45, 3\ns_mov_b32 s46, {lead*128}\ns_mov_b32 s47, {lead*18432}")
        k(f"s_lshl_b32 s42, s{sJ}, 8\ns_add_u32 s42, s42, {WS_FL4}")
        srd(k, 8, 4, 0, S * S * 2)
        def dT(s):
            slot = (s + 2) % 4
            k(f"s_cmp_eq_u32 s45, {s%4}\ns_cselect_b32 s38, s46, 0\ns_add_u32 s48, s{sT}, s38\ns_add_u32 s49, s{sT2}, s38\ns_add_u32 m0, s{self.sMT}, {slot*T_SLOT}\ns_add_u32 s{sT}, s{sT}, 128")
            for q in range(4): k(f"buffer_load_dwordx4 v{4+(q&1)}, s[8:11], s{48 if q < 2 else 49} offen offset:{q*1024} lds")
            k(f"s_add_u32 s{sT2}, s{sT2}, 128")
        def dF(s):
            slot = (s + 2) % 4
            k(f"s_cmp_eq_u32 s45, {s%4}\ns_cselect_b32 s39, s47, 0\ns_add_u32 s50, s{sF}, s39\ns_add_u32 s51, s{sF5}, s39\ns_add_u32 m0, s{self.sMW}, {slot*W_SLOT}\ns_add_u32 s{sF}, s{sF}, 18432")
            for n in range(4): k(f"buffer_load_dwordx4 v3, {ws}, s50 offen offset:{n*1024} sc1 lds")
            e = self.sE + 2 * (s & 1)
            k(f"s_add_u32 m0, s{self.sMW5}, {slot*W_SLOT}\ns_mov_b64 exec, s[{e}:{e+1}]")
            k(f"buffer_load_dwordx4 v3, {ws}, s51 offen sc1 lds\ns_mov_b64 exec, -1\ns_add_u32 s{sF5}, s{sF5}, 18432")
        dT(0)
        poll1(k, f"{name}_f4poll", f"buffer_load_dword v10, v6, {ws}, s42 offen sc1", 0)
        st.tr(15)
        dF(0); dT(1); dF(1); dT(2); dF(2)
        k("s_waitcnt vmcnt(17)\ns_barrier")
        st.tr(16)
        dT(3); dF(3)
        def lstage(s, vm=None):
            if vm is None: vm = 17 if s + 3 < NST else (8 if s + 2 < NST else 0)
            k(f"s_waitcnt vmcnt({vm})\ns_barrier")
            if s + 4 < NST: dT(s + 4); dF(s + 4)
        for s in range(0, 4): lstage(s)
        k(f"s_mov_b32 s{sCNT}, 6")
        k(f"{name}_l5loop:")
        k(f"s_cmp_le_u32 s{sCNT}, {lead//4}\ns_cselect_b32 s46, {((lead-32)*128) & 0xffffffff}, s46\ns_cselect_b32 s47, {((lead-32)*18432) & 0xffffffff}, s47")
        for s in range(4, 8): lstage(s)
        k(f"s_sub_u32 s{sCNT}, s{sCNT}, 1\ns_cmp_lg_u32 s{sCNT}, 0\ns_cbranch_scc1 {name}_l5loop")
        if "6" in self.ph:
            self.p6A_setup()
            lstage(28); lstage(29); self.dma6W(0); lstage(30, 5); self.dma6W(1)
            k("s_barrier")
        else:
            for s in range(28, 31): lstage(s)
        st.tr(17)
    def p5B_pre(self):
        k = self.k
        srd(k, 24, 6, 0, S * 2)
        k(f"s_lshl_b32 s38, s{self.sI}, 8\ns_lshl_b32 s39, s{sLW}, 6\ns_add_u32 s38, s38, s39\nv_and_b32 v12, 15, v1\nv_lshlrev_b32 v12, 1, v12")
        k(f"buffer_load_ushort v14, v12, s[24:27], s38 offen\nbuffer_load_ushort v15, v12, s[24:27], s38 offen offset:32")
    def p5B(self):
        k, st, sI, sJ, name = self.k, self.st, self.sI, self.sJ, self.name
        NST, ACC, Z1, sCNT = 32, self.ACC, self.Z1, 43
        t_swz_read_setup(k, 4, 7, sLW, t0=10)
        def reads(c, s, kk, buf):
            slot = (s + 2) % 4
            r = [f"ds_read_b128 {vr(c.T(buf,0,tt),4)}, v{4 if kk == 0 else 7} offset:{slot*T_SLOT + tt*2048}" for tt in range(2)]
            for ft in range(9):
                o = (slot if slot < 3 else 0) * W_SLOT + kk * 9216 + ft * 1024
                r.append(f"ds_read_b128 {vr(c.W(buf,0,ft),4)}, v{5 + (1 if slot == 3 else 0)} offset:{o}")
            return r
        c = Cons(k, 2, 9, 1, ACC, self.FR0, "W", reads, rdgaps=11)
        k("s_waitcnt vmcnt(0)\nv_lshlrev_b32 v14, 16, v14\nv_lshlrev_b32 v15, 16, v15")
        for tt in range(2):
            for r in range(36): k(f"v_mov_b32 v{ACC+tt*36+r}, v{14+tt}")
        if "6" in self.ph: self.p6B_pre()
        k("s_barrier")
        c.first_reads(0)
        k(f"s_mov_b32 s{sCNT}, 7")
        k(f"{name}_c5loop:")
        for s in range(4): c.stage(s, False)
        k(f"s_sub_u32 s{sCNT}, s{sCNT}, 1\ns_cmp_lg_u32 s{sCNT}, 0\ns_cbranch_scc1 {name}_c5loop")
        for s in range(28, 32): c.stage(s, s == 31, barrier=(s < 31 or "6" in self.ph))
        st.tr(19)
        P = 88
        fl = " sc1" if "6" in self.ph else ""
        k(f"s_lshl_b32 s38, s{sI}, 2\ns_add_u32 s38, s38, s{sLW}\ns_lshl_b32 s48, s38, 4\ns_add_u32 s48, s48, s{sJ}\ns_lshl_b32 s43, s48, 10\ns_add_u32 s43, s43, {WS_US}\ns_lshl_b32 s48, s48, 2\ns_add_u32 s48, s48, {WS_FL5}")
        k(f"s_lshl_b32 s38, s38, 17\ns_lshl_b32 s39, s{sJ}, 12\ns_add_u32 s38, s38, s39\ns_add_u32 s38, s38, {WS_U}\ns_add_u32 s39, s38, 65536")
        dst = lambda e: P + (e if e < 16 else 32 + e - 16 if e < 18 else 16 + e - 18 if e < 34 else 34 + e - 34)
        def stores(e):
            if e % 18 < 16 and e % 18 % 4 == 3:
                k(f"buffer_store_dwordx4 {vr(dst(e)-3,4)}, v3, {ws}, s{38 + e // 18} offen offset:{(e % 18 // 4)*1024}{fl}")
            if e == 35: k(f"buffer_store_dwordx4 {vr(P+32,4)}, v3, {ws}, s43 offen{fl}")
        for e in range(36):
            a = ACC + 2 * e
            t = 8 + 2 * (e % 2)
            k(f"v_lshlrev_b32 v{t}, 16, v{Z1+e}\nv_and_b32 v{t+1}, 0xffff0000, v{Z1+e}")
            k(f"v_pk_mul_f32 {vr(a,2)}, {vr(a,2)}, {vr(t,2)}")
            if e > 0:
                k(f"v_cvt_pk_bf16_f32 v{dst(e-1)}, v{a-2}, v{a-1}"); stores(e - 1)
        k(f"v_cvt_pk_bf16_f32 v{dst(35)}, v{ACC+70}, v{ACC+71}"); stores(35)
    RES = 222
    def rb_map(self, sRB, sB):
        k = self.k
        k(f"s_and_b32 s38, s2, 3\ns_lshl_b32 s38, s38, 3\ns_bfe_u32 s39, s2, 0x30003\ns_add_u32 s{sRB}, s38, s39")
        k(f"s_bfe_u32 s38, s2, 0x10002\ns_lshl_b32 s38, s38, 2\ns_lshr_b32 s39, s2, 6\ns_add_u32 s{sB}, s38, s39")
    def p6A_setup(self):
        k = self.k
        self.rb_map(24, 25)
        k(f"s_mul_i32 s38, s25, {72*5120}\ns_add_u32 s38, s38, {WS_WOUTF}\ns_mul_i32 s12, s{sLW}, 5120\ns_add_u32 s26, s38, s12\ns_add_u32 s27, s26, 4096\ns_add_u32 s12, s12, {W_BASE}")
        k(f"s_lshl_b32 s13, s24, 2\ns_add_u32 s13, s13, s{sLW}\ns_lshr_b32 s15, s13, 1\ns_lshl_b32 s13, s13, 16\ns_add_u32 s13, s13, {WS_U}")
        k(f"s_lshl_b32 s15, s15, 4\ns_and_b32 s38, s{sLW}, 1\ns_add_u32 s15, s15, s38\ns_lshl_b32 s15, s15, 10\ns_add_u32 s15, s15, {WS_US}")
        k(f"s_lshl_b32 s14, s24, 7\ns_add_u32 s14, s14, {WS_FL5}\nv_and_b32 v6, 31, v1\nv_lshlrev_b32 v6, 2, v6")
    def dma6W(self, s):
        k = self.k; slot = (s + 2) % 4
        fl = " sc1" if "2" in self.ph else ""
        k(f"s_add_u32 m0, s12, {slot*20480}")
        for n in range(4): k(f"buffer_load_dwordx4 v3, {ws}, s26 offen offset:{n*1024}{fl} lds")
        k(f"s_add_u32 m0, s12, {slot*20480 + 4096}\ns_add_u32 s26, s26, 20480")
        k(f"buffer_load_dwordx4 v3, {ws}, s27 offen{fl} lds\ns_add_u32 s27, s27, 20480")
    def dma6T(self, s):
        k = self.k; slot = (s + 2) % 4
        k(f"s_add_u32 m0, s{self.sMT}, {slot*16384}")
        fl = " sc1" if "5" in self.ph else ""
        if s < 16:
            for q in range(4): k(f"buffer_load_dwordx4 v3, {ws}, s13 offen offset:{q*1024}{fl} lds")
            k("s_add_u32 s13, s13, 4096")
        else:
            for q in range(4): k(f"buffer_load_dwordx4 v3, {ws}, s15 offen offset:{q*1024}{fl} lds\ns_add_u32 s15, s15, 1024")
            k("s_add_u32 s15, s15, 4096")
    def p6A(self):
        k, st, name = self.k, self.st, self.name
        NST, sCNT = 18, 43
        self.dma6W(2); self.dma6W(3)
        k("s_barrier")
        poll1(k, f"{name}_f5poll", f"buffer_load_dword v10, v6, {ws}, s14 offen sc1", 1)
        st.tr(18)
        for s in range(3): self.dma6T(s)
        k("s_waitcnt vmcnt(8)\ns_barrier")
        st.tr(19)
        self.dma6T(3)
        def lstage(s, vm=None):
            if vm is None: vm = 9 * (min(NST - 1, s + 3) - (s + 1))
            k(f"s_waitcnt vmcnt({vm})\ns_barrier")
            if s + 4 < NST: self.dma6T(s + 4); self.dma6W(s + 4)
        lstage(0, 8); lstage(1, 13); lstage(2); lstage(3)
        k(f"s_mov_b32 s{sCNT}, 2")
        k(f"{name}_l6loop:")
        for s in range(4, 8): lstage(s)
        k(f"s_sub_u32 s{sCNT}, s{sCNT}, 1\ns_cmp_lg_u32 s{sCNT}, 0\ns_cbranch_scc1 {name}_l6loop")
        for s in range(12, NST - 1): lstage(s)
    def p6B_pre(self):
        k, RES = self.k, self.RES
        self.rb_map(24, 25)
        fl = " sc1" if "3" in self.ph else ""
        k(f"s_lshl_b32 s26, s24, 2\ns_add_u32 s26, s26, s{sLW}")
        k(f"s_mul_i32 s12, s26, 18432\ns_add_u32 s12, s12, {WS_H}\ns_lshl_b32 s38, s25, 8\ns_add_u32 s13, s12, s38\ns_add_u32 s13, s13, 16384\ns_lshl_b32 s38, s25, 11\ns_add_u32 s12, s12, s38")
        k(f"v_and_b32 v11, 15, v1\nv_lshrrev_b32 v12, 4, v1\nv_mov_b32 v13, {OOB}\nv_lshlrev_b32 v8, 4, v11\nv_lshl_add_u32 v8, v12, 3, v8\nv_cmp_gt_u32 vcc, 32, v1\nv_cndmask_b32 v8, v13, v8, vcc")
        k(f"buffer_load_dwordx4 {vr(RES,4)}, v3, {ws}, s12 offen{fl}\nbuffer_load_dwordx4 {vr(RES+4,4)}, v3, {ws}, s12 offen offset:1024{fl}\nbuffer_load_dwordx2 {vr(RES+8,2)}, v8, {ws}, s13 offen{fl}")
        k(f"s_mul_i32 s14, s26, {16*1152}\ns_mul_i32 s38, s25, 144\ns_add_u32 s14, s14, s38")
        k(f"v_mul_u32_u24 v8, 1152, v11\nv_and_b32 v9, 1, v12\nv_lshlrev_b32 v9, 5, v9\nv_lshrrev_b32 v10, 1, v12\nv_lshl_add_u32 v9, v10, 4, v9\nv_add_u32 v232, v9, v8")
        k(f"v_lshl_add_u32 v8, v12, 3, v8\nv_cndmask_b32 v233, v13, v8, vcc")
    def p6B(self):
        k, st, name, RES = self.k, self.st, self.name, self.RES
        NST, sCNT, ACC = 18, 43, 16
        st.tr(15); set_flag(k, 48, st, 16)
        k("s_barrier")
        k(f"s_load_dwordx2 s[8:9], s[0:1], {KA_OUT}")
        k(f"v_add_u32 v4, s{self.sMT}, v3\nv_add_u32 v6, 61440, v5")
        k(f"s_and_b32 s38, s{sLW}, 2\ns_lshl_b32 s38, s38, 12\ns_and_b32 s39, s{sLW}, 1\ns_lshl_b32 s39, s39, 3\ns_add_u32 s38, s38, s39\nv_add_u32 v7, s38, v3")
        def reads(c, s, blk, buf):
            slot = (s + 2) % 4
            r = []
            for kb in range(2):
                ks = blk * 2 + kb
                if s < 16: r.append(f"ds_read_b128 {vr(c.T(buf,kb,0),4)}, v4 offset:{slot*16384 + ks*1024}")
                else: r += [f"ds_read_b64 {vr(c.T(buf,kb,0)+2*h,2)}, v7 offset:{slot*16384 + ks*1024 + 4096*h}" for h in range(2)]
                for ft in range(5):
                    o = (slot if slot < 3 else 0) * 20480 + ks * 5120 + 1024 * ft
                    r.append(f"ds_read_b128 {vr(c.W(buf,kb,ft),4)}, v{5 if slot < 3 else 6} offset:{o}")
            return r
        c = Cons(k, 1, 5, 2, ACC, 36, "W", reads, rdgaps=6)
        for r in range(20): k(f"v_mov_b32 v{ACC+r}, 0")
        k("s_waitcnt lgkmcnt(0)\ns_mov_b32 s10, %d\ns_mov_b32 s11, 0x20000" % (S * D * 2))
        k("s_barrier")
        c.first_reads(0)
        k(f"s_mov_b32 s{sCNT}, 3")
        k(f"{name}_c6loop:")
        for s in range(4): c.stage(s, False)
        k(f"s_sub_u32 s{sCNT}, s{sCNT}, 1\ns_cmp_lg_u32 s{sCNT}, 0\ns_cbranch_scc1 {name}_c6loop")
        for s in range(12, NST): c.stage(s, s == NST - 1, barrier=(s < NST - 1))
        st.tr(17)
        P = 40
        for e in range(10): k(f"v_lshlrev_b32 v{60+2*e}, 16, v{RES+e}\nv_and_b32 v{61+2*e}, 0xffff0000, v{RES+e}")
        for e in range(10): k(f"v_pk_add_f32 {vr(ACC+2*e,2)}, {vr(ACC+2*e,2)}, {vr(60+2*e,2)}")
        for e in range(10): k(f"v_cvt_pk_bf16_f32 v{P+e}, v{ACC+2*e}, v{ACC+2*e+1}")
        for p in range(2): k(f"v_permlane16_swap_b32 v{P+4*p}, v{P+4*p+2}\nv_permlane16_swap_b32 v{P+4*p+1}, v{P+4*p+3}")
        k(f"buffer_store_dwordx4 {vr(P,4)}, v232, s[8:11], s14 offen\nbuffer_store_dwordx4 {vr(P+4,4)}, v232, s[8:11], s14 offen offset:64")
        k(f"buffer_store_dwordx2 {vr(P+8,2)}, v233, s[8:11], s14 offen offset:128")
    def build(self):
        k, st, name = self.k, self.st, self.name
        prologue(k, name, 256, sW, st)
        k(f"s_load_dwordx4 s[4:7], s[0:1], {KA_WSP}\ns_load_dwordx2 s[40:41], s[0:1], {KA_WS}")
        wave_lane(k, sW)
        k(f"s_and_b32 s{sLW}, s{sW}, 3")
        self.common45()
        k("s_waitcnt lgkmcnt(0)")
        srd(k, SRD_WS, 40, 0, WS_SIZE)
        k(f"s_cmp_lt_u32 s{sW}, 4\ns_cbranch_scc1 {name}_A")
        self.p4B()
        if "5" in self.ph: self.p5B()
        if "6" in self.ph: self.p6B()
        st.trflush(20, sW, SRD_WS, self.kidx); st.flush(2, sW, SRD_WS, self.kidx)
        k("s_endpgm")
        k(f"{name}_A:")
        k(f"v_mov_b32 v8, 0\nv_lshlrev_b32 v9, 2, v1\nv_add_u32 v9, {XF}, v9\nds_write_b32 v9, v8")
        self.p4A_setup()
        self.p4A()
        if "5" in self.ph: self.p5A()
        if "6" in self.ph: self.p6A()
        st.trflush(20, sW, SRD_WS, self.kidx); st.flush(2, sW, SRD_WS, self.kidx)
        k(f"{name}_end:\ns_endpgm")
        for x in k.tail: k(x)
        return k
def mega(phases, name=None, **kw): return Mega(name or f"k{phases}_kernel", phases, **kw).build()
if __name__ == "__main__":
    ks = [mega("4", stamps="trace"), mega("45", stamps="trace")]
    open("megat.s", "w").write(build(ks))
    for q in ks: print(q.name, q.stats, q.nops, len(q.lines))
```

```python
import os
MB = 1 << 20
B0 = int(os.environ.get('WSB', '0')) * MB
S, D, F, FH = 2048, 576, 4608, 2304
WS_QM  = B0 + 0 * MB
WS_KM  = B0 + 2 * MB
WS_QT  = B0 + 4 * MB
WS_KT  = B0 + 4 * MB + 512 * 1024
WS_VF  = B0 + 5 * MB
WS_O   = B0 + 8 * MB
WS_H   = B0 + 11 * MB
WS_HST = B0 + 14 * MB
WS_CS  = B0 + 14 * MB + 256 * 1024
WS_ZST = B0 + 14 * MB + 512 * 1024
WS_FL2 = WS_ZST + 262144
WS_FL3 = WS_FL2 + 32768
WS_FL4 = WS_FL3 + 32768
WS_FL5 = WS_FL4 + 32768
RESET_BYTES = 262144 + 131072
WS_Z2  = B0 + 16 * MB
WS_Z1  = B0 + 26 * MB
WS_U   = B0 + 36 * MB
WS_US  = WS_U + 128 * 64 * 1024
WS_WINF = B0 + 46 * MB
WS_WOF  = B0 + 52 * MB
WS_WOUTF = B0 + 53 * MB
WS_DBG = (200 if B0 < 100 * MB else 100) * MB
WS_SIZE = 256 * MB
KA_X, KA_WQKV, KA_WO, KA_BX, KA_WIN, KA_WSP, KA_BSP, KA_WOUT, KA_OUT, KA_DBG, KA_WS = [8 * i for i in range(11)]
```

```python
from common import *
from k1 import t_dma_setup, t_swz_read_setup, f2u
from k4 import ij_map, interleave, C0, C1
OOB = 0x40000000
sW, sLW, SRD_WS = 20, 23, 16
ws = S4(SRD_WS)

def poll(k, name, loads, regs_check, sCnt=52, tmp=9, first_wait=None):
    def check():
        r = list(regs_check); o = []
        if len(r) == 1: return [f"v_cmp_eq_u32 vcc, -1, v{r[0]}"]
        cur = r.pop(0)
        while r:
            if len(r) >= 2: o.append(f"v_max3_u32 v{tmp}, v{cur}, v{r[0]}, v{r[1]}"); r = r[2:]
            else: o.append(f"v_max_u32 v{tmp}, v{cur}, v{r[0]}"); r = r[1:]
            cur = tmp
        return o + [f"v_cmp_eq_u32 vcc, -1, v{tmp}"]
    if first_wait is None:
        for x in loads: k(x)
    k(f"s_mov_b32 s{sCnt}, 0x20000\ns_waitcnt vmcnt({first_wait or 0})")
    for x in check(): k(x)
    k(f"s_cbranch_vccnz {name}\n{name}_ok:")
    t = [f"{name}:"] + list(loads) + ["s_waitcnt vmcnt(0)"] + check()
    t += [f"s_sub_u32 s{sCnt}, s{sCnt}, 1", f"s_cbranch_vccz {name}_ok", f"s_cmp_eq_u32 s{sCnt}, 0", f"s_cbranch_scc1 {name}_ok", f"s_branch {name}"]
    k.tail += t
XF = X_BASE + 12288
def poll1(k, name, load, idx, sleep=2, pre=None):
    k(f"s_mov_b32 s52, 0x20000\nv_mov_b32 v9, {XF + 4*idx}\ns_cmp_lg_u32 s{sLW}, 0\ns_cbranch_scc1 {name}_l")
    if pre: flag_store(k, pre)
    k(f"{name}_g:\n{load}\ns_waitcnt vmcnt(0)\nv_cmp_eq_u32 vcc, -1, v10\ns_sub_u32 s52, s52, 1\ns_cbranch_vccnz {name}_gr")
    k(f"{name}_gd:\nv_mov_b32 v10, 1\nds_write_b32 v9, v10\n{name}_ok:")
    k.tail += [f"{name}_gr:", "s_cmp_eq_u32 s52, 0", f"s_cbranch_scc1 {name}_gd", f"s_sleep {sleep}", f"s_branch {name}_g",
               f"{name}_l:", "ds_read_b32 v10, v9", "s_waitcnt lgkmcnt(0)", "v_cmp_ne_u32 vcc, 0, v10", "s_sub_u32 s52, s52, 1", f"s_cbranch_vccnz {name}_ok",
               "s_cmp_eq_u32 s52, 0", f"s_cbranch_scc1 {name}_ok", "s_sleep 1", f"s_branch {name}_l"]
def flag_store(k, sOff):
    k(f"v_mov_b32 v8, 0\ns_mov_b64 exec, 1\nbuffer_store_dword v8, v8, {ws}, s{sOff} offen sc1\ns_mov_b64 exec, -1")
def set_flag4(k, name, sOff, idx, st=None, tr=None):
    k(f"v_mov_b32 v9, {XF + 4*idx}\nv_mov_b32 v10, 1\nv_mov_b32 v8, 0\ns_waitcnt vmcnt(0)")
    if st: st.tr(tr)
    k(f"s_mov_b64 exec, 1\nds_add_rtn_u32 v10, v9, v10\ns_waitcnt lgkmcnt(0)\nv_cmp_eq_u32 vcc, 3, v10\ns_and_b64 exec, exec, vcc")
    k(f"buffer_store_dword v8, v8, {ws}, s{sOff} offen sc1\ns_mov_b64 exec, -1")

def gelu4(a, pre, sC, t):
    o = list(pre)
    for h in range(2): o.append(f"v_pk_mul_f32 {vr(t+2*h,2)}, {vr(a+2*h,2)}, {vr(a+2*h,2)}")
    for h in range(2): o.append(f"v_pk_fma_f32 {vr(t+2*h,2)}, {vr(t+2*h,2)}, s[{sC}:{sC+1}], s[{sC}:{sC+1}] op_sel:[0,0,1] op_sel_hi:[1,0,1]")
    for h in range(2): o.append(f"v_pk_mul_f32 {vr(t+2*h,2)}, {vr(t+2*h,2)}, {vr(a+2*h,2)}")
    for e in range(4): o.append(f"v_exp_f32 v{t+e}, v{t+e}")
    for h in range(2): o.append(f"v_pk_add_f32 {vr(t+2*h,2)}, {vr(t+2*h,2)}, 1.0 op_sel_hi:[1,0]")
    for e in range(4): o.append(f"v_rcp_f32 v{t+e}, v{t+e}")
    for h in range(2): o.append(f"v_pk_mul_f32 {vr(a+2*h,2)}, {vr(a+2*h,2)}, {vr(t+2*h,2)}")
    return o
def finish_stats(k, S_, n, vR, vM):
    k(f"s_mov_b32 s38, {f2u(1.0/n)}\nv_mul_f32 v{vM}, s38, v{S_}\nv_mul_f32 v{vR}, s38, v{S_+1}\nv_fma_f32 v{vR}, -v{vM}, v{vM}, v{vR}")
    k(f"v_max_f32 v{vR}, 0, v{vR}\nv_add_f32 v{vR}, {f2u(1e-5)}, v{vR}\nv_rsq_f32 v{vR}, v{vR}")

class Mega:
    def __init__(self, name, phases, stamps=False, li=3, lead=0):
        self.name, self.ph, self.li, self.lead = name, phases, li, lead
        self.k = K(name, 256, 512, lds=163840)
        self.k.tail = []
        self.st = Stamps(self.k, stamps)
        self.kidx = int(phases[0]) - 1
    sI, sJ = 21, 22
    sMT, sMW, sMW5, sE = 31, 32, 33, 34
    ACC, FR0, Z1 = 16, 88, 176
    XR = X_BASE
    XC = X_BASE + 1024
    XS = X_BASE + 2304
    def common45(self):
        k = self.k
        ij_map(k, self.sI, self.sJ, self.li)
        k(f"s_lshl_b32 s{self.sMT}, s{sLW}, 12\ns_add_u32 s{self.sMW}, s{self.sMT}, {W_BASE}")
        k(f"s_and_b32 s39, s{sLW}, 1\ns_lshl_b32 s39, s39, 10\ns_add_u32 s{self.sMW5}, s39, {W_BASE+16384}")
        k(f"s_cmp_lt_u32 s{sLW}, 2\ns_cselect_b64 s[{self.sE}:{self.sE+1}], -1, 0\ns_cselect_b64 s[{self.sE+2}:{self.sE+3}], 0, -1")
        k(f"s_mov_b32 s46, {f2u(C1)}\ns_mov_b32 s47, {f2u(C0)}")
        k("v_lshlrev_b32 v3, 4, v1")
        k(f"s_lshl_b32 s48, s{self.sI}, 2\ns_add_u32 s48, s48, s{sLW}\ns_mul_i32 s48, s48, {2*18432}\ns_add_u32 s48, s48, {WS_H}")
        k(f"s_mul_i32 s38, s{self.sJ}, {18*9216}\ns_add_u32 s38, s38, {WS_WINF}\ns_add_u32 s49, s38, s{self.sMT}\ns_add_u32 s53, s38, s39")
    def dma4T(self, gs):
        k = self.k; s, slot = gs % 9, gs % 4
        fl = " sc1" if "3" in self.ph else ""
        k(f"s_add_u32 s28, s48, {2048*s}\ns_add_u32 s29, s48, {2048*s + 18432 - 2048}\ns_add_u32 m0, s{self.sMT}, {slot*T_SLOT}")
        for q in range(4): k(f"buffer_load_dwordx4 v3, {ws}, s{28 if q < 2 else 29} offen offset:{q*1024}{fl} lds")
    def dma4W(self, gs):
        k = self.k; s, slot = gs % 9, gs % 4
        wo = (16 * 18 * 9216 if gs < 9 else 0) + 18432 * s
        k(f"s_add_u32 s30, s49, {wo}\ns_add_u32 m0, s{self.sMW}, {slot*W_SLOT}\ns_add_u32 s28, s53, {wo + 16384}")
        for n in range(4): k(f"buffer_load_dwordx4 v3, {ws}, s30 offen offset:{n*1024} lds")
        e = self.sE + 2 * (gs & 1)
        k(f"s_add_u32 m0, s{self.sMW5}, {slot*W_SLOT}\ns_mov_b64 exec, s[{e}:{e+1}]")
        k(f"buffer_load_dwordx4 v3, {ws}, s28 offen lds\ns_mov_b64 exec, -1")
    def dma4(self, gs): self.dma4T(gs); self.dma4W(gs)
    def cons4_setup(self):
        k = self.k
        k(f"v_add_u32 v5, {W_BASE}, v3\nv_add_u32 v6, {3*W_SLOT}, v5\nv_add_u32 v4, s{self.sMT}, v3")
    @staticmethod
    def reads4(c, gs, kk, buf):
        slot = gs % 4
        r = [f"ds_read_b128 {vr(c.T(buf,0,tt),4)}, v4 offset:{slot*T_SLOT + tt*2048 + kk*1024}" for tt in range(2)]
        for ft in range(9):
            o = (slot if slot < 3 else 0) * W_SLOT + kk * 9216 + ft * 1024
            r.append(f"ds_read_b128 {vr(c.W(buf,0,ft),4)}, v{5 + (1 if slot == 3 else 0)} offset:{o}")
        return r
    def p4B(self):
        k, st, sI, sJ = self.k, self.st, self.sI, self.sJ
        c = Cons(k, 2, 9, 1, self.ACC, self.FR0, "W", self.reads4, rdgaps=11)
        for s in range(3): self.dma4(s)
        self.cons4_setup()
        k("s_waitcnt vmcnt(17)\ns_barrier")
        self.dma4(3)
        for s in range(9):
            k(f"s_waitcnt vmcnt(17)\ns_barrier")
            st.tr(1 + s)
            self.dma4(s + 4)
        RR, NM, CS = 212, 10, 132
        k(f"s_lshl_b32 s38, s{sLW}, 8\ns_add_u32 s38, s38, {self.XR}\nv_and_b32 v8, 15, v1\nv_lshl_add_u32 v8, v8, 2, s38")
        k(f"v_lshrrev_b32 v9, 4, v1\nv_lshlrev_b32 v9, 4, v9\nv_add_u32 v9, {self.XC}, v9")
        k(f"ds_read2_b32 {vr(RR,2)}, v8 offset0:0 offset1:16\nds_read2_b32 {vr(NM,2)}, v8 offset0:32 offset1:48")
        for ft in range(9): k(f"ds_read_b128 {vr(CS+4*ft,4)}, v9 offset:{64*ft}")
        c.first_reads(9)
        if "5" in self.ph: self.p5B_pre()
        k("s_waitcnt lgkmcnt(11)")
        for ft in range(9):
            for tt in range(2):
                for h in range(2):
                    k(f"v_pk_mul_f32 {vr(c.acc(tt,ft)+2*h,2)}, {vr(CS+4*ft+2*h,2)}, {vr(NM,2)} op_sel:[0,{tt}] op_sel_hi:[1,{tt}]")
        nb = 2 if "5" in self.ph else 0
        for gs in range(9, 18):
            c.stage(gs, gs == 17, vm={9: 17 + nb, 10: 8 + nb, 11: 0}.get(gs), barrier=(gs < 17), post_barrier=(lambda gs=gs: st.tr(1 + gs) if gs < 14 else None))
        TMP = 214
        tiles = [(tt, ft) for tt in range(2) for ft in range(9)]
        if "5" not in self.ph:
            k(f"s_lshl_b32 s42, s{sI}, 4\ns_add_u32 s42, s42, s{sJ}\ns_lshl_b32 s42, s42, 2\ns_add_u32 s42, s42, s{sLW}\ns_mul_i32 s42, s42, 9216\ns_add_u32 s42, s42, {WS_Z1}")
        for q in range(9):
            seqs = []
            for u in range(2):
                tt, ft = tiles[2 * q + u]
                a = c.acc(tt, ft)
                pre = [f"v_pk_mul_f32 {vr(a+2*h,2)}, {vr(a+2*h,2)}, {vr(RR,2)} op_sel:[0,{tt}] op_sel_hi:[1,{tt}]" for h in range(2)]
                sq = gelu4(a, pre, 46, TMP + 4 * u)
                sq += [f"v_cvt_pk_bf16_f32 v{self.Z1+4*q+2*u+h}, v{a+2*h}, v{a+2*h+1}" for h in range(2)]
                seqs.append(sq)
            for x in interleave(*seqs): k(x)
            if "5" not in self.ph:
                k(f"buffer_store_dwordx4 {vr(self.Z1+4*q,4)}, v3, {ws}, s42 offen offset:{(q%4)*1024}")
                if q % 4 == 3: k("s_add_u32 s42, s42, 4096")
        st.tr(18)
    def p4A(self):
        k, st, sI, sJ, name = self.k, self.st, self.sI, self.sJ, self.name
        c = Cons(k, 2, 9, 1, self.ACC, self.FR0, "T", self.reads4, rdgaps=11)
        self.cons4_setup()
        RR, NM, CS, TMP = 176, 184, 192, 204
        k(f"s_lshl_b32 s38, s{sLW}, 8\ns_add_u32 s39, s38, {self.XR}\nv_lshrrev_b32 v8, 4, v1\nv_lshl_add_u32 v14, v8, 4, s39")
        k(f"s_add_u32 s39, s38, {self.XS}\nv_lshl_add_u32 v15, v8, 4, s39")
        k(f"v_and_b32 v13, 15, v1\nv_lshlrev_b32 v13, 2, v13\nv_add_u32 v13, {self.XC+576}, v13")
        ex = []
        for tt in range(2): ex += [f"ds_read_b128 {vr(RR+4*tt,4)}, v14 offset:{64*tt}", f"ds_read_b128 {vr(NM+4*tt,4)}, v14 offset:{128+64*tt}"]
        ex += [f"ds_read_b32 v{CS+ft}, v13 offset:{64*ft}" for ft in range(9)]
        HP, CP = 212, 220
        fl3 = " sc1" if "3" in self.ph else ""
        k(f"s_lshl_b32 s38, s{sI}, 2\ns_add_u32 s38, s38, s{sLW}\ns_lshl_b32 s38, s38, 11\ns_add_u32 s38, s38, {WS_HST}")
        for tt in range(2): k(f"buffer_load_dwordx4 {vr(HP+4*tt,4)}, v3, {ws}, s38 offen offset:{1024*tt}{fl3}")
        k(f"s_mul_i32 s38, s{sJ}, 576\ns_mul_i32 s39, s{sLW}, 288\ns_add_u32 s38, s38, s39\ns_cmp_ge_u32 s{sLW}, 2\ns_cselect_b32 s54, {2304*4-576}, 0\ns_add_u32 s38, s38, s54\ns_add_u32 s38, s38, {WS_CS}\ns_add_u32 s54, s38, {4608*4}")
        k(f"v_min_u32 v8, 35, v1\nv_lshlrev_b32 v8, 3, v8")
        k(f"buffer_load_dwordx2 {vr(CP,2)}, v8, {ws}, s38 offen\nbuffer_load_dwordx2 {vr(CP+2,2)}, v8, {ws}, s54 offen")
        k(f"s_add_u32 s39, s39, {self.XC}\nv_add_u32 v224, s39, v8")
        k(f"s_lshl_b32 s38, s{sLW}, 8\ns_add_u32 s38, s38, {self.XR}\nv_bfe_u32 v8, v1, 4, 1\nv_lshlrev_b32 v8, 6, v8\nv_and_b32 v9, 7, v1\nv_lshl_add_u32 v8, v9, 3, v8\nv_add_u32 v225, s38, v8")
        k(f"s_mov_b32 s54, {f2u(1.0/576)}\ns_mov_b32 s55, {f2u(1e-5)}")
        m1 = ["s_waitcnt vmcnt(0)"]
        m1 += [f"v_add_f32_dpp v{HP+e}, v{HP+e}, v{HP+e} row_ror:8 row_mask:0xf bank_mask:0xf" for e in range(8)]
        m1 += [f"v_add_f32 v{CP}, v{CP}, v{CP+2}", f"v_add_f32 v{CP+1}, v{CP+1}, v{CP+3}"]
        m1 += [f"v_permlane16_swap_b32 v{HP+e}, v{HP+4+e}" for e in range(4)]
        m1 += [f"ds_write_b64 v224, {vr(CP,2)}"]
        m1 += [f"v_add_f32 v{HP+e}, v{HP+e}, v{HP+4+e}" for e in range(4)]
        m1 += [f"v_mov_b32 v{HP+4+e}, v{HP+e}" for e in range(4)]
        m2 = [f"v_permlane32_swap_b32 v{HP+e}, v{HP+4+e}" for e in range(4)]
        m2 += [f"v_add_f32 v{HP+e}, v{HP+e}, v{HP+4+e}" for e in range(4)]
        m2 += [f"v_mul_f32 v{HP+6+e}, s54, v{HP+2*e}" for e in range(2)] + [f"v_mul_f32 v{HP+4+e}, s54, v{HP+2*e+1}" for e in range(2)]
        m2 += [f"v_fma_f32 v{HP+4+e}, -v{HP+6+e}, v{HP+6+e}, v{HP+4+e}" for e in range(2)] + [f"v_max_f32 v{HP+4+e}, 0, v{HP+4+e}" for e in range(2)]
        m2 += [f"v_add_f32 v{HP+4+e}, s55, v{HP+4+e}" for e in range(2)] + [f"v_rsq_f32 v{HP+4+e}, v{HP+4+e}" for e in range(2)] + [f"v_sub_f32 v{HP+6+e}, 0, v{HP+6+e}" for e in range(2)]
        m2 += [f"ds_write_b64 v225, {vr(HP+4,2)}", f"ds_write_b64 v225, {vr(HP+6,2)} offset:128"]
        k("s_barrier")
        st.tr(1)
        c.first_reads(0)
        for s in range(9):
            c.stage(s, s == 8, zero_c=(s == 0), extraA=(m1 if s == 2 else ()), extraB=(ex if s == 8 else m2 if s == 2 else ()), post_barrier=(lambda s=s: st.tr(2 + s)))
        k("s_waitcnt lgkmcnt(0)")
        SUM, SQ = 88, 96
        tiles = [(tt, ft) for ft in range(9) for tt in range(2)]
        for q in range(9):
            seqs = []
            for u in range(2):
                tt, ft = tiles[2 * q + u]
                a = c.acc(tt, ft)
                cp, hs = CS + (ft & ~1), ft & 1
                pre = [f"v_pk_fma_f32 {vr(a+2*h,2)}, {vr(NM+4*tt+2*h,2)}, {vr(cp,2)}, {vr(a+2*h,2)} op_sel:[0,{hs},0] op_sel_hi:[1,{hs},1]" for h in range(2)]
                pre += [f"v_pk_mul_f32 {vr(a+2*h,2)}, {vr(a+2*h,2)}, {vr(RR+4*tt+2*h,2)}" for h in range(2)]
                sq = gelu4(a, pre, 46, TMP + 4 * u)
                for h in range(2):
                    if ft == 0: sq.append(f"v_pk_mul_f32 {vr(SQ+4*tt+2*h,2)}, {vr(a+2*h,2)}, {vr(a+2*h,2)}")
                    else: sq.append(f"v_pk_fma_f32 {vr(SQ+4*tt+2*h,2)}, {vr(a+2*h,2)}, {vr(a+2*h,2)}, {vr(SQ+4*tt+2*h,2)}")
                    if ft == 1: sq.append(f"v_pk_add_f32 {vr(SUM+4*tt+2*h,2)}, {vr(a+2*h,2)}, {vr(c.acc(tt,0)+2*h,2)}")
                    elif ft > 1: sq.append(f"v_pk_add_f32 {vr(SUM+4*tt+2*h,2)}, {vr(SUM+4*tt+2*h,2)}, {vr(a+2*h,2)}")
                seqs.append(sq)
            for x in interleave(*seqs): k(x)
        Y, Z = 104, 112
        dm = "row_mask:0xf"
        for si, X in enumerate((SUM, SQ)):
            for r in range(4): k(f"v_add_f32_dpp v{Y+4*si+r}, v{X+r}, v{X+r} row_ror:8 {dm} bank_mask:0x3")
            for r in range(4): k(f"v_add_f32_dpp v{Y+4*si+r}, v{X+4+r}, v{X+4+r} row_ror:8 {dm} bank_mask:0xc")
        for si in range(2):
            for q in range(2): k(f"v_add_f32_dpp v{Z+2*si+q}, v{Y+4*si+q}, v{Y+4*si+q} row_shl:4 {dm} bank_mask:0x5")
        for si in range(2):
            for q in range(2): k(f"v_add_f32_dpp v{Z+2*si+q}, v{Y+4*si+2+q}, v{Y+4*si+2+q} row_shr:4 {dm} bank_mask:0xa")
        for perm in ("[1,0,3,2]", "[2,3,0,1]"):
            for e in range(4): k(f"v_add_f32_dpp v{Z+e}, v{Z+e}, v{Z+e} quad_perm:{perm} {dm} bank_mask:0xf")
        k(f"v_cndmask_b32 v{Y}, v{Z}, v{Z+1}, vcc\nv_cndmask_b32 v{Y+1}, v{Z+2}, v{Z+3}, vcc\nv_and_b32 v{Y+1}, 0x7fffffff, v{Y+1}")
        k(f"buffer_store_dwordx2 {vr(Y,2)}, v12, {ws}, s43 offen sc1")
        st.tr(11)
        PL, P = 104, 128
        fl = " sc1" if "5" in self.ph else ""
        k(f"s_add_u32 s43, s42, 4096\ns_add_u32 s50, s42, 8192\ns_add_u32 s51, s42, 12288")
        pl = [f"buffer_load_dwordx2 {vr(PL+2*q,2)}, v11, {ws}, s{[42,43,50,51][q>>1]} offen offset:{2048*(q&1)} sc1" for q in range(8)]
        def norm(fts):
            for ft in fts:
                o = P + 4 * ft
                for tt in range(2):
                    a = c.acc(tt, ft)
                    for h in range(2): k(f"v_pk_fma_f32 {vr(a+2*h,2)}, {vr(a+2*h,2)}, {vr(RR+4*tt+2*h,2)}, {vr(NM+4*tt+2*h,2)}")
                for tt in range(2):
                    a = c.acc(tt, ft)
                    for h in range(2): k(f"v_cvt_pk_bf16_f32 v{o+2*tt+h}, v{a+2*h}, v{a+2*h+1}")
                k(f"v_permlane32_swap_b32 v{o}, v{o+2}\nv_permlane32_swap_b32 v{o+1}, v{o+3}\nv_permlane16_swap_b32 v{o}, v{o+2}\nv_permlane16_swap_b32 v{o+1}, v{o+3}")
                k(f"buffer_store_dwordx4 {vr(o,4)}, v3, {ws}, s42 offen offset:{(ft%4)*1024}{fl}")
                if ft % 4 == 3: k("s_add_u32 s42, s42, 4096")
        ntile = {12: (0, 2), 13: (2, 4), 14: (4, 7), 15: (7, 9)}
        for bar in range(9, 17):
            vm = {12: 25, 13: 17 + 2, 14: 17 + 4, 15: 8 + 7, 16: 7}.get(bar)
            if vm is not None: k(f"s_waitcnt vmcnt({vm})")
            k("s_barrier")
            if bar == 11:
                for x in pl: k(x)
            if bar + 4 <= 17: self.dma4(bar + 4)
            if bar == 11:
                poll(k, f"{name}_zpoll", pl, [PL + 1 + 2 * q for q in range(8)], first_wait=8)
                st.tr(12)
                for st_ in (2, 4, 8):
                    for q in range(0, 16, 2 * st_):
                        for e in range(2): k(f"v_add_f32 v{PL+q+e}, v{PL+q+e}, v{PL+q+st_+e}")
                k(f"v_mov_b32 v{PL+2}, v{PL}\nv_mov_b32 v{PL+3}, v{PL+1}\nv_permlane32_swap_b32 v{PL+2}, v{PL}\nv_permlane32_swap_b32 v{PL+3}, v{PL+1}\nv_add_f32 v{PL}, v{PL}, v{PL+2}\nv_add_f32 v{PL+1}, v{PL+1}, v{PL+3}")
                finish_stats(k, PL, 2304, 9, 10)
                k(f"v_mul_f32 v10, v10, v9\nv_sub_f32 v10, 0, v10")
                k("ds_write_b32 v7, v9\nds_write_b32 v7, v10 offset:128")
                for tt in range(2): k(f"ds_read_b128 {vr(RR+4*tt,4)}, v15 offset:{64*tt}\nds_read_b128 {vr(NM+4*tt,4)}, v15 offset:{128+64*tt}")
                k(f"s_lshl_b32 s42, s{sJ}, 6\ns_lshl_b32 s38, s{sI}, 2\ns_add_u32 s42, s42, s38\ns_add_u32 s42, s42, s{sLW}\ns_lshl_b32 s43, s{sJ}, 4\ns_add_u32 s43, s43, s{sI}\ns_lshl_b32 s43, s43, 7\ns_add_u32 s43, s43, {WS_FL4}\ns_mul_i32 s42, s42, 9216\ns_add_u32 s42, s42, {WS_Z2}")
            if bar in ntile:
                if bar == 12: k("s_waitcnt lgkmcnt(0)")
                norm(range(*ntile[bar]))
        st.tr(14)
    def p4A_setup(self):
        k, sI, sJ = self.k, self.sI, self.sJ
        k("v_and_b32 v8, 1, v1\nv_bfe_u32 v9, v1, 3, 1\nv_lshl_add_u32 v12, v9, 4, v8\nv_lshrrev_b32 v9, 4, v1\nv_lshl_add_u32 v12, v9, 2, v12\nv_bfe_u32 v9, v1, 2, 1\nv_lshl_add_u32 v12, v9, 1, v12\nv_lshlrev_b32 v12, 3, v12")
        k(f"v_and_b32 v9, 2, v1\nv_cmp_eq_u32 vcc, 0, v9\nv_mov_b32 v9, {OOB}\nv_cndmask_b32 v12, v9, v12, vcc\nv_cmp_eq_u32 vcc, 1, v8")
        k(f"s_lshl_b32 s42, s{sI}, 14\ns_lshl_b32 s38, s{sLW}, 8\ns_add_u32 s42, s42, s38\ns_add_u32 s42, s42, {WS_ZST}\ns_lshl_b32 s43, s{sJ}, 10\ns_add_u32 s43, s43, s42")
        k(f"v_and_b32 v7, 31, v1\nv_lshlrev_b32 v11, 3, v7\nv_lshrrev_b32 v9, 5, v1\nv_lshl_add_u32 v11, v9, 10, v11")
        k(f"s_add_u32 s38, s38, {self.XS}\nv_lshl_add_u32 v7, v7, 2, s38")
    def p5A(self):
        k, st, sI, sJ, name, lead = self.k, self.st, self.sI, self.sJ, self.name, self.lead
        NST = 32
        sT, sT2, sF, sF5, sCNT = 28, 29, 30, 44, 43
        set_flag4(k, name, 43, 8, st, 13)
        t_dma_setup(k, 4, 5, 4096)
        k(f"v_subrev_u32 v5, 1024, v5\nv_and_b32 v6, 15, v1\nv_lshlrev_b32 v6, 7, v6")
        k(f"s_lshl_b32 s38, s{sI}, 19\ns_lshl_b32 s39, s{sLW}, 17\ns_add_u32 s{sT}, s38, s39\ns_add_u32 s{sT2}, s{sT}, {65536-2048}")
        k(f"s_mul_i32 s38, s{sJ}, {64*9216}\ns_add_u32 s38, s38, {WS_Z2}\ns_add_u32 s{sF}, s38, s{self.sMT}")
        k(f"s_and_b32 s39, s{sLW}, 1\ns_lshl_b32 s39, s39, 10\ns_add_u32 s{sF5}, s38, s39\ns_add_u32 s{sF5}, s{sF5}, 16384")
        k(f"s_add_u32 s45, s{sI}, s{sJ}\ns_and_b32 s45, s45, 3\ns_mov_b32 s46, {lead*128}\ns_mov_b32 s47, {lead*18432}")
        k(f"s_lshl_b32 s42, s{sJ}, 11\ns_add_u32 s42, s42, {WS_FL4}")
        srd(k, 8, 4, 0, S * S * 2)
        def dT(s):
            slot = (s + 2) % 4
            k(f"s_cmp_eq_u32 s45, {s%4}\ns_cselect_b32 s38, s46, 0\ns_add_u32 s48, s{sT}, s38\ns_add_u32 s49, s{sT2}, s38\ns_add_u32 m0, s{self.sMT}, {slot*T_SLOT}\ns_add_u32 s{sT}, s{sT}, 128")
            for q in range(4): k(f"buffer_load_dwordx4 v{4+(q&1)}, s[8:11], s{48 if q < 2 else 49} offen offset:{q*1024} lds")
            k(f"s_add_u32 s{sT2}, s{sT2}, 128")
        def dF(s):
            slot = (s + 2) % 4
            k(f"s_cmp_eq_u32 s45, {s%4}\ns_cselect_b32 s39, s47, 0\ns_add_u32 s50, s{sF}, s39\ns_add_u32 s51, s{sF5}, s39\ns_add_u32 m0, s{self.sMW}, {slot*W_SLOT}\ns_add_u32 s{sF}, s{sF}, 18432")
            for n in range(4): k(f"buffer_load_dwordx4 v3, {ws}, s50 offen offset:{n*1024} sc1 lds")
            e = self.sE + 2 * (s & 1)
            k(f"s_add_u32 m0, s{self.sMW5}, {slot*W_SLOT}\ns_mov_b64 exec, s[{e}:{e+1}]")
            k(f"buffer_load_dwordx4 v3, {ws}, s51 offen sc1 lds\ns_mov_b64 exec, -1\ns_add_u32 s{sF5}, s{sF5}, 18432")
        dT(0)
        poll1(k, f"{name}_f4poll", f"buffer_load_dword v10, v6, {ws}, s42 offen sc1", 0)
        st.tr(15)
        dF(0); dT(1); dF(1); dT(2); dF(2)
        k("s_waitcnt vmcnt(17)\ns_barrier")
        st.tr(16)
        dT(3); dF(3)
        def lstage(s, vm=None):
            if vm is None: vm = 17 if s + 3 < NST else (8 if s + 2 < NST else 0)
            k(f"s_waitcnt vmcnt({vm})\ns_barrier")
            if s + 4 < NST: dT(s + 4); dF(s + 4)
        for s in range(0, 4): lstage(s)
        k(f"s_mov_b32 s{sCNT}, 6")
        k(f"{name}_l5loop:")
        k(f"s_cmp_le_u32 s{sCNT}, {lead//4}\ns_cselect_b32 s46, {((lead-32)*128) & 0xffffffff}, s46\ns_cselect_b32 s47, {((lead-32)*18432) & 0xffffffff}, s47")
        for s in range(4, 8): lstage(s)
        k(f"s_sub_u32 s{sCNT}, s{sCNT}, 1\ns_cmp_lg_u32 s{sCNT}, 0\ns_cbranch_scc1 {name}_l5loop")
        if "6" in self.ph:
            self.p6A_setup()
            lstage(28); lstage(29); self.dma6W(0); lstage(30, 5); self.dma6W(1)
            k("s_barrier")
        else:
            for s in range(28, 31): lstage(s)
        st.tr(17)
    def p5B_pre(self):
        k = self.k
        srd(k, 24, 6, 0, S * 2)
        k(f"s_lshl_b32 s38, s{self.sI}, 8\ns_lshl_b32 s39, s{sLW}, 6\ns_add_u32 s38, s38, s39\nv_and_b32 v12, 15, v1\nv_lshlrev_b32 v12, 1, v12")
        k(f"buffer_load_ushort v14, v12, s[24:27], s38 offen\nbuffer_load_ushort v15, v12, s[24:27], s38 offen offset:32")
    def p5B(self):
        k, st, sI, sJ, name = self.k, self.st, self.sI, self.sJ, self.name
        NST, ACC, Z1, sCNT = 32, self.ACC, self.Z1, 43
        t_swz_read_setup(k, 4, 7, sLW, t0=10)
        def reads(c, s, kk, buf):
            slot = (s + 2) % 4
            r = [f"ds_read_b128 {vr(c.T(buf,0,tt),4)}, v{4 if kk == 0 else 7} offset:{slot*T_SLOT + tt*2048}" for tt in range(2)]
            for ft in range(9):
                o = (slot if slot < 3 else 0) * W_SLOT + kk * 9216 + ft * 1024
                r.append(f"ds_read_b128 {vr(c.W(buf,0,ft),4)}, v{5 + (1 if slot == 3 else 0)} offset:{o}")
            return r
        c = Cons(k, 2, 9, 1, ACC, self.FR0, "W", reads, rdgaps=11)
        k("s_waitcnt vmcnt(0)\nv_lshlrev_b32 v14, 16, v14\nv_lshlrev_b32 v15, 16, v15")
        for tt in range(2):
            for r in range(36): k(f"v_mov_b32 v{ACC+tt*36+r}, v{14+tt}")
        if "6" in self.ph: self.p6B_pre()
        k("s_barrier")
        c.first_reads(0)
        k(f"s_mov_b32 s{sCNT}, 7")
        k(f"{name}_c5loop:")
        for s in range(4): c.stage(s, False)
        k(f"s_sub_u32 s{sCNT}, s{sCNT}, 1\ns_cmp_lg_u32 s{sCNT}, 0\ns_cbranch_scc1 {name}_c5loop")
        for s in range(28, 32): c.stage(s, s == 31, barrier=(s < 31 or "6" in self.ph))
        st.tr(19)
        P = 88
        fl = " sc1" if "6" in self.ph else ""
        k(f"s_lshl_b32 s38, s{sI}, 2\ns_add_u32 s38, s38, s{sLW}\ns_lshl_b32 s48, s38, 4\ns_add_u32 s48, s48, s{sJ}\ns_lshl_b32 s43, s48, 10\ns_add_u32 s43, s43, {WS_US}")
        k(f"s_lshl_b32 s38, s38, 17\ns_lshl_b32 s39, s{sJ}, 12\ns_add_u32 s38, s38, s39\ns_add_u32 s38, s38, {WS_U}\ns_add_u32 s39, s38, 65536")
        dst = lambda e: P + (e if e < 16 else 32 + e - 16 if e < 18 else 16 + e - 18 if e < 34 else 34 + e - 34)
        def stores(e):
            if e % 18 < 16 and e % 18 % 4 == 3:
                k(f"buffer_store_dwordx4 {vr(dst(e)-3,4)}, v3, {ws}, s{38 + e // 18} offen offset:{(e % 18 // 4)*1024}{fl}")
            if e == 35: k(f"buffer_store_dwordx4 {vr(P+32,4)}, v3, {ws}, s43 offen{fl}")
        for e in range(36):
            a = ACC + 2 * e
            t = 8 + 2 * (e % 2)
            k(f"v_lshlrev_b32 v{t}, 16, v{Z1+e}\nv_and_b32 v{t+1}, 0xffff0000, v{Z1+e}")
            k(f"v_pk_mul_f32 {vr(a,2)}, {vr(a,2)}, {vr(t,2)}")
            if e > 0:
                k(f"v_cvt_pk_bf16_f32 v{dst(e-1)}, v{a-2}, v{a-1}"); stores(e - 1)
        k(f"v_cvt_pk_bf16_f32 v{dst(35)}, v{ACC+70}, v{ACC+71}"); stores(35)
    RES = 222
    def rb_map(self, sRB, sB):
        k = self.k
        k(f"s_and_b32 s38, s2, 3\ns_lshl_b32 s38, s38, 3\ns_bfe_u32 s39, s2, 0x30003\ns_add_u32 s{sRB}, s38, s39")
        k(f"s_bfe_u32 s38, s2, 0x10002\ns_lshl_b32 s38, s38, 2\ns_lshr_b32 s39, s2, 6\ns_add_u32 s{sB}, s38, s39")
    def p6A_setup(self):
        k = self.k
        self.rb_map(24, 25)
        k(f"s_mul_i32 s38, s25, {72*5120}\ns_add_u32 s38, s38, {WS_WOUTF}\ns_mul_i32 s12, s{sLW}, 5120\ns_add_u32 s26, s38, s12\ns_add_u32 s27, s26, 4096\ns_add_u32 s12, s12, {W_BASE}")
        k(f"s_lshl_b32 s13, s24, 2\ns_add_u32 s13, s13, s{sLW}\ns_lshr_b32 s15, s13, 1\ns_lshl_b32 s13, s13, 16\ns_add_u32 s13, s13, {WS_U}")
        k(f"s_lshl_b32 s15, s15, 4\ns_and_b32 s38, s{sLW}, 1\ns_add_u32 s15, s15, s38\ns_lshl_b32 s15, s15, 10\ns_add_u32 s15, s15, {WS_US}")
        k(f"s_lshr_b32 s14, s24, 1\ns_lshl_b32 s14, s14, 11\ns_add_u32 s14, s14, {WS_FL5}")
        k(f"s_lshl_b32 s54, s{self.sI}, 4\ns_add_u32 s54, s54, s{self.sJ}\ns_lshl_b32 s54, s54, 7\ns_add_u32 s54, s54, {WS_FL5}")
    def dma6W(self, s):
        k = self.k; slot = (s + 2) % 4
        fl = " sc1" if "2" in self.ph else ""
        k(f"s_add_u32 m0, s12, {slot*20480}")
        for n in range(4): k(f"buffer_load_dwordx4 v3, {ws}, s26 offen offset:{n*1024}{fl} lds")
        k(f"s_add_u32 m0, s12, {slot*20480 + 4096}\ns_add_u32 s26, s26, 20480")
        k(f"buffer_load_dwordx4 v3, {ws}, s27 offen{fl} lds\ns_add_u32 s27, s27, 20480")
    def dma6T(self, s):
        k = self.k; slot = (s + 2) % 4
        k(f"s_add_u32 m0, s{self.sMT}, {slot*16384}")
        fl = " sc1" if "5" in self.ph else ""
        if s < 16:
            for q in range(4): k(f"buffer_load_dwordx4 v3, {ws}, s13 offen offset:{q*1024}{fl} lds")
            k("s_add_u32 s13, s13, 4096")
        else:
            for q in range(4): k(f"buffer_load_dwordx4 v3, {ws}, s15 offen offset:{q*1024}{fl} lds\ns_add_u32 s15, s15, 1024")
            k("s_add_u32 s15, s15, 4096")
    def p6A(self):
        k, st, name = self.k, self.st, self.name
        NST, sCNT = 18, 43
        self.dma6W(2); self.dma6W(3)
        k("s_barrier")
        poll1(k, f"{name}_f5poll", f"buffer_load_dword v10, v6, {ws}, s14 offen sc1", 1, pre=54)
        st.tr(18)
        for s in range(3): self.dma6T(s)
        k("s_waitcnt vmcnt(8)\ns_barrier")
        st.tr(19)
        self.dma6T(3)
        def lstage(s, vm=None):
            if vm is None: vm = 9 * (min(NST - 1, s + 3) - (s + 1))
            k(f"s_waitcnt vmcnt({vm})\ns_barrier")
            if s + 4 < NST: self.dma6T(s + 4); self.dma6W(s + 4)
        lstage(0, 8); lstage(1, 13); lstage(2); lstage(3)
        k(f"s_mov_b32 s{sCNT}, 2")
        k(f"{name}_l6loop:")
        for s in range(4, 8): lstage(s)
        k(f"s_sub_u32 s{sCNT}, s{sCNT}, 1\ns_cmp_lg_u32 s{sCNT}, 0\ns_cbranch_scc1 {name}_l6loop")
        for s in range(12, NST - 1): lstage(s)
    def p6B_pre(self):
        k, RES = self.k, self.RES
        self.rb_map(24, 25)
        fl = " sc1" if "3" in self.ph else ""
        k(f"s_lshl_b32 s26, s24, 2\ns_add_u32 s26, s26, s{sLW}")
        k(f"s_mul_i32 s12, s26, 18432\ns_add_u32 s12, s12, {WS_H}\ns_lshl_b32 s38, s25, 8\ns_add_u32 s13, s12, s38\ns_add_u32 s13, s13, 16384\ns_lshl_b32 s38, s25, 11\ns_add_u32 s12, s12, s38")
        k(f"v_and_b32 v11, 15, v1\nv_lshrrev_b32 v12, 4, v1\nv_mov_b32 v13, {OOB}\nv_lshlrev_b32 v8, 4, v11\nv_lshl_add_u32 v8, v12, 3, v8\nv_cmp_gt_u32 vcc, 32, v1\nv_cndmask_b32 v8, v13, v8, vcc")
        k(f"buffer_load_dwordx4 {vr(RES,4)}, v3, {ws}, s12 offen{fl}\nbuffer_load_dwordx4 {vr(RES+4,4)}, v3, {ws}, s12 offen offset:1024{fl}\nbuffer_load_dwordx2 {vr(RES+8,2)}, v8, {ws}, s13 offen{fl}")
        k(f"s_mul_i32 s14, s26, {16*1152}\ns_mul_i32 s38, s25, 144\ns_add_u32 s14, s14, s38")
        k(f"v_mul_u32_u24 v8, 1152, v11\nv_and_b32 v9, 1, v12\nv_lshlrev_b32 v9, 5, v9\nv_lshrrev_b32 v10, 1, v12\nv_lshl_add_u32 v9, v10, 4, v9\nv_add_u32 v232, v9, v8")
        k(f"v_lshl_add_u32 v8, v12, 3, v8\nv_cndmask_b32 v233, v13, v8, vcc")
    def p6B(self):
        k, st, name, RES = self.k, self.st, self.name, self.RES
        NST, sCNT, ACC = 18, 43, 16
        st.tr(15); k("s_waitcnt vmcnt(0)"); st.tr(16)
        k("s_barrier")
        k(f"s_load_dwordx2 s[8:9], s[0:1], {KA_OUT}")
        k(f"v_add_u32 v4, s{self.sMT}, v3\nv_add_u32 v6, 61440, v5")
        k(f"s_and_b32 s38, s{sLW}, 2\ns_lshl_b32 s38, s38, 12\ns_and_b32 s39, s{sLW}, 1\ns_lshl_b32 s39, s39, 3\ns_add_u32 s38, s38, s39\nv_add_u32 v7, s38, v3")
        def reads(c, s, blk, buf):
            slot = (s + 2) % 4
            r = []
            for kb in range(2):
                ks = blk * 2 + kb
                if s < 16: r.append(f"ds_read_b128 {vr(c.T(buf,kb,0),4)}, v4 offset:{slot*16384 + ks*1024}")
                else: r += [f"ds_read_b64 {vr(c.T(buf,kb,0)+2*h,2)}, v7 offset:{slot*16384 + ks*1024 + 4096*h}" for h in range(2)]
                for ft in range(5):
                    o = (slot if slot < 3 else 0) * 20480 + ks * 5120 + 1024 * ft
                    r.append(f"ds_read_b128 {vr(c.W(buf,kb,ft),4)}, v{5 if slot < 3 else 6} offset:{o}")
            return r
        c = Cons(k, 1, 5, 2, ACC, 36, "W", reads, rdgaps=6)
        for r in range(20): k(f"v_mov_b32 v{ACC+r}, 0")
        k("s_waitcnt lgkmcnt(0)\ns_mov_b32 s10, %d\ns_mov_b32 s11, 0x20000" % (S * D * 2))
        k("s_barrier")
        c.first_reads(0)
        k(f"s_mov_b32 s{sCNT}, 3")
        k(f"{name}_c6loop:")
        for s in range(4): c.stage(s, False)
        k(f"s_sub_u32 s{sCNT}, s{sCNT}, 1\ns_cmp_lg_u32 s{sCNT}, 0\ns_cbranch_scc1 {name}_c6loop")
        for s in range(12, NST): c.stage(s, s == NST - 1, barrier=(s < NST - 1))
        st.tr(17)
        P = 40
        for e in range(10): k(f"v_lshlrev_b32 v{60+2*e}, 16, v{RES+e}\nv_and_b32 v{61+2*e}, 0xffff0000, v{RES+e}")
        for e in range(10): k(f"v_pk_add_f32 {vr(ACC+2*e,2)}, {vr(ACC+2*e,2)}, {vr(60+2*e,2)}")
        for e in range(10): k(f"v_cvt_pk_bf16_f32 v{P+e}, v{ACC+2*e}, v{ACC+2*e+1}")
        for p in range(2): k(f"v_permlane16_swap_b32 v{P+4*p}, v{P+4*p+2}\nv_permlane16_swap_b32 v{P+4*p+1}, v{P+4*p+3}")
        k(f"buffer_store_dwordx4 {vr(P,4)}, v232, s[8:11], s14 offen\nbuffer_store_dwordx4 {vr(P+4,4)}, v232, s[8:11], s14 offen offset:64")
        k(f"buffer_store_dwordx2 {vr(P+8,2)}, v233, s[8:11], s14 offen offset:128")
    def build(self):
        k, st, name = self.k, self.st, self.name
        prologue(k, name, 256, sW, st)
        k(f"s_load_dwordx4 s[4:7], s[0:1], {KA_WSP}\ns_load_dwordx2 s[40:41], s[0:1], {KA_WS}")
        wave_lane(k, sW)
        k(f"s_and_b32 s{sLW}, s{sW}, 3")
        self.common45()
        k("s_waitcnt lgkmcnt(0)")
        srd(k, SRD_WS, 40, 0, WS_SIZE)
        k(f"s_cmp_lt_u32 s{sW}, 4\ns_cbranch_scc1 {name}_A")
        self.p4B()
        if "5" in self.ph: self.p5B()
        if "6" in self.ph: self.p6B()
        st.trflush(20, sW, SRD_WS, self.kidx); st.flush(2, sW, SRD_WS, self.kidx)
        k("s_endpgm")
        k(f"{name}_A:")
        k(f"v_mov_b32 v8, 0\nv_lshlrev_b32 v9, 2, v1\nv_add_u32 v9, {XF}, v9\nds_write_b32 v9, v8")
        self.p4A_setup()
        self.p4A()
        if "5" in self.ph: self.p5A()
        if "6" in self.ph: self.p6A()
        st.trflush(20, sW, SRD_WS, self.kidx); st.flush(2, sW, SRD_WS, self.kidx)
        k(f"{name}_end:\ns_endpgm")
        for x in k.tail: k(x)
        return k
def mega(phases, name=None, **kw): return Mega(name or f"k{phases}_kernel", phases, **kw).build()
if __name__ == "__main__":
    ks = [mega("4", stamps="trace"), mega("45", stamps="trace")]
    open("megat.s", "w").write(build(ks))
    for q in ks: print(q.name, q.stats, q.nops, len(q.lines))
```

```python
from common import *
from relayout import *
import math
QSCALE = (18 ** -0.5) * math.log2(math.e)
import struct
def f2u(x): return struct.unpack("<I", struct.pack("<f", x))[0]

def t_dma_setup(k, vDT0, vDT1, stride, t0=11):
    k(f"v_lshrrev_b32 v{t0}, 3, v1\nv_mul_u32_u24 v{t0+1}, {stride}, v{t0}")
    k(f"v_and_b32 v{t0+2}, 7, v1\nv_lshrrev_b32 v{t0+3}, 4, v1\nv_xor_b32 v{t0+2}, v{t0+2}, v{t0+3}")
    k(f"v_lshl_add_u32 v{vDT0}, v{t0+2}, 4, v{t0+1}")
    k(f"v_xor_b32 v{t0+2}, 4, v{t0+2}\nv_lshl_add_u32 v{vDT1}, v{t0+2}, 4, v{t0+1}\nv_add_u32 v{vDT1}, {8*stride}, v{vDT1}")
def t_swz_read_setup(k, vT0, vT1, sWv, t0=11):
    k(f"v_and_b32 v{t0}, 15, v1\nv_lshrrev_b32 v{t0+1}, 4, v1\nv_lshrrev_b32 v{t0+2}, 1, v{t0}\nv_xor_b32 v{t0+1}, v{t0+1}, v{t0+2}")
    k(f"v_lshlrev_b32 v{t0+1}, 4, v{t0+1}\nv_lshl_add_u32 v{t0+1}, v{t0}, 7, v{t0+1}\ns_lshl_b32 s38, s{sWv}, 12\nv_add_u32 v{vT0}, s38, v{t0+1}")
    k(f"v_xor_b32 v{vT1}, 64, v{vT0}")
def w_dma_setup(k, vDW, sLW, CH, nrows, coefs, const, stride, t0=11, nper=4, extra=True, mlist=None):
    n = nper + (1 if extra else 0)
    for i in range(n):
        if i < nper: k(f"s_mul_i32 s38, s{sLW}, {64*nper}\ns_add_u32 s38, s38, {64*i}")
        else: k(f"s_and_b32 s38, s{sLW}, 1\ns_lshl_b32 s38, s38, 6\ns_add_u32 s38, s38, {64*4*nper}")
        k(f"v_add_u32 v{t0}, s38, v1")
        vdiv(k, t0 + 1, t0 + 2, t0, CH, nrows * CH)
        vrowmap(k, vDW + i, t0 + 1, coefs, const, stride, t0 + 3, 39)
        k(f"v_lshl_add_u32 v{vDW+i}, v{t0+2}, 4, v{vDW+i}")
def tr_read_setup(k, vA, rowbytes, base, t0=11):
    k(f"v_lshrrev_b32 v{t0}, 2, v1\nv_mul_u32_u24 v{t0}, {rowbytes}, v{t0}\nv_add_u32 v{t0}, {base}, v{t0}")
    k(f"v_and_b32 v{t0+1}, 3, v1\nv_lshl_add_u32 v{vA}, v{t0+1}, 3, v{t0}")

def k1(name="k1_kernel", stamps=False, sidedelay=0):
    k = K(name, 256, 512, lds=8 * 18432 + 4608)
    st = Stamps(k, stamps)
    NST = 9
    sW, sI, sC, sLW = 20, 21, 22, 23
    SRD_T, SRD_W, SRD_WS, SRD_V = 8, 12, 16, 24
    sT, sT2, sWo, sMT, sMW, sMW5 = 28, 29, 30, 31, 32, 33
    sE = 34
    prologue(k, name, 256, sW, st)
    k(f"s_load_dwordx4 s[4:7], s[0:1], {KA_X}\ns_load_dwordx2 s[40:41], s[0:1], {KA_WS}\ns_load_dwordx2 s[42:43], s[0:1], {KA_WIN}")
    wave_lane(k, sW)
    k(f"s_and_b32 s38, s2, 7\ns_lshr_b32 s39, s2, 3")
    k(f"s_cmp_ge_u32 s39, 24\ns_cbranch_scc1 {name}_side")
    k(f"s_and_b32 s{sI}, s38, 3\ns_lshl_b32 s{sI}, s{sI}, 2\ns_and_b32 s{sC}, s39, 3\ns_add_u32 s{sI}, s{sI}, s{sC}")
    k(f"s_lshr_b32 s38, s38, 2\ns_mul_i32 s38, s38, 6\ns_lshr_b32 s{sC}, s39, 2\ns_add_u32 s{sC}, s{sC}, s38")
    k(f"s_cmp_lt_u32 s{sW}, 4\ns_cbranch_scc1 {name}_cons")
    vDT0, vDT1, vDW = 3, 4, 5
    vT0, vT1, vS0, vS1, vS2 = 90, 91, 92, 93, 94
    k(f"s_sub_u32 s{sLW}, s{sW}, 4")
    t_dma_setup(k, vDT0, vDT1, 1152)
    w_dma_setup(k, vDW, sLW, 18, 64, [1, 2, 8, 16, 4, 32], 0, 3456)
    k(f"s_mul_i32 s{sT}, s{sI}, {128*1152}\ns_mul_i32 s39, s{sLW}, {32*1152}\ns_add_u32 s{sT}, s{sT}, s39\ns_add_u32 s{sT2}, s{sT}, {16*1152}")
    k(f"s_mul_i32 s{sWo}, s{sC}, 288")
    k(f"s_lshl_b32 s{sMT}, s{sLW}, 12\ns_add_u32 s{sMW}, s{sMT}, {W_BASE}")
    k(f"s_and_b32 s39, s{sLW}, 1\ns_lshl_b32 s39, s39, 10\ns_add_u32 s{sMW5}, s39, {W_BASE+16384}")
    k(f"s_cmp_lt_u32 s{sLW}, 2\ns_cselect_b64 s[{sE}:{sE+1}], -1, 0\ns_cselect_b64 s[{sE+2}:{sE+3}], 0, -1")
    k("s_waitcnt lgkmcnt(0)")
    srd(k, SRD_T, 4, 0, S * D * 2)
    srd(k, SRD_W, 6, 0, D * 3 * D * 2)
    srd(k, SRD_WS, 40, 0, WS_SIZE)
    def dma(s):
        slot = s % 4
        for q in range(4):
            k(f"s_add_u32 m0, s{sMT}, {slot*T_SLOT + q*1024}")
            k(f"buffer_load_dwordx4 v{vDT0 + (q&1)}, {S4(SRD_T)}, s{sT if q < 2 else sT2} offen lds")
        for n in range(4):
            k(f"s_add_u32 m0, s{sMW}, {slot*W_SLOT + n*1024}")
            k(f"buffer_load_dwordx4 v{vDW+n}, {S4(SRD_W)}, s{sWo} offen lds")
        e = sE + 2 * (s & 1)
        k(f"s_add_u32 m0, s{sMW5}, {slot*W_SLOT}\ns_mov_b64 exec, s[{e}:{e+1}]")
        k(f"buffer_load_dwordx4 v{vDW+4}, {S4(SRD_W)}, s{sWo} offen lds\ns_mov_b64 exec, -1")
        k(f"s_add_u32 s{sT}, s{sT}, 128\ns_add_u32 s{sT2}, s{sT2}, 128\ns_add_u32 s{sWo}, s{sWo}, {64*3456}")
    st.tr(1)
    for s in range(3): dma(s)
    st.tr(2)
    t_swz_read_setup(k, vT0, vT1, sLW)
    tr_read_setup(k, vS0, 288, W_BASE)
    k(f"s_lshr_b32 s44, s{sLW}, 1\ns_mul_i32 s44, s44, 72\ns_and_b32 s45, s{sLW}, 1\ns_mul_i32 s45, s45, 40\ns_add_u32 s44, s44, s45")
    k(f"s_lshl_b32 s45, s{sLW}, 5\ns_cmp_lt_u32 s{sC}, 8\ns_cselect_b32 s44, s44, s45\ns_movk_i32 s45, 144\ns_cselect_b32 s45, s45, 128\ns_cselect_b32 s46, 72, 8\ns_cselect_b32 s47, 32, 256")
    k(f"v_mad_u32_u24 v{vS2}, v12, s46, v11\nv_add_u32 v{vS2}, s47, v{vS2}")
    k(f"v_add_u32 v{vS0}, s44, v{vS0}\nv_add_u32 v{vS1}, s45, v{vS0}")
    for i in range(3): k(f"v_add_u32 v{vS0+3+i}, {3*W_SLOT}, v{vS0+i}")
    ONES, TF, WF, SUM, GR, CSA = 16, 20, 36, 60, 68, 76
    for i in range(4): k(f"v_mov_b32 v{ONES+i}, 0x3f803f80")
    k("s_waitcnt vmcnt(17)\ns_barrier")
    dma(3)
    for s in range(NST):
        slot = s % 4
        for kk in range(2):
            for tt in range(2):
                k(f"ds_read_b128 {vr(TF+8*kk+4*tt,4)}, v{vT0+kk} offset:{slot*T_SLOT + tt*2048}")
            for i in range(3):
                for hh in range(2):
                    o = (slot if slot < 3 else 0) * W_SLOT + (32 * kk + 16 * hh) * 288
                    k(f"ds_read_b64_tr_b16 {vr(WF+12*kk+4*i+2*hh,2)}, v{vS0+i+(3 if slot == 3 else 0)} offset:{o}")
        for kk in range(2):
            k(f"s_waitcnt lgkmcnt({8*(1-kk)})")
            z = (s == 0 and kk == 0)
            for tt in range(2):
                t = vr(TF + 8 * kk + 4 * tt, 4)
                k(f"v_mfma_f32_16x16x32_bf16 {vr(SUM+4*tt,4)}, {vr(ONES,4)}, {t}, {'0' if z else vr(SUM+4*tt,4)}")
                k(f"v_mfma_f32_16x16x32_bf16 {vr(GR+4*tt,4)}, {t}, {t}, {'0' if z else vr(GR+4*tt,4)}")
            for i in range(3):
                k(f"v_mfma_f32_16x16x32_bf16 {vr(CSA+4*i,4)}, {vr(ONES,4)}, {vr(WF+12*kk+4*i,4)}, {'0' if z else vr(CSA+4*i,4)}")
        if s + 1 < NST:
            vm = 17 if s + 3 < NST else (8 if s + 2 < NST else 0)
            st.tr(3 + 2 * s)
            k(f"s_waitcnt vmcnt({vm})\ns_barrier")
            st.tr(4 + 2 * s)
            if s + 4 < NST: dma(s + 4)
    k(f"v_and_b32 v11, 15, v1\nv_lshrrev_b32 v12, 4, v1\nv_lshrrev_b32 v13, 2, v11\nv_and_b32 v14, 3, v1")
    k(f"s_lshl_b32 s44, s{sLW}, 8\ns_add_u32 s44, s44, {X_BASE}\nv_lshl_add_u32 v15, v11, 2, s44")
    k(f"v_cmp_eq_u32 vcc, v12, v13\nv_mov_b32 v10, {X_BASE+2048}\nv_cndmask_b32 v15, v10, v15, vcc")
    k(f"v_cmp_eq_u32 s[44:45], 1, v14\nv_cmp_eq_u32 s[46:47], 2, v14\nv_cmp_eq_u32 s[48:49], 3, v14")
    k(f"s_mov_b32 s50, {f2u(1.0/576)}\ns_mov_b32 s51, {f2u(1e-5)}\ns_cmp_lt_u32 s{sC}, 4\ns_cselect_b32 s52, {f2u(QSCALE)}, 1.0")
    for tt in range(2):
        g = GR + 4 * tt
        k(f"v_cndmask_b32 v10, v{g}, v{g+1}, s[44:45]\nv_cndmask_b32 v10, v10, v{g+2}, s[46:47]\nv_cndmask_b32 v10, v10, v{g+3}, s[48:49]")
        k(f"v_mul_f32 v12, s50, v{SUM+4*tt}\nv_mul_f32 v10, s50, v10\nv_fma_f32 v10, -v12, v12, v10\nv_max_f32 v10, 0, v10\nv_add_f32 v10, s51, v10")
        k(f"v_rsq_f32 v10, v10\nv_mul_f32 v10, s52, v10\nv_mul_f32 v12, v12, v10\nv_sub_f32 v12, 0, v12")
        k(f"ds_write_b32 v15, v10 offset:{64*tt}\nds_write_b32 v15, v12 offset:{128+64*tt}")
    k(f"s_lshl_b32 s44, s{sLW}, 6\ns_add_u32 s44, s44, {X_BASE+1024}\nv_lshl_add_u32 v15, v11, 2, s44")
    k(f"ds_write_b32 v15, v{CSA}\nds_write_b32 v15, v{CSA+4} offset:256")
    k(f"v_lshlrev_b32 v15, 2, v11\nds_write_b32 v15, v{CSA+8} offset:0" if False else f"v_lshlrev_b32 v15, 2, v11\nv_add_u32 v15, {X_BASE+1024+512}, v15\nds_write_b32 v15, v{CSA+8}")
    k("s_waitcnt lgkmcnt(0)\ns_barrier")
    st.tr(19); st.trflush(20, sW, SRD_WS, 0)
    st.flush(2, sW, SRD_WS, 0)
    k("s_endpgm")
    k(f"{name}_cons:")
    vT0, vT1, vWa, vWt = 3, 4, 5, 7
    t_swz_read_setup(k, vT0, vT1, sW)
    tr_read_setup(k, vWa, 288, W_BASE)
    k(f"v_add_u32 v{vWa+1}, {3*W_SLOT}, v{vWa}")
    k(f"v_mul_u32_u24 v{vWt}, 72, v12\nv_add3_u32 v{vWt}, v{vWt}, v11, 32\nv_add_u32 v{vWt+1}, {3*W_SLOT}, v{vWt}")
    k("s_waitcnt lgkmcnt(0)")
    srd(k, SRD_WS, 40, 0, WS_SIZE)
    srd(k, SRD_V, 40, WS_VF, 256 * 9728)
    ACC, FR0 = 16, 88
    def mkreads(qk):
        def reads(c, s, kk, buf):
            slot = s % 4
            r = [f"ds_read_b128 {vr(c.T(buf,0,tt),4)}, v{vT0+kk} offset:{slot*T_SLOT + tt*2048}" for tt in range(2)]
            for ft in range(9):
                for hh in range(2):
                    o = (slot if slot < 3 else 0) * W_SLOT + (32 * kk + 16 * hh) * 288
                    va = vWa
                    if qk:
                        if ft < 8: o += 72 * (ft >> 1) + 40 * (ft & 1)
                        else: va = vWt
                    else: o += 32 * ft
                    r.append(f"ds_read_b64_tr_b16 {vr(c.W(buf,0,ft)+2*hh,2)}, v{va + (1 if slot == 3 else 0)} offset:{o}")
            return r
        return reads
    k(f"s_lshl_b32 s44, s{sI}, 2\ns_add_u32 s44, s44, s{sW}")
    k(f"s_cmp_ge_u32 s{sC}, 8\ns_cbranch_scc1 {name}_vcons")
    P = 88
    for qk in (True, False):
        if not qk: k(f"{name}_vcons:")
        c = Cons(k, 2, 9, 1, ACC, FR0, "W" if qk else "T", mkreads(qk), rdgaps=12)
        k("s_barrier")
        st(1); st.tr(1)
        c.first_reads(0)
        for s in range(NST):
            c.stage(s, s == NST - 1, zero_c=(s == 0), barrier=(s < NST - 1), post_barrier=(lambda s=s: st.tr(2 + s)))
        st(2); st.tr(11)
        k("s_barrier")
        st.tr(12)
        k(f"v_and_b32 v11, 15, v1\nv_lshrrev_b32 v12, 4, v1\ns_lshl_b32 s45, s{sW}, 8\ns_add_u32 s45, s45, {X_BASE}")
        AB, CS = 124, 140
        if qk:
            k(f"v_lshl_add_u32 v13, v11, 2, s45\nv_lshlrev_b32 v14, 4, v12\nv_add_u32 v14, {X_BASE+1024}, v14")
            for tt in range(2): k(f"ds_read2_b32 {vr(AB+2*tt,2)}, v13 offset0:{16*tt} offset1:{32+16*tt}")
            for ft in range(9): k(f"ds_read_b128 {vr(CS+4*ft,4)}, v14 offset:{64*ft}")
            k(f"s_and_b32 s46, s{sC}, 3\ns_lshl_b32 s47, s46, 19\ns_lshl_b32 s48, s44, 10\ns_add_u32 s47, s47, s48")
            k(f"s_cmp_lt_u32 s{sC}, 4\ns_mov_b32 s48, {WS_QM}\ns_cselect_b32 s48, s48, {WS_KM}\ns_mov_b32 s49, {WS_QT}\ns_cselect_b32 s49, s49, {WS_KT}\ns_add_u32 s47, s47, s48")
            k(f"s_lshl_b32 s46, s46, 16\ns_add_u32 s49, s49, s46\ns_lshl_b32 s46, s44, 7\ns_add_u32 s49, s49, s46")
            k(f"v_lshlrev_b32 v9, 4, v1\nv_and_b32 v10, 31, v1\nv_lshlrev_b32 v10, 2, v10\nv_lshrrev_b32 v15, 5, v1\nv_lshl_add_u32 v10, v15, 15, v10")
            k("s_waitcnt lgkmcnt(0)")
            for ft in range(9):
                o = P + 4 * (ft % 4)
                for tt in range(2):
                    a = c.acc(tt, ft)
                    for h in range(2):
                        k(f"v_pk_mul_f32 {vr(a+2*h,2)}, {vr(a+2*h,2)}, {vr(AB+2*tt,2)} op_sel_hi:[1,0]")
                    for h in range(2):
                        k(f"v_pk_fma_f32 {vr(a+2*h,2)}, {vr(CS+4*ft+2*h,2)}, {vr(AB+2*tt,2)}, {vr(a+2*h,2)} op_sel:[0,1,0]")
                    for h in range(2):
                        k(f"v_cvt_pk_bf16_f32 v{o+2*tt+h}, v{a+2*h}, v{a+2*h+1}")
                k(f"v_permlane16_swap_b32 v{o}, v{o+2}\nv_permlane16_swap_b32 v{o+1}, v{o+3}")
                if ft < 8:
                    k(f"buffer_store_dwordx4 {vr(o,4)}, v9, {S4(SRD_WS)}, s47 offen\ns_add_u32 s47, s47, 65536")
                else:
                    for e in range(4):
                        k(f"buffer_store_dword v{o+e}, v10, {S4(SRD_WS)}, s49 offen\ns_add_u32 s49, s49, 8192")
        else:
            k(f"v_lshl_add_u32 v13, v12, 4, s45\nv_lshlrev_b32 v14, 2, v11\nv_add_u32 v14, {X_BASE+1024}, v14")
            for tt in range(2):
                k(f"ds_read_b128 {vr(AB+8*tt,4)}, v13 offset:{64*tt}\nds_read_b128 {vr(AB+8*tt+4,4)}, v13 offset:{128+64*tt}")
            for ft in range(9): k(f"ds_read_b32 v{CS+ft}, v14 offset:{64*ft}")
            k(f"s_mul_i32 s47, s44, {4*9728}\ns_sub_u32 s46, s{sC}, 8\ns_mul_i32 s46, s46, {8*304}\ns_add_u32 s47, s47, s46")
            k(f"v_mul_u32_u24 v9, 9728, v12")
            VO = 152
            m, sh = magic(18, 144)
            for ft in range(9):
                k(f"v_add_u32 v10, {16*ft}, v11\nv_mul_u32_u24 v15, {m}, v10\nv_lshrrev_b32 v15, {sh}, v15\nv_add_u32 v10, v10, v15\nv_lshl_add_u32 v{VO+ft}, v10, 4, v9")
            k(f"v_lshrrev_b32 v10, 3, v1\nv_mul_u32_u24 v10, 9728, v10\nv_and_b32 v15, 7, v1\nv_mul_u32_u24 v15, 304, v15\nv_add3_u32 v10, v10, v15, 0\nv_add_u32 v10, 288, v10")
            k(f"v_cmp_gt_u32 vcc, 32, v1\nv_mov_b32 v15, 0x40000000\nv_cndmask_b32 v10, v15, v10, vcc")
            for i in range(4): k(f"v_mov_b32 v{164+i}, 0x3f803f80")
            k(f"buffer_store_dwordx4 v[164:167], v10, {S4(SRD_V)}, s47 offen")
            k("s_waitcnt lgkmcnt(0)")
            for ft in range(9):
                o = P + 4 * (ft % 4)
                cp = CS + (ft & ~1); hs = ft & 1
                for tt in range(2):
                    a = c.acc(tt, ft)
                    for h in range(2):
                        k(f"v_pk_mul_f32 {vr(a+2*h,2)}, {vr(a+2*h,2)}, {vr(AB+8*tt+2*h,2)}")
                    for h in range(2):
                        k(f"v_pk_fma_f32 {vr(a+2*h,2)}, {vr(cp,2)}, {vr(AB+8*tt+4+2*h,2)}, {vr(a+2*h,2)} op_sel:[{hs},0,0] op_sel_hi:[{hs},1,1]")
                    for h in range(2):
                        k(f"v_cvt_pk_bf16_f32 v{o+2*tt+h}, v{a+2*h}, v{a+2*h+1}")
                k(f"v_permlane32_swap_b32 v{o}, v{o+2}\nv_permlane32_swap_b32 v{o+1}, v{o+3}")
                k(f"buffer_store_dwordx4 {vr(o,4)}, v{VO+ft}, {S4(SRD_V)}, s47 offen")
        st.tr(13); k("s_waitcnt vmcnt(0)") if st.on == "trace" else None; st.tr(14); st.trflush(15, sW, SRD_WS, 0)
        st.flush(4, sW, SRD_WS, 0)
        k("s_endpgm")
    k(f"{name}_side:")
    k(f"s_load_dwordx2 s[48:49], s[0:1], {KA_WO}")
    k(f"s_sub_u32 s39, s39, 24\ns_lshl_b32 s39, s39, 3\ns_add_u32 s21, s39, s38")
    k(f"s_lshr_b32 s22, s21, 1\ns_and_b32 s23, s21, 1")
    DA, DB, FA, FB = 20, 30, 40, 80
    unit_offsets(k, DA, 9, [1, 2, 4, 8, 16], 0, 9216)
    k(f"s_mul_i32 s28, s{sW}, {72*9216}\ns_mul_i32 s29, s23, {32*9216}\ns_add_u32 s28, s28, s29\ns_mul_i32 s30, s22, 288\ns_add_u32 s28, s28, s30")
    k(f"s_mul_i32 s31, s{sW}, 18432\ns_add_u32 s32, s31, 9216")
    k(f"s_mul_i32 s33, s22, {18*9216}\ns_add_u32 s33, s33, {WS_WINF}\ns_mul_i32 s29, s23, 9216\ns_add_u32 s33, s33, s29")
    k(f"s_mul_i32 s29, s{sW}, {2*9216}\ns_add_u32 s34, s33, s29\ns_add_u32 s35, s33, {16*9216}")
    k("v_lshlrev_b32 v3, 4, v1")
    k("s_waitcnt lgkmcnt(0)")
    srd(k, SRD_W, 42, 0, D * F * 2)
    srd(k, SRD_T, 48, 0, D * D * 2)
    srd(k, SRD_WS, 40, 0, WS_SIZE)
    for _ in range(sidedelay): k("s_sleep 16")
    unit_issue(k, DA, 9, SRD_W, 28, 31)
    k(f"v_mov_b32 v8, -1\nv_mov_b32 v9, -1\nv_lshlrev_b32 v7, 3, v0\ns_lshl_b32 s45, s21, 12\ns_add_u32 s45, s45, {WS_ZST}")
    k(f"buffer_store_dwordx2 v[8:9], v7, {S4(SRD_WS)}, s45 offen")
    k(f"v_cmp_gt_u32 vcc, 256, v0\nv_mov_b32 v6, 0x40000000\nv_cndmask_b32 v7, v6, v7, vcc\ns_lshl_b32 s45, s21, 11\ns_add_u32 s45, s45, {WS_FL2}")
    k(f"buffer_store_dwordx2 v[8:9], v7, {S4(SRD_WS)}, s45 offen")
    for i in range(4): k(f"v_mov_b32 v{16+i}, 0x3f803f80")
    CSP = 8 * 18432
    def finishA(extra):
        unit_read(k, FA, 9, 31)
        k("s_waitcnt lgkmcnt(0)")
        unit_store(k, FA, 9, 3, SRD_WS, 34)
        for ft in range(9): k(f"v_mfma_f32_16x16x32_bf16 {vr(120+4*ft,4)}, v[16:19], {vr(FA+4*ft,4)}, 0")
    def cs_out():
        k(f"v_and_b32 v11, 15, v1\ns_mul_i32 s29, s{sW}, 576\ns_add_u32 s29, s29, {CSP}\nv_lshl_add_u32 v11, v11, 2, s29")
        for ft in range(9): k(f"ds_write_b32 v11, v{120+4*ft} offset:{64*ft}")
    k(f"s_cmp_eq_u32 s{sW}, 0\ns_cbranch_scc1 {name}_sB0")
    k(f"s_cmp_gt_u32 s{sW}, 3\ns_cbranch_scc1 {name}_sNone\ns_cmp_ge_u32 s21, 48\ns_cbranch_scc1 {name}_sNone")
    k(f"s_mul_i32 s44, s21, 3\ns_add_u32 s44, s44, s{sW}\ns_sub_u32 s44, s44, 1\ns_mul_i32 s45, s44, 3641\ns_lshr_b32 s45, s45, 16\ns_mul_i32 s46, s45, 18\ns_sub_u32 s46, s44, s46")
    k(f"s_mul_i32 s47, s44, 5120\ns_add_u32 s47, s47, {WS_WOF}\ns_mul_i32 s45, s45, 144")
    k(f"s_cmp_ge_u32 s46, 16\ns_cbranch_scc1 {name}_sWoT")
    unit_offsets(k, DB, 5, [1, 2, 4, 18, 8], 0, 1152)
    k(f"s_mul_i32 s46, s46, {36*1152}\ns_branch {name}_sWo2")
    k(f"{name}_sWoT:")
    unit_offsets(k, DB, 5, [1, 18, 72, 144, 36], 16, 1152)
    k(f"s_sub_u32 s46, s46, 16\ns_mul_i32 s46, s46, {288*1152}")
    k(f"{name}_sWo2:")
    k("s_add_u32 s46, s46, s45")
    unit_issue(k, DB, 5, SRD_T, 46, 32)
    k("s_waitcnt vmcnt(0)")
    finishA(0)
    unit_read(k, FB, 5, 32)
    k("s_waitcnt lgkmcnt(0)")
    unit_store(k, FB, 5, 3, SRD_WS, 47)
    k(f"s_branch {name}_sCs")
    k(f"{name}_sB0:")
    unit_offsets(k, DB, 9, [1, 2, 72, 144, 4], 64, 9216)
    k(f"s_mul_i32 s46, s23, {288*9216}\ns_add_u32 s46, s46, s30")
    unit_issue(k, DB, 9, SRD_W, 46, 32)
    k("s_waitcnt vmcnt(0)")
    finishA(0)
    unit_read(k, FB, 9, 32)
    k("s_waitcnt lgkmcnt(0)")
    unit_store(k, FB, 9, 3, SRD_WS, 35)
    for ft in range(9): k(f"v_mfma_f32_16x16x32_bf16 {vr(120+4*ft,4)}, v[16:19], {vr(FB+4*ft,4)}, {vr(120+4*ft,4)}")
    k(f"s_branch {name}_sCs")
    k(f"{name}_sNone:")
    k("s_waitcnt vmcnt(0)")
    finishA(0)
    k(f"{name}_sCs:")
    cs_out()
    k("s_waitcnt lgkmcnt(0)\ns_barrier")
    k(f"v_min_u32 v7, 143, v0\nv_lshlrev_b32 v7, 2, v7\nv_add_u32 v8, {CSP}, v7")
    for n in range(8): k(f"ds_read_b32 v{20+n}, v8 offset:{576*n}")
    k("s_waitcnt lgkmcnt(0)")
    for n in range(1, 8): k(f"v_add_f32 v20, v20, v{20+n}")
    k(f"v_cmp_gt_u32 vcc, 144, v0\nv_mov_b32 v6, 0x40000000\nv_cndmask_b32 v7, v6, v7, vcc")
    k(f"s_mul_i32 s45, s22, 576\ns_mul_i32 s46, s23, {4608*4}\ns_add_u32 s45, s45, s46\ns_add_u32 s45, s45, {WS_CS}")
    k(f"buffer_store_dword v20, v7, {S4(SRD_WS)}, s45 offen")
    st.flush(2, sW, SRD_WS, 0)
    k(f"{name}_end:\ns_endpgm")
    return k
if __name__ == "__main__":
    ks = [k1(stamps=True)]

    open("k1t.s", "w").write(build(ks))
    for q in ks: print(q.name, q.stats, q.nops, len(q.lines))
```

```python
from common import *
from relayout import *

def k2(name="k2_kernel", stamps=False, PREF=True):
    VB, KTB = 16384, 40960
    RB, JB = KTB + 2048, KTB + 2048 + 3 * 5120
    k = K(name, 256, 512, lds=JB + 4096)
    st = Stamps(k, stamps)
    sW, sQB, sH = 20, 21, 22
    SRD_WS = 16
    OOB = 0x40000000
    prologue(k, name, 256, sW, st)
    k(f"s_load_dwordx2 s[40:41], s[0:1], {KA_WS}\ns_load_dwordx2 s[4:5], s[0:1], {KA_WSP}\ns_load_dwordx2 s[6:7], s[0:1], {KA_WOUT}")
    wave_lane(k, sW)
    k(f"s_bfe_u32 s{sQB}, s2, 0x30003\ns_and_b32 s38, s2, 7\ns_lshl_b32 s38, s38, 2\ns_lshr_b32 s{sH}, s2, 6\ns_add_u32 s{sH}, s{sH}, s38")
    k(f"s_cmp_eq_u32 s{sQB}, 0\ns_cselect_b32 s23, 32, 0")
    k(f"v_mov_b32 v15, {OOB}")
    for i in range(3):
        k(f"s_lshl_b32 s38, s{sW}, 6\ns_add_u32 s38, s38, {512*i}\nv_add_u32 v11, s38, v1")
        vdiv(k, 12, 13, 11, 19, 1536)
        k(f"v_mul_u32_u24 v14, 9728, v12\nv_lshl_add_u32 v{3+i}, v13, 4, v14")
        k(f"v_cmp_gt_u32 vcc, s23, v12\nv_cndmask_b32 v{3+i}, v{3+i}, v15, vcc")
        if i == 2: k(f"v_cmp_lt_u32 vcc, 63, v12\nv_cndmask_b32 v{3+i}, v{3+i}, v15, vcc")
    k("v_lshlrev_b32 v6, 4, v1\nv_lshlrev_b32 v7, 2, v1")
    k(f"s_lshl_b32 s24, s{sH}, 16\ns_lshl_b32 s25, s{sQB}, 13\ns_add_u32 s24, s24, s25\ns_lshl_b32 s25, s{sW}, 10")
    k(f"s_add_u32 s26, s24, s25\ns_add_u32 s26, s26, {WS_QM}")
    k(f"s_lshl_b32 s25, s{sW}, 11\ns_add_u32 s27, s24, s25\ns_add_u32 s27, s27, {WS_KM - 8192}")
    k(f"s_lshr_b32 s24, s24, 3")
    k(f"s_lshl_b32 s25, s{sW}, 7\ns_add_u32 s28, s24, s25\ns_add_u32 s28, s28, {WS_QT}")
    k(f"s_lshl_b32 s25, s{sW}, 8\ns_add_u32 s29, s24, s25\ns_add_u32 s29, s29, {WS_KT - 1024}")
    k(f"s_mul_i32 s30, s{sQB}, {32*9728}\ns_mul_i32 s25, s{sH}, 304\ns_add_u32 s30, s30, s25\ns_add_u32 s30, s30, {WS_VF - 32*9728}")
    k(f"s_lshl_b32 s25, s{sQB}, 3\ns_add_u32 s31, s25, s{sW}")
    k(f"s_cmp_lt_u32 s31, 4\ns_cselect_b32 s27, {OOB}, s27\ns_cselect_b32 s29, {OOB}, s29")
    k("s_waitcnt lgkmcnt(0)")
    srd(k, SRD_WS, 40, 0, WS_SIZE)
    QM, QT = 16, 20
    ws = S4(SRD_WS)
    k(f"s_lshl_b32 s25, s{sW}, 11\ns_mov_b32 m0, s25")
    k(f"buffer_load_dwordx4 v6, {ws}, s27 offen lds\nbuffer_load_dwordx4 v6, {ws}, s27 offen offset:1024 lds")
    k(f"s_lshl_b32 s25, s{sW}, 8\ns_add_u32 m0, s25, {KTB}")
    k(f"buffer_load_dword v7, {ws}, s29 offen lds")
    k(f"buffer_load_dwordx4 {vr(QM,4)}, v6, {ws}, s26 offen")
    k(f"v_cmp_gt_u32 vcc, 32, v1\nv_cndmask_b32 v8, v15, v7, vcc")
    k(f"buffer_load_dword v{QT}, v8, {ws}, s28 offen")
    k(f"s_lshl_b32 s25, s{sW}, 10")
    for i in range(3):
        k(f"s_add_u32 m0, s25, {VB + 8192*i}")
        k(f"buffer_load_dwordx4 v{3+i}, {ws}, s30 offen lds")
    vKa, vKt, vVa = 3, 4, 5
    KT = 24
    MK = 44
    KF = 52
    VF = 64
    O = 80
    SB = 96
    k(f"v_cndmask_b32 v{QT+1}, 0, 1.0, vcc\nv_lshrrev_b32 v{QT+1}, 16, v{QT+1}\nv_mov_b32 v{QT+2}, 0\nv_mov_b32 v{QT+3}, 0")
    k(f"s_lshl_b32 s25, s{sW}, 10\nv_add_u32 v{vKa}, s25, v6")
    k(f"v_and_b32 v11, 31, v1\nv_lshrrev_b32 v12, 5, v1")
    k(f"s_lshl_b32 s25, s{sW}, 7\ns_add_u32 s25, s25, {KTB}\nv_lshl_add_u32 v{vKt}, v11, 2, s25")
    k(f"s_mul_i32 s25, s{sW}, {4*304}\ns_add_u32 s25, s25, {VB}\nv_min_u32 v13, 18, v11\nv_mul_u32_u24 v14, 304, v12\nv_lshl_add_u32 v13, v13, 4, v14\nv_add_u32 v{vVa}, s25, v13")
    for kt in range(10):
        if kt < 8:
            k(f"s_cmp_lt_u32 s31, {8-kt}\ns_cselect_b32 s25, 0xff7f, 0\nv_mov_b32 v{KT+2*kt+1}, s25")
        else: k(f"v_mov_b32 v{KT+2*kt+1}, 0")
    k(f"v_mov_b32 v{KT+18}, 0")
    k(f"v_lshlrev_b32 v14, 2, v12\nv_sub_u32 v14, v11, v14")
    for r in range(16):
        k(f"v_cmp_gt_i32 s[{44+2*r}:{45+2*r}], {8*(r>>2)+(r&3)}, v14")
    k("v_mov_b32 v9, 0xffff\nv_mov_b32 v10, 0xffff0000")
    for e in range(8):
        k(f"v_cndmask_b32 v13, 0, v9, s[{44+4*e}:{45+4*e}]\nv_cndmask_b32 v{MK+e}, 0, v10, s[{46+4*e}:{47+4*e}]\nv_or_b32 v{MK+e}, v{MK+e}, v13")
    k(f"v_lshrrev_b32 v13, 4, v11\nv_lshlrev_b32 v13, 14, v13\nv_and_b32 v14, 15, v1\nv_lshl_add_u32 v9, v14, 4, v13")
    k(f"v_lshl_add_u32 v8, v12, 8, v9\nv_cndmask_b32 v9, v15, v7, vcc")
    k(f"s_lshl_b32 s32, s31, 15\ns_add_u32 s32, s32, {WS_O}\ns_lshl_b32 s25, s{sH}, 9\ns_add_u32 s33, s32, s25")
    k(f"s_lshl_b32 s34, s31, 5\ns_add_u32 s34, s34, s{sH}\ns_lshl_b32 s34, s34, 7\ns_add_u32 s34, s34, {WS_OT}")
    DR = 240
    k(f"s_lshl_b32 s35, s2, 1\ns_add_u32 s35, s35, s{sW}\ns_add_u32 s36, s2, 512\ns_cmp_eq_u32 s{sW}, 2\ns_cselect_b32 s35, s36, s35")
    k(f"s_cmp_gt_u32 s{sW}, 2\ns_cselect_b32 s35, 576, s35")
    k(f"s_lshr_b32 s36, s35, 3\ns_and_b32 s37, s35, 7\ns_mul_i32 s25, s37, 144")
    k(f"s_lshr_b32 s76, s36, 2\ns_mul_i32 s76, s76, 144\ns_and_b32 s39, s36, 3\ns_lshl_b32 s39, s39, 5\ns_add_u32 s76, s76, s39")
    k(f"s_mul_i32 s39, s36, 288\ns_sub_u32 s39, s39, {288*64-128}\ns_cmp_ge_u32 s36, 64\ns_cselect_b32 s76, s39, s76\ns_cselect_b32 s39, {128*1152}, 0")
    k(f"s_mul_i32 s76, s76, 1152\ns_add_u32 s76, s76, s25")
    for i in range(5):
        k(f"v_add_u32 v245, {64*i}, v1")
        vdiv(k, 246, 247, 245, 10, 320)
        k(f"v_mul_u32_u24 v{DR+i}, 1152, v246\nv_lshl_add_u32 v{DR+i}, v247, 4, v{DR+i}\nv_lshrrev_b32 v246, 4, v246\nv_mad_u32_u24 v{DR+i}, v246, s39, v{DR+i}")
    k(f"s_mul_i32 s37, s37, 72\ns_add_u32 s37, s37, s36\ns_mul_i32 s37, s37, 5120\ns_add_u32 s37, s37, {WS_WOUTF}")
    k(f"s_min_u32 s77, s{sW}, 2\ns_mul_i32 s77, s77, 5120\ns_add_u32 s77, s77, {RB}")
    srd(k, 8, 4, 0, S * S * 2)
    srd(k, 12, 6, 0, FH * D * 2)
    k(f"s_lshl_b32 s36, s2, 3\ns_add_u32 s36, s36, s{sW}\ns_lshl_b32 s36, s36, 12")
    k("s_waitcnt vmcnt(0)\ns_barrier")
    st(1)
    if PREF:
        k(f"s_mov_b32 m0, {JB}")
        for q in range(4): k(f"buffer_load_dwordx4 v6, s[8:11], s36 offen offset:{1024*q} lds")
    k(f"s_cmp_ge_u32 s35, 576\ns_cbranch_scc1 {name}_nou")
    unit_issue(k, DR, 5, 12, 76, 77)
    k(f"{name}_nou:")
    order = [0, 8, 1, 2, 3, 4, 5, 6, 7]
    for kt in order: k(f"ds_read_b32 v{KT+2*kt}, v{vKt} offset:{128*kt}")
    NB = 3
    for i in range(NB): k(f"ds_read_b128 {vr(KF+4*i,4)}, v{vKa} offset:{1024*order[i]}")
    def Sx(kt): return SB + 16 * kt
    M0, M1 = 10, 11
    def maxes(kt, first):
        s = Sx(kt); out = []
        for q in range(8):
            m = M0 if q % 2 == 0 else M1
            if first and q < 2: out.append(f"v_max_f32 v{m}, v{s+2*q}, v{s+2*q+1}")
            else: out.append(f"v_max3_f32 v{m}, v{s+2*q}, v{s+2*q+1}, v{m}")
        return out
    pend = []
    for i, kt in enumerate(order):
        left = min(NB - 1, 8 - i)
        k(f"s_waitcnt lgkmcnt({left})")
        k(f"v_mfma_f32_32x32x16_bf16 {vr(Sx(kt),16)}, {vr(KF+4*(i%NB),4)}, {vr(QM,4)}, 0")
        for _ in range(min(4, len(pend))): k(pend.pop(0))
        k(f"v_mfma_f32_32x32x16_bf16 {vr(Sx(kt),16)}, {vr(KT+2*kt,4)}, {vr(QT,4)}, {vr(Sx(kt),16)}")
        if i + NB < 9: k(f"ds_read_b128 {vr(KF+4*(i%NB),4)}, v{vKa} offset:{1024*order[i+NB]}")
        for _ in range(min(6, len(pend))): k(pend.pop(0))
        if i == 2:
            pend += [f"v_cndmask_b32 v{Sx(0)+r}, v{Sx(8)+r}, v{Sx(0)+r}, s[{44+2*r}:{45+2*r}]" for r in range(16)] + maxes(0, True)
        elif i > 3: pend += maxes(order[i - 2], False)
    def vread(kt, j, buf): return f"ds_read_b128 {vr(VF+4*buf,4)}, v{vVa} offset:{(4*kt+2*j)*304}"
    for b, (kt, j) in enumerate(((0, 0), (0, 1), (8, 0), (8, 1))): k(vread(kt, j, b))
    for x in pend: k(x)
    for x in maxes(6, False) + maxes(7, False): k(x)
    st(2)
    k(f"v_max_f32 v{M0}, v{M0}, v{M1}\nv_mov_b32 v{M1}, v{M0}\nv_permlane32_swap_b32 v{M1}, v{M0}\nv_max_f32 v{M0}, v{M0}, v{M1}")
    def softmax_tile(kt):
        s = Sx(kt); out = []
        for e in range(8):
            out.append(f"v_pk_add_f32 {vr(s+2*e,2)}, {vr(s+2*e,2)}, {vr(M0,2)} op_sel_hi:[1,0] neg_lo:[0,1] neg_hi:[0,1]")
        seq = []
        seq.append(out[0])
        for e in range(8):
            if e + 1 < 8: seq.append(out[e + 1])
            seq.append(f"v_exp_f32 v{s+2*e}, v{s+2*e}")
            seq.append(f"v_exp_f32 v{s+2*e+1}, v{s+2*e+1}")
            if e > 0: seq.append(f"v_cvt_pk_bf16_f32 v{s+e-1}, v{s+2*e-2}, v{s+2*e-1}")
        seq.append(f"v_cvt_pk_bf16_f32 v{s+7}, v{s+14}, v{s+15}")
        return seq
    for x in softmax_tile(0): k(x)
    s0 = Sx(0)
    for e in range(8): k(f"v_and_b32 v{s0+8+e}, v{MK+e}, v{s0+e}")
    for e in range(8): k(f"v_xor_b32 v{s0+e}, v{s0+8+e}, v{s0+e}")
    mq = [(0, s0 + 8), (1, s0 + 12), (2, s0), (3, s0 + 4)]
    first = True
    nxt = [(kt, j) for kt in range(1, 8) for j in range(2)]
    outstanding = 4
    freeb = []
    for kt in range(1, 9):
        seq = softmax_tile(kt) if kt < 8 else []
        n = len(mq)
        gap = max(1, len(seq) // max(n, 1)) if seq else 0
        pos = 0
        for qi, (b, p) in enumerate(mq):
            k(f"s_waitcnt lgkmcnt({outstanding-1})"); outstanding -= 1
            k(f"v_mfma_f32_32x32x16_bf16 {vr(O,16)}, {vr(VF+4*b,4)}, {vr(p,4)}, {'0' if first else vr(O,16)}")
            first = False
            if nxt:
                t, j = nxt.pop(0); k(vread(t, j, b)); outstanding += 1; freeb.append(b)
            for x in seq[pos:pos + gap]: k(x)
            pos += gap
        for x in seq[pos:]: k(x)
        if kt < 8:
            mq = [(freeb.pop(0), Sx(kt)), (freeb.pop(0), Sx(kt) + 4)]
    st(3)
    k(f"v_rcp_f32 v10, v{O+10}")
    for r in range(0, 10, 2): k(f"v_pk_mul_f32 {vr(O+r,2)}, {vr(O+r,2)}, v[10:11] op_sel_hi:[1,0]")
    for e in range(5): k(f"v_cvt_pk_bf16_f32 v{VF+e}, v{O+2*e}, v{O+2*e+1}")
    k(f"s_cmp_lt_u32 s35, 576\ns_cbranch_scc1 {name}_u2")
    k(f"buffer_store_dwordx4 {vr(VF,4)}, v8, {ws}, s33 offen\nbuffer_store_dword v{VF+4}, v9, {ws}, s34 offen")
    st.flush(5, sW, SRD_WS, 1)
    k("s_endpgm")
    k(f"{name}_u2:")
    k("s_waitcnt vmcnt(0)")
    k(f"buffer_store_dwordx4 {vr(VF,4)}, v8, {ws}, s33 offen\nbuffer_store_dword v{VF+4}, v9, {ws}, s34 offen")
    unit_read(k, SB, 5, 77, t0=12)
    k("s_waitcnt lgkmcnt(0)")
    unit_store(k, SB, 5, 6, SRD_WS, 37)
    st.flush(5, sW, SRD_WS, 1)
    k(f"{name}_end:\ns_endpgm")
    return k
if __name__ == "__main__":
    ks = [k2(stamps=True)]
    ks[0].verbose = True
    open("k2t.s", "w").write(build(ks))
    for q in ks: print(q.name, q.stats, q.nops, len(q.lines))
```

```python
import os
MB = 1 << 20
B0 = int(os.environ.get('WSB', '0')) * MB
S, D, F, FH = 2048, 576, 4608, 2304
WS_QM  = B0 + 0 * MB
WS_KM  = B0 + 2 * MB
WS_QT  = B0 + 4 * MB
WS_KT  = B0 + 4 * MB + 512 * 1024
WS_VF  = B0 + 5 * MB
WS_O   = B0 + 8 * MB
WS_OT  = WS_O + 128 * 16 * 1024
WS_H   = B0 + 11 * MB
WS_HST = B0 + 14 * MB
WS_CS  = B0 + 14 * MB + 256 * 1024
WS_RS  = B0 + 14 * MB + 320 * 1024
WS_CSQ = B0 + 14 * MB + 352 * 1024
WS_ZST = B0 + 14 * MB + 512 * 1024
WS_FL2 = WS_ZST + 262144
WS_FL3 = WS_FL2 + 32768
WS_FL4 = WS_FL3 + 32768
WS_FL5 = WS_FL4 + 32768
WS_FL1 = WS_FL5 + 32768
RESET_BYTES = 262144 + 5 * 32768
WS_Z2  = B0 + 16 * MB
WS_Z1  = B0 + 26 * MB
WS_U   = B0 + 36 * MB
WS_US  = WS_U + 128 * 64 * 1024
WS_WINF = B0 + 46 * MB
WS_WOF  = B0 + 52 * MB
WS_WOUTF = B0 + 53 * MB
WS_DBG = (200 if B0 < 100 * MB else 100) * MB
WS_SIZE = 256 * MB
KA_X, KA_WQKV, KA_WO, KA_BX, KA_WIN, KA_WSP, KA_BSP, KA_WOUT, KA_OUT, KA_DBG, KA_WS = [8 * i for i in range(11)]
```

```python
from common import *
from k1 import t_dma_setup, t_swz_read_setup, f2u
from k4 import ij_map, interleave, C0, C1
from p2 import p2
from p1 import p1
OOB = 0x40000000
sW, sLW, SRD_WS = 20, 23, 16
ws = S4(SRD_WS)

def poll(k, name, loads, regs_check, sCnt=52, tmp=9, first_wait=None, sleep=0):
    def check():
        r = list(regs_check); o = []
        if len(r) == 1: return [f"v_cmp_eq_u32 vcc, -1, v{r[0]}"]
        cur = r.pop(0)
        while r:
            if len(r) >= 2: o.append(f"v_max3_u32 v{tmp}, v{cur}, v{r[0]}, v{r[1]}"); r = r[2:]
            else: o.append(f"v_max_u32 v{tmp}, v{cur}, v{r[0]}"); r = r[1:]
            cur = tmp
        return o + [f"v_cmp_eq_u32 vcc, -1, v{tmp}"]
    if first_wait is None:
        for x in loads: k(x)
    k(f"s_mov_b32 s{sCnt}, 0x20000\ns_waitcnt vmcnt({first_wait or 0})")
    for x in check(): k(x)
    k(f"s_cbranch_vccnz {name}\n{name}_ok:")
    t = [f"{name}:"] + list(loads) + ["s_waitcnt vmcnt(0)"] + check()
    t += [f"s_sub_u32 s{sCnt}, s{sCnt}, 1", f"s_cbranch_vccz {name}_ok", f"s_cmp_eq_u32 s{sCnt}, 0", f"s_cbranch_scc1 {name}_ok"] + ([f"s_sleep {sleep}"] if sleep else []) + [f"s_branch {name}"]
    k.tail += t
XF = 147456
def poll1(k, name, load, idx, sleep=2, pre=None, wb=False):
    k(f"s_mov_b32 s52, 0x20000\nv_mov_b32 v9, {XF + 4*idx}\ns_cmp_lg_u32 s{sLW}, 0\ns_cbranch_scc1 {name}_l")
    if wb: k("buffer_wbl2 sc1\ns_waitcnt vmcnt(0)")
    if pre: flag_store(k, pre)
    k(f"{name}_g:\n{load}\ns_waitcnt vmcnt(0)\nv_cmp_eq_u32 vcc, -1, v10\ns_sub_u32 s52, s52, 1\ns_cbranch_vccnz {name}_gr")
    k(f"{name}_gd:\nv_mov_b32 v10, 1\nds_write_b32 v9, v10\n{name}_ok:")
    k.tail += [f"{name}_gr:", "s_cmp_eq_u32 s52, 0", f"s_cbranch_scc1 {name}_gd", f"s_sleep {sleep}", f"s_branch {name}_g",
               f"{name}_l:", "ds_read_b32 v10, v9", "s_waitcnt lgkmcnt(0)", "v_cmp_ne_u32 vcc, 0, v10", "s_sub_u32 s52, s52, 1", f"s_cbranch_vccnz {name}_ok",
               "s_cmp_eq_u32 s52, 0", f"s_cbranch_scc1 {name}_ok", "s_sleep 1", f"s_branch {name}_l"]
def flag_store(k, sOff):
    k(f"v_mov_b32 v8, 0\ns_mov_b64 exec, 1\nbuffer_store_dword v8, v8, {ws}, s{sOff} offen sc1\ns_mov_b64 exec, -1")
def set_flag4(k, name, sOff, idx, st=None, tr=None):
    k(f"v_mov_b32 v9, {XF + 4*idx}\nv_mov_b32 v10, 1\nv_mov_b32 v8, 0\ns_waitcnt vmcnt(0)")
    if st: st.tr(tr)
    k(f"s_mov_b64 exec, 1\nds_add_rtn_u32 v10, v9, v10\ns_waitcnt lgkmcnt(0)\nv_cmp_eq_u32 vcc, 3, v10\ns_and_b64 exec, exec, vcc")
    k(f"buffer_store_dword v8, v8, {ws}, s{sOff} offen sc1\ns_mov_b64 exec, -1")

def gelu4(a, pre, sC, t):
    o = list(pre)
    for h in range(2): o.append(f"v_pk_mul_f32 {vr(t+2*h,2)}, {vr(a+2*h,2)}, {vr(a+2*h,2)}")
    for h in range(2): o.append(f"v_pk_fma_f32 {vr(t+2*h,2)}, {vr(t+2*h,2)}, s[{sC}:{sC+1}], s[{sC}:{sC+1}] op_sel:[0,0,1] op_sel_hi:[1,0,1]")
    for h in range(2): o.append(f"v_pk_mul_f32 {vr(t+2*h,2)}, {vr(t+2*h,2)}, {vr(a+2*h,2)}")
    for e in range(4): o.append(f"v_exp_f32 v{t+e}, v{t+e}")
    for h in range(2): o.append(f"v_pk_add_f32 {vr(t+2*h,2)}, {vr(t+2*h,2)}, 1.0 op_sel_hi:[1,0]")
    for e in range(4): o.append(f"v_rcp_f32 v{t+e}, v{t+e}")
    for h in range(2): o.append(f"v_pk_mul_f32 {vr(a+2*h,2)}, {vr(a+2*h,2)}, {vr(t+2*h,2)}")
    return o
def finish_stats(k, S_, n, vR, vM):
    k(f"s_mov_b32 s38, {f2u(1.0/n)}\nv_mul_f32 v{vM}, s38, v{S_}\nv_mul_f32 v{vR}, s38, v{S_+1}\nv_fma_f32 v{vR}, -v{vM}, v{vM}, v{vR}")
    k(f"v_max_f32 v{vR}, 0, v{vR}\nv_add_f32 v{vR}, {f2u(1e-5)}, v{vR}\nv_rsq_f32 v{vR}, v{vR}")

class Mega:
    def __init__(self, name, phases, stamps=False, li=3, lead=4, pub5='sc1', pub4='sc1', PREF=True, rot1=(2, 3), PRE=2):
        self.name, self.ph, self.li, self.lead, self.pub5, self.pub4 = name, phases, li, lead, pub5, pub4
        self.k = K(name, 256, 512, lds=163840)
        self.k.tail = []; self.PREF = PREF; self.rot1 = rot1; self.PRE = PRE
        self.st = Stamps(self.k, stamps)
        self.kidx = int(phases[0]) - 1
        self.t0 = 5 if '2' in phases else 2 if '3' in phases else 0
    XT = XF + 256
    def p3_pre(self):
        k = self.k
        self.rb_map(24, 25)
        k("v_lshlrev_b32 v3, 4, v1")
        k(f"s_lshr_b32 s26, s{sW}, 2\ns_mul_i32 s28, s25, {18*5120}\ns_mul_i32 s38, s26, {45*1024}\ns_add_u32 s28, s28, s38\ns_lshl_b32 s39, s{sLW}, 10\ns_add_u32 s28, s28, s39\ns_add_u32 s28, s28, {WS_WOF}")
        k(f"s_lshl_b32 s27, s26, 16\ns_add_u32 s29, s27, s39\ns_cmp_eq_u32 s{sLW}, 0\ns_cselect_b64 s[30:31], -1, 0")
        for n in range(12):
            if n == 11: k("s_mov_b64 exec, s[30:31]")
            k(f"s_add_u32 m0, s29, {4096*n}\nbuffer_load_dwordx4 v3, {ws}, s28 offen lds\ns_add_u32 s28, s28, 4096")
        k("s_mov_b64 exec, -1")
    def p3_x(self):
        k = self.k
        k(f"s_lshl_b32 s45, s24, 2\ns_add_u32 s45, s45, s{sLW}")
        k(f"s_mul_i32 s48, s45, {16*1152}\ns_mul_i32 s38, s25, 144\ns_add_u32 s48, s48, s38\ns_mul_i32 s49, s{sLW}, 3072\ns_add_u32 s49, s49, {self.XT}")
        k(f"v_and_b32 v11, 15, v1\nv_lshrrev_b32 v12, 4, v1\nv_mov_b32 v15, {OOB}\nv_cmp_gt_u32 vcc, 32, v1")
        k(f"s_cmp_lt_u32 s{sW}, 4\ns_cselect_b64 s[50:51], -1, 0\ns_mov_b32 s10, {S*D*2}\ns_mov_b32 s11, 0x20000")
        for i in range(3):
            k(f"v_add_u32 v8, {64*i}, v1")
            vdiv(k, 9, 10, 8, 10, 192)
            k(f"v_mul_u32_u24 v9, 1152, v9\nv_lshl_add_u32 v{16+i}, v10, 4, v9")
        k("v_cndmask_b32 v18, v15, v18, vcc\ns_mov_b64 exec, s[50:51]")
        for i in range(3): k(f"s_add_u32 m0, s49, {1024*i}\nbuffer_load_dwordx4 v{16+i}, s[8:11], s48 offen lds")
        k("s_mov_b64 exec, -1")
    def p3(self):
        k, st, name = self.k, self.st, self.name
        fused2 = "2" in self.ph
        fl = " sc1" if fused2 else ""
        TF, WF, ACC = 36, 80, 16
        k(f"s_lshl_b32 s28, s45, 14\ns_add_u32 s28, s28, {WS_O}\ns_mul_i32 s38, s26, 9216\ns_add_u32 s28, s28, s38\ns_add_u32 s29, s28, 4096\ns_add_u32 s30, s28, 8192")
        k(f"s_lshr_b32 s31, s45, 1\ns_lshl_b32 s31, s31, 12\ns_and_b32 s38, s45, 1\ns_lshl_b32 s38, s38, 6\ns_add_u32 s31, s31, s38\ns_add_u32 s31, s31, {WS_OT}")
        k(f"v_lshlrev_b32 v13, 9, v12\nv_lshl_add_u32 v13, v11, 2, v13\nv_add_u32 v4, s27, v3")
        k(f"v_lshlrev_b32 v7, 4, v11\nv_lshl_add_u32 v7, v12, 3, v7\nv_cndmask_b32 v7, v15, v7, vcc")
        k(f"v_mul_u32_u24 v8, 160, v11\nv_lshl_add_u32 v8, v12, 3, v8\nv_add_u32 v14, s49, v8")
        if fused2:
            k(f"s_lshr_b32 s38, s24, 2\ns_lshl_b32 s38, s38, 12\ns_add_u32 s42, s38, {WS_FL2}\nv_and_b32 v6, 31, v1\nv_lshlrev_b32 v6, 7, v6")
            k(f"s_cmp_lg_u32 s{sW}, 0\ns_cbranch_scc1 {name}_f2ok")
            poll(k, f"{name}_f2poll", [f"buffer_load_dword v10, v6, {ws}, s42 offen sc1"], [10], sleep=2)
            k(f"{name}_f2ok:\ns_waitcnt vmcnt(0)\ns_barrier")
        st.tr(3 if fused2 else 1)
        for n in range(7): k(f"buffer_load_dwordx4 {vr(TF+4*n,4)}, v3, {ws}, s{28 + n // 4} offen offset:{(n%4)*1024}{fl}")
        k("s_mov_b64 exec, s[50:51]")
        for n in range(7, 9): k(f"buffer_load_dwordx4 {vr(TF+4*n,4)}, v3, {ws}, s{28 + n // 4} offen offset:{(n%4)*1024}{fl}")
        k("s_not_b64 exec, s[50:51]")
        for q in range(8): k(f"buffer_load_dword v{TF+28+q}, v13, {ws}, s31 offen offset:{(q >> 2)*2048 + (q & 3)*128}{fl}")
        k("s_mov_b64 exec, -1")
        if not fused2: k("s_waitcnt vmcnt(9)\ns_barrier")
        rd = lambda n: [f"ds_read_b128 {vr(WF+20*(n%2)+4*ft,4)}, v4 offset:{n*5120 + ft*1024}" for ft in range(5)]
        for x in rd(0): k(x)
        for n in range(9):
            nx = rd(n + 1) if n < 8 else []
            k(f"s_waitcnt lgkmcnt(0) vmcnt({max(0, 8-n) if n < 7 else 0})")
            for ft in range(5):
                k(f"v_mfma_f32_16x16x32_bf16 {vr(ACC+4*ft,4)}, {vr(WF+20*(n%2)+4*ft,4)}, {vr(TF+4*n,4)}, {'0' if n == 0 else vr(ACC+4*ft,4)}")
                if nx: k(nx.pop(0))
        st.tr(4 if fused2 else 2)
        k(f"s_lshl_b32 s38, s{sLW}, 12\ns_add_u32 s38, s38, 49152\nv_add_u32 v5, s38, v3\ns_lshl_b32 s38, s{sLW}, 10\ns_add_u32 s38, s38, 143360\nv_add_u32 v6, s38, v3")
    def p3B(self):
        k = self.k
        for ft in range(4): k(f"ds_write_b128 v5, {vr(16+4*ft,4)} offset:{1024*ft}")
        k("ds_write_b128 v6, v[32:35]\ns_waitcnt lgkmcnt(0)\ns_barrier")
    def p3A(self):
        k, st, name = self.k, self.st, self.name
        ACC, RES, P, C = 16, 140, 40, 80
        fl = " sc1" if "4" in self.ph else ""
        for ft in range(5): k(f"ds_read_b64 {vr(RES+2*ft,2)}, v14 offset:{32*ft}")
        k("v_cmp_gt_u32 vcc, 32, v1")
        k(f"s_mul_i32 s46, s45, 18432\ns_add_u32 s46, s46, {WS_H}\ns_lshl_b32 s38, s25, 8\ns_add_u32 s47, s46, s38\ns_add_u32 s47, s47, 16384\ns_lshl_b32 s38, s25, 11\ns_add_u32 s46, s46, s38")
        k(f"s_lshl_b32 s42, s45, 10\ns_lshl_b32 s39, s25, 7\ns_add_u32 s42, s42, s39\ns_add_u32 s42, s42, {WS_HST}")
        k(f"s_lshl_b32 s43, s24, 3\ns_add_u32 s43, s43, s25\ns_lshl_b32 s43, s43, 7\ns_add_u32 s43, s43, {WS_FL3}")
        k("s_waitcnt lgkmcnt(0)")
        for e in range(10): k(f"v_lshlrev_b32 v{60+2*e}, 16, v{RES+e}\nv_and_b32 v{61+2*e}, 0xffff0000, v{RES+e}")
        for e in range(10): k(f"v_pk_add_f32 {vr(ACC+2*e,2)}, {vr(ACC+2*e,2)}, {vr(60+2*e,2)}")
        k("s_barrier")
        for ft in range(4): k(f"ds_read_b128 {vr(C+4*ft,4)}, v5 offset:{1024*ft}")
        k(f"ds_read_b128 {vr(C+16,4)}, v6")
        k(f"v_lshlrev_b32 v9, 3, v11\nv_lshl_add_u32 v9, v12, 1, v9\nv_and_b32 v10, 1, v12\nv_cmp_eq_u32 s[30:31], 0, v10\nv_cndmask_b32 v9, v15, v9, s[30:31]")
        k("s_waitcnt lgkmcnt(0)")
        for e in range(10): k(f"v_pk_add_f32 {vr(ACC+2*e,2)}, {vr(ACC+2*e,2)}, {vr(C+2*e,2)}")
        for e in range(10): k(f"v_cvt_pk_bf16_f32 v{P+e}, v{ACC+2*e}, v{ACC+2*e+1}")
        k(f"buffer_store_dwordx4 {vr(P,4)}, v3, {ws}, s46 offen{fl}\nbuffer_store_dwordx4 {vr(P+4,4)}, v3, {ws}, s46 offen offset:1024{fl}")
        k(f"buffer_store_dwordx2 {vr(P+8,2)}, v7, {ws}, s47 offen{fl}")
        k(f"v_cndmask_b32 v{P+10}, 0, v{P+8}, vcc\nv_cndmask_b32 v{P+11}, 0, v{P+9}, vcc")
        for e in range(10):
            src = P + e if e < 8 else P + e + 2
            k(f"v_lshlrev_b32 v{60+2*e}, 16, v{src}\nv_and_b32 v{61+2*e}, 0xffff0000, v{src}")
        k(f"v_pk_add_f32 v[16:17], v[60:61], v[62:63]\nv_pk_mul_f32 v[18:19], v[60:61], v[60:61]")
        for e in range(1, 10):
            if e > 1: k(f"v_pk_add_f32 v[16:17], v[16:17], {vr(60+2*e,2)}")
            k(f"v_pk_fma_f32 v[18:19], {vr(60+2*e,2)}, {vr(60+2*e,2)}, v[18:19]")
        k("v_add_f32 v16, v16, v17\nv_add_f32 v18, v18, v19")
        k("v_permlane32_swap_b32 v16, v18\nv_add_f32 v16, v16, v18\nv_mov_b32 v18, v16\nv_permlane16_swap_b32 v16, v18\nv_add_f32 v16, v16, v18")
        k(f"buffer_store_dword v16, v9, {ws}, s42 offen{fl}")
        if "4" in self.ph: set_flag4(k, name, 43, 9, st if "2" in self.ph else None, 5)
    sI, sJ = 21, 22
    sMT, sMW, sMW5, sE = 31, 32, 33, 34
    ACC, FR0, Z1 = 16, 88, 176
    XR = X_BASE
    XC = X_BASE + 1024
    XS = X_BASE + 2304
    def common45(self):
        k = self.k
        ij_map(k, self.sI, self.sJ, self.li)
        k(f"s_lshl_b32 s{self.sMT}, s{sLW}, 12\ns_add_u32 s{self.sMW}, s{self.sMT}, {W_BASE}")
        k(f"s_and_b32 s39, s{sLW}, 1\ns_lshl_b32 s39, s39, 10\ns_add_u32 s{self.sMW5}, s39, {W_BASE+16384}")
        k(f"s_cmp_lt_u32 s{sLW}, 2\ns_cselect_b64 s[{self.sE}:{self.sE+1}], -1, 0\ns_cselect_b64 s[{self.sE+2}:{self.sE+3}], 0, -1")
        k(f"s_mov_b32 s46, {f2u(C1)}\ns_mov_b32 s47, {f2u(C0)}")
        k("v_lshlrev_b32 v3, 4, v1")
        k(f"s_lshl_b32 s48, s{self.sI}, 2\ns_add_u32 s48, s48, s{sLW}\ns_mul_i32 s48, s48, {2*18432}\ns_add_u32 s48, s48, {WS_H}")
        k(f"s_mul_i32 s38, s{self.sJ}, {18*9216}\ns_add_u32 s38, s38, {WS_WINF}\ns_add_u32 s49, s38, s{self.sMT}\ns_add_u32 s53, s38, s39")
    def dma4T(self, gs):
        k = self.k; s, slot = gs % 9, gs % 4
        fl = " sc1" if "3" in self.ph else ""
        k(f"s_add_u32 s28, s48, {2048*s}\ns_add_u32 s29, s48, {2048*s + 18432 - 2048}\ns_add_u32 m0, s{self.sMT}, {slot*T_SLOT}")
        for q in range(4): k(f"buffer_load_dwordx4 v3, {ws}, s{28 if q < 2 else 29} offen offset:{q*1024}{fl} lds")
    def dma4W(self, gs):
        k = self.k; s, slot = gs % 9, gs % 4
        wo = (16 * 18 * 9216 if gs < 9 else 0) + 18432 * s
        k(f"s_add_u32 s30, s49, {wo}\ns_add_u32 m0, s{self.sMW}, {slot*W_SLOT}\ns_add_u32 s28, s53, {wo + 16384}")
        for n in range(4): k(f"buffer_load_dwordx4 v3, {ws}, s30 offen offset:{n*1024} lds")
        e = self.sE + 2 * (gs & 1)
        k(f"s_add_u32 m0, s{self.sMW5}, {slot*W_SLOT}\ns_mov_b64 exec, s[{e}:{e+1}]")
        k(f"buffer_load_dwordx4 v3, {ws}, s28 offen lds\ns_mov_b64 exec, -1")
    def dma4(self, gs): self.dma4T(gs); self.dma4W(gs)
    def cons4_setup(self):
        k = self.k
        k(f"v_add_u32 v5, {W_BASE}, v3\nv_add_u32 v6, {3*W_SLOT}, v5\nv_add_u32 v4, s{self.sMT}, v3")
    @staticmethod
    def reads4(c, gs, kk, buf):
        slot = gs % 4
        r = [f"ds_read_b128 {vr(c.T(buf,0,tt),4)}, v4 offset:{slot*T_SLOT + tt*2048 + kk*1024}" for tt in range(2)]
        for ft in range(9):
            o = (slot if slot < 3 else 0) * W_SLOT + kk * 9216 + ft * 1024
            r.append(f"ds_read_b128 {vr(c.W(buf,0,ft),4)}, v{5 + (1 if slot == 3 else 0)} offset:{o}")
        return r
    def p4B(self):
        k, st, sI, sJ = self.k, self.st, self.sI, self.sJ
        c = Cons(k, 2, 9, 1, self.ACC, self.FR0, "W", self.reads4, rdgaps=11)
        f3 = "3" in self.ph
        if f3:
            for s in range(3): self.dma4W(s)
            k(f"s_lshl_b32 s42, s{sI}, 11\ns_add_u32 s42, s42, {WS_FL3}\nv_and_b32 v6, 15, v1\nv_lshlrev_b32 v6, 7, v6")
            poll1(k, f"{self.name}_f3poll", f"buffer_load_dword v10, v6, {ws}, s42 offen sc1", 2)
            for s in range(3): self.dma4T(s)
        else:
            for s in range(3): self.dma4(s)
        self.cons4_setup()
        k(f"s_waitcnt vmcnt({8 if f3 else 17})\ns_barrier")
        self.dma4(3)
        for s in range(9):
            k(f"s_waitcnt vmcnt({12 if (f3 and s == 0) else 17})\ns_barrier")
            if 1 + s > self.t0: st.tr(1 + s)
            self.dma4(s + 4)
        RR, NM, CS = 212, 10, 132
        k(f"s_lshl_b32 s38, s{sLW}, 8\ns_add_u32 s38, s38, {self.XR}\nv_and_b32 v8, 15, v1\nv_lshl_add_u32 v8, v8, 2, s38")
        k(f"v_lshrrev_b32 v9, 4, v1\nv_lshlrev_b32 v9, 4, v9\nv_add_u32 v9, {self.XC}, v9")
        k(f"ds_read2_b32 {vr(RR,2)}, v8 offset0:0 offset1:16\nds_read2_b32 {vr(NM,2)}, v8 offset0:32 offset1:48")
        for ft in range(9): k(f"ds_read_b128 {vr(CS+4*ft,4)}, v9 offset:{64*ft}")
        c.first_reads(9)
        if "5" in self.ph: self.p5B_pre()
        k("s_waitcnt lgkmcnt(11)")
        for ft in range(9):
            for tt in range(2):
                for h in range(2):
                    k(f"v_pk_mul_f32 {vr(c.acc(tt,ft)+2*h,2)}, {vr(CS+4*ft+2*h,2)}, {vr(NM,2)} op_sel:[0,{tt}] op_sel_hi:[1,{tt}]")
        nb = 2 if "5" in self.ph else 0
        for gs in range(9, 18):
            c.stage(gs, gs == 17, vm={9: 17 + nb, 10: 8 + nb, 11: 0}.get(gs), barrier=(gs < 17), post_barrier=(lambda gs=gs: st.tr(1 + gs) if gs < 14 else None))
        TMP = 214
        tiles = [(tt, ft) for tt in range(2) for ft in range(9)]
        if "5" not in self.ph:
            k(f"s_lshl_b32 s42, s{sI}, 4\ns_add_u32 s42, s42, s{sJ}\ns_lshl_b32 s42, s42, 2\ns_add_u32 s42, s42, s{sLW}\ns_mul_i32 s42, s42, 9216\ns_add_u32 s42, s42, {WS_Z1}")
        for q in range(9):
            seqs = []
            for u in range(2):
                tt, ft = tiles[2 * q + u]
                a = c.acc(tt, ft)
                pre = [f"v_pk_mul_f32 {vr(a+2*h,2)}, {vr(a+2*h,2)}, {vr(RR,2)} op_sel:[0,{tt}] op_sel_hi:[1,{tt}]" for h in range(2)]
                sq = gelu4(a, pre, 46, TMP + 4 * u)
                sq += [f"v_cvt_pk_bf16_f32 v{self.Z1+4*q+2*u+h}, v{a+2*h}, v{a+2*h+1}" for h in range(2)]
                seqs.append(sq)
            for x in interleave(*seqs): k(x)
            if "5" not in self.ph:
                k(f"buffer_store_dwordx4 {vr(self.Z1+4*q,4)}, v3, {ws}, s42 offen offset:{(q%4)*1024}")
                if q % 4 == 3: k("s_add_u32 s42, s42, 4096")
        st.tr(18)
    def p4A(self):
        k, st, sI, sJ, name = self.k, self.st, self.sI, self.sJ, self.name
        c = Cons(k, 2, 9, 1, self.ACC, self.FR0, "T", self.reads4, rdgaps=11)
        self.cons4_setup()
        RR, NM, CS, TMP = 176, 184, 192, 204
        k(f"s_lshl_b32 s38, s{sLW}, 8\ns_add_u32 s39, s38, {self.XR}\nv_lshrrev_b32 v8, 4, v1\nv_lshl_add_u32 v14, v8, 4, s39")
        k(f"s_add_u32 s39, s38, {self.XS}\nv_lshl_add_u32 v15, v8, 4, s39")
        k(f"v_and_b32 v13, 15, v1\nv_lshlrev_b32 v13, 2, v13\nv_add_u32 v13, {self.XC+576}, v13")
        ex = []
        for tt in range(2): ex += [f"ds_read_b128 {vr(RR+4*tt,4)}, v14 offset:{64*tt}", f"ds_read_b128 {vr(NM+4*tt,4)}, v14 offset:{128+64*tt}"]
        ex += [f"ds_read_b32 v{CS+ft}, v13 offset:{64*ft}" for ft in range(9)]
        HP, CP = 212, 220
        fl3 = " sc1" if "3" in self.ph else ""
        k(f"s_lshl_b32 s38, s{sI}, 2\ns_add_u32 s38, s38, s{sLW}\ns_lshl_b32 s38, s38, 11\ns_add_u32 s38, s38, {WS_HST}")
        k("s_mov_b32 s44, s38")
        hl = [f"buffer_load_dwordx4 {vr(HP+4*tt,4)}, v3, {ws}, s44 offen offset:{1024*tt}{fl3}" for tt in range(2)]
        k(f"s_mul_i32 s38, s{sJ}, 576\ns_mul_i32 s39, s{sLW}, 288\ns_add_u32 s38, s38, s39\ns_cmp_ge_u32 s{sLW}, 2\ns_cselect_b32 s54, {2304*4-576}, 0\ns_add_u32 s38, s38, s54\ns_add_u32 s38, s38, {WS_CS}\ns_add_u32 s54, s38, {4608*4}")
        k(f"v_min_u32 v8, 35, v1\nv_lshlrev_b32 v8, 3, v8")
        k(f"buffer_load_dwordx2 {vr(CP,2)}, v8, {ws}, s38 offen\nbuffer_load_dwordx2 {vr(CP+2,2)}, v8, {ws}, s54 offen")
        k(f"s_add_u32 s39, s39, {self.XC}\nv_add_u32 v224, s39, v8")
        k(f"s_lshl_b32 s38, s{sLW}, 8\ns_add_u32 s38, s38, {self.XR}\nv_bfe_u32 v8, v1, 4, 1\nv_lshlrev_b32 v8, 6, v8\nv_and_b32 v9, 7, v1\nv_lshl_add_u32 v8, v9, 3, v8\nv_add_u32 v225, s38, v8")
        k(f"s_mov_b32 s54, {f2u(1.0/576)}\ns_mov_b32 s55, {f2u(1e-5)}")
        m1 = ["s_waitcnt vmcnt(0)"]
        m1 += [f"v_add_f32_dpp v{HP+e}, v{HP+e}, v{HP+e} row_ror:8 row_mask:0xf bank_mask:0xf" for e in range(8)]
        m1 += [f"v_add_f32 v{CP}, v{CP}, v{CP+2}", f"v_add_f32 v{CP+1}, v{CP+1}, v{CP+3}"]
        m1 += [f"v_permlane16_swap_b32 v{HP+e}, v{HP+4+e}" for e in range(4)]
        m1 += [f"ds_write_b64 v224, {vr(CP,2)}"]
        m1 += [f"v_add_f32 v{HP+e}, v{HP+e}, v{HP+4+e}" for e in range(4)]
        m1 += [f"v_mov_b32 v{HP+4+e}, v{HP+e}" for e in range(4)]
        m2 = [f"v_permlane32_swap_b32 v{HP+e}, v{HP+4+e}" for e in range(4)]
        m2 += [f"v_add_f32 v{HP+e}, v{HP+e}, v{HP+4+e}" for e in range(4)]
        m2 += [f"v_mul_f32 v{HP+6+e}, s54, v{HP+2*e}" for e in range(2)] + [f"v_mul_f32 v{HP+4+e}, s54, v{HP+2*e+1}" for e in range(2)]
        m2 += [f"v_fma_f32 v{HP+4+e}, -v{HP+6+e}, v{HP+6+e}, v{HP+4+e}" for e in range(2)] + [f"v_max_f32 v{HP+4+e}, 0, v{HP+4+e}" for e in range(2)]
        m2 += [f"v_add_f32 v{HP+4+e}, s55, v{HP+4+e}" for e in range(2)] + [f"v_rsq_f32 v{HP+4+e}, v{HP+4+e}" for e in range(2)] + [f"v_sub_f32 v{HP+6+e}, 0, v{HP+6+e}" for e in range(2)]
        m2 += [f"ds_write_b64 v225, {vr(HP+4,2)}", f"ds_write_b64 v225, {vr(HP+6,2)} offset:128"]
        k("s_barrier")
        st.tr(self.t0 + 1)
        c.first_reads(0)
        for x in hl: k(x)
        for s in range(9):
            c.stage(s, s == 8, zero_c=(s == 0), extraA=(m1 if s == 2 else ()), extraB=(ex if s == 8 else m2 if s == 2 else ()), post_barrier=(lambda s=s: st.tr(2 + s) if 2 + s > self.t0 + 1 else None))
        k("s_waitcnt lgkmcnt(0)")
        SUM, SQ = 88, 96
        tiles = [(tt, ft) for ft in range(9) for tt in range(2)]
        for q in range(9):
            seqs = []
            for u in range(2):
                tt, ft = tiles[2 * q + u]
                a = c.acc(tt, ft)
                cp, hs = CS + (ft & ~1), ft & 1
                pre = [f"v_pk_fma_f32 {vr(a+2*h,2)}, {vr(NM+4*tt+2*h,2)}, {vr(cp,2)}, {vr(a+2*h,2)} op_sel:[0,{hs},0] op_sel_hi:[1,{hs},1]" for h in range(2)]
                pre += [f"v_pk_mul_f32 {vr(a+2*h,2)}, {vr(a+2*h,2)}, {vr(RR+4*tt+2*h,2)}" for h in range(2)]
                sq = gelu4(a, pre, 46, TMP + 4 * u)
                for h in range(2):
                    if ft == 0: sq.append(f"v_pk_mul_f32 {vr(SQ+4*tt+2*h,2)}, {vr(a+2*h,2)}, {vr(a+2*h,2)}")
                    else: sq.append(f"v_pk_fma_f32 {vr(SQ+4*tt+2*h,2)}, {vr(a+2*h,2)}, {vr(a+2*h,2)}, {vr(SQ+4*tt+2*h,2)}")
                    if ft == 1: sq.append(f"v_pk_add_f32 {vr(SUM+4*tt+2*h,2)}, {vr(a+2*h,2)}, {vr(c.acc(tt,0)+2*h,2)}")
                    elif ft > 1: sq.append(f"v_pk_add_f32 {vr(SUM+4*tt+2*h,2)}, {vr(SUM+4*tt+2*h,2)}, {vr(a+2*h,2)}")
                seqs.append(sq)
            for x in interleave(*seqs): k(x)
        Y, Z = 104, 112
        dm = "row_mask:0xf"
        for si, X in enumerate((SUM, SQ)):
            for r in range(4): k(f"v_add_f32_dpp v{Y+4*si+r}, v{X+r}, v{X+r} row_ror:8 {dm} bank_mask:0x3")
            for r in range(4): k(f"v_add_f32_dpp v{Y+4*si+r}, v{X+4+r}, v{X+4+r} row_ror:8 {dm} bank_mask:0xc")
        for si in range(2):
            for q in range(2): k(f"v_add_f32_dpp v{Z+2*si+q}, v{Y+4*si+q}, v{Y+4*si+q} row_shl:4 {dm} bank_mask:0x5")
        for si in range(2):
            for q in range(2): k(f"v_add_f32_dpp v{Z+2*si+q}, v{Y+4*si+2+q}, v{Y+4*si+2+q} row_shr:4 {dm} bank_mask:0xa")
        for perm in ("[1,0,3,2]", "[2,3,0,1]"):
            for e in range(4): k(f"v_add_f32_dpp v{Z+e}, v{Z+e}, v{Z+e} quad_perm:{perm} {dm} bank_mask:0xf")
        k(f"v_cndmask_b32 v{Y}, v{Z}, v{Z+1}, vcc\nv_cndmask_b32 v{Y+1}, v{Z+2}, v{Z+3}, vcc\nv_and_b32 v{Y+1}, 0x7fffffff, v{Y+1}")
        k(f"buffer_store_dwordx2 {vr(Y,2)}, v12, {ws}, s43 offen sc1")
        st.tr(11)
        PL, P = 104, 128
        fl = " sc1" if "5" in self.ph else ""
        k(f"s_add_u32 s43, s42, 4096\ns_add_u32 s50, s42, 8192\ns_add_u32 s51, s42, 12288")
        pl = [f"buffer_load_dwordx2 {vr(PL+2*q,2)}, v11, {ws}, s{[42,43,50,51][q>>1]} offen offset:{2048*(q&1)} sc1" for q in range(8)]
        def norm(fts):
            for ft in fts:
                o = P + 4 * ft
                for tt in range(2):
                    a = c.acc(tt, ft)
                    for h in range(2): k(f"v_pk_fma_f32 {vr(a+2*h,2)}, {vr(a+2*h,2)}, {vr(RR+4*tt+2*h,2)}, {vr(NM+4*tt+2*h,2)}")
                for tt in range(2):
                    a = c.acc(tt, ft)
                    for h in range(2): k(f"v_cvt_pk_bf16_f32 v{o+2*tt+h}, v{a+2*h}, v{a+2*h+1}")
                k(f"v_permlane32_swap_b32 v{o}, v{o+2}\nv_permlane32_swap_b32 v{o+1}, v{o+3}\nv_permlane16_swap_b32 v{o}, v{o+2}\nv_permlane16_swap_b32 v{o+1}, v{o+3}")
                k(f"buffer_store_dwordx4 {vr(o,4)}, v3, {ws}, s42 offen offset:{(ft%4)*1024}{fl}")
                if ft % 4 == 3: k("s_add_u32 s42, s42, 4096")
        ntile = {12: (0, 2), 13: (2, 4), 14: (4, 7), 15: (7, 9)}
        for bar in range(9, 17):
            vm = {12: 25, 13: 17 + 2, 14: 17 + 4, 15: 8 + 7, 16: 7}.get(bar)
            if vm is not None: k(f"s_waitcnt vmcnt({vm})")
            k("s_barrier")
            if bar == 11:
                for x in pl: k(x)
            if bar + 4 <= 17: self.dma4(bar + 4)
            if bar == 11:
                poll(k, f"{name}_zpoll", pl, [PL + 1 + 2 * q for q in range(8)], first_wait=8)
                st.tr(12)
                for st_ in (2, 4, 8):
                    for q in range(0, 16, 2 * st_):
                        for e in range(2): k(f"v_add_f32 v{PL+q+e}, v{PL+q+e}, v{PL+q+st_+e}")
                k(f"v_mov_b32 v{PL+2}, v{PL}\nv_mov_b32 v{PL+3}, v{PL+1}\nv_permlane32_swap_b32 v{PL+2}, v{PL}\nv_permlane32_swap_b32 v{PL+3}, v{PL+1}\nv_add_f32 v{PL}, v{PL}, v{PL+2}\nv_add_f32 v{PL+1}, v{PL+1}, v{PL+3}")
                finish_stats(k, PL, 2304, 9, 10)
                k(f"v_mul_f32 v10, v10, v9\nv_sub_f32 v10, 0, v10")
                k("ds_write_b32 v7, v9\nds_write_b32 v7, v10 offset:128")
                for tt in range(2): k(f"ds_read_b128 {vr(RR+4*tt,4)}, v15 offset:{64*tt}\nds_read_b128 {vr(NM+4*tt,4)}, v15 offset:{128+64*tt}")
                k(f"s_lshl_b32 s42, s{sJ}, 6\ns_lshl_b32 s38, s{sI}, 2\ns_add_u32 s42, s42, s38\ns_add_u32 s42, s42, s{sLW}\ns_lshl_b32 s43, s{sJ}, 4\ns_add_u32 s43, s43, s{sI}\ns_lshl_b32 s43, s43, 7\ns_add_u32 s43, s43, {WS_FL4}\ns_mul_i32 s42, s42, 9216\ns_add_u32 s42, s42, {WS_Z2}")
            if bar in ntile:
                if bar == 12: k("s_waitcnt lgkmcnt(0)")
                norm(range(*ntile[bar]))
        st.tr(14)
    def p4A_setup(self):
        k, sI, sJ = self.k, self.sI, self.sJ
        k("v_and_b32 v8, 1, v1\nv_bfe_u32 v9, v1, 3, 1\nv_lshl_add_u32 v12, v9, 4, v8\nv_lshrrev_b32 v9, 4, v1\nv_lshl_add_u32 v12, v9, 2, v12\nv_bfe_u32 v9, v1, 2, 1\nv_lshl_add_u32 v12, v9, 1, v12\nv_lshlrev_b32 v12, 3, v12")
        k(f"v_and_b32 v9, 2, v1\nv_cmp_eq_u32 vcc, 0, v9\nv_mov_b32 v9, {OOB}\nv_cndmask_b32 v12, v9, v12, vcc\nv_cmp_eq_u32 vcc, 1, v8")
        k(f"s_lshl_b32 s42, s{sI}, 14\ns_lshl_b32 s38, s{sLW}, 8\ns_add_u32 s42, s42, s38\ns_add_u32 s42, s42, {WS_ZST}\ns_lshl_b32 s43, s{sJ}, 10\ns_add_u32 s43, s43, s42")
        k(f"v_and_b32 v7, 31, v1\nv_lshlrev_b32 v11, 3, v7\nv_lshrrev_b32 v9, 5, v1\nv_lshl_add_u32 v11, v9, 10, v11")
        k(f"s_add_u32 s38, s38, {self.XS}\nv_lshl_add_u32 v7, v7, 2, s38")
    def p5A(self):
        k, st, sI, sJ, name, lead = self.k, self.st, self.sI, self.sJ, self.name, self.lead
        NST = 32
        sT, sT2, sF, sF5, sCNT = 28, 29, 30, 44, 43
        set_flag4(k, name, 43, 8, st, 13)
        t_dma_setup(k, 4, 5, 4096)
        k(f"v_subrev_u32 v5, 1024, v5\nv_and_b32 v6, 15, v1\nv_lshlrev_b32 v6, 7, v6")
        k(f"s_lshl_b32 s38, s{sI}, 19\ns_lshl_b32 s39, s{sLW}, 17\ns_add_u32 s{sT}, s38, s39\ns_add_u32 s{sT2}, s{sT}, {65536-2048}")
        k(f"s_mul_i32 s38, s{sJ}, {64*9216}\ns_add_u32 s38, s38, {WS_Z2}\ns_add_u32 s{sF}, s38, s{self.sMT}")
        k(f"s_and_b32 s39, s{sLW}, 1\ns_lshl_b32 s39, s39, 10\ns_add_u32 s{sF5}, s38, s39\ns_add_u32 s{sF5}, s{sF5}, 16384")
        k(f"s_add_u32 s45, s{sI}, s{sJ}\ns_and_b32 s45, s45, 3\ns_mov_b32 s46, {lead*128}\ns_mov_b32 s47, {lead*18432}")
        k(f"s_lshl_b32 s42, s{sJ}, 11\ns_add_u32 s42, s42, {WS_FL4}")
        srd(k, 8, 4, 0, S * S * 2)
        def dT(s):
            slot = (s + 2) % 4
            k(f"s_cmp_eq_u32 s45, {s%4}\ns_cselect_b32 s38, s46, 0\ns_add_u32 s48, s{sT}, s38\ns_add_u32 s49, s{sT2}, s38\ns_add_u32 m0, s{self.sMT}, {slot*T_SLOT}\ns_add_u32 s{sT}, s{sT}, 128")
            for q in range(4): k(f"buffer_load_dwordx4 v{4+(q&1)}, s[8:11], s{48 if q < 2 else 49} offen offset:{q*1024} lds")
            k(f"s_add_u32 s{sT2}, s{sT2}, 128")
        def dF(s):
            slot = (s + 2) % 4
            k(f"s_cmp_eq_u32 s45, {s%4}\ns_cselect_b32 s39, s47, 0\ns_add_u32 s50, s{sF}, s39\ns_add_u32 s51, s{sF5}, s39\ns_add_u32 m0, s{self.sMW}, {slot*W_SLOT}\ns_add_u32 s{sF}, s{sF}, 18432")
            for n in range(4): k(f"buffer_load_dwordx4 v3, {ws}, s50 offen offset:{n*1024} sc1 lds")
            e = self.sE + 2 * (s & 1)
            k(f"s_add_u32 m0, s{self.sMW5}, {slot*W_SLOT}\ns_mov_b64 exec, s[{e}:{e+1}]")
            k(f"buffer_load_dwordx4 v3, {ws}, s51 offen sc1 lds\ns_mov_b64 exec, -1\ns_add_u32 s{sF5}, s{sF5}, 18432")
        dT(0)
        poll1(k, f"{name}_f4poll", f"buffer_load_dword v10, v6, {ws}, s42 offen sc1", 0)
        st.tr(15)
        dF(0); dT(1); dF(1); dT(2); dF(2)
        k("s_waitcnt vmcnt(17)\ns_barrier")
        st.tr(16)
        dT(3); dF(3)
        def lstage(s, vm=None):
            if vm is None: vm = 17 if s + 3 < NST else (8 if s + 2 < NST else 0)
            k(f"s_waitcnt vmcnt({vm})\ns_barrier")
            if s + 4 < NST: dT(s + 4); dF(s + 4)
        for s in range(0, 4): lstage(s)
        k(f"s_mov_b32 s{sCNT}, 6")
        k(f"{name}_l5loop:")
        k(f"s_cmp_le_u32 s{sCNT}, {lead//4}\ns_cselect_b32 s46, {((lead-32)*128) & 0xffffffff}, s46\ns_cselect_b32 s47, {((lead-32)*18432) & 0xffffffff}, s47")
        for s in range(4, 8): lstage(s)
        k(f"s_sub_u32 s{sCNT}, s{sCNT}, 1\ns_cmp_lg_u32 s{sCNT}, 0\ns_cbranch_scc1 {name}_l5loop")
        if "6" in self.ph:
            self.p6A_setup()
            lstage(28); lstage(29); self.dma6W(0); lstage(30, 5); self.dma6W(1)
            k("s_barrier")
        else:
            for s in range(28, 31): lstage(s)
        st.tr(17)
    def p5B_pre(self):
        k = self.k
        srd(k, 24, 6, 0, S * 2)
        k(f"s_lshl_b32 s38, s{self.sI}, 8\ns_lshl_b32 s39, s{sLW}, 6\ns_add_u32 s38, s38, s39\nv_and_b32 v12, 15, v1\nv_lshlrev_b32 v12, 1, v12")
        k(f"buffer_load_ushort v14, v12, s[24:27], s38 offen\nbuffer_load_ushort v15, v12, s[24:27], s38 offen offset:32")
    def p5B(self):
        k, st, sI, sJ, name = self.k, self.st, self.sI, self.sJ, self.name
        NST, ACC, Z1, sCNT = 32, self.ACC, self.Z1, 43
        t_swz_read_setup(k, 4, 7, sLW, t0=10)
        def reads(c, s, kk, buf):
            slot = (s + 2) % 4
            r = [f"ds_read_b128 {vr(c.T(buf,0,tt),4)}, v{4 if kk == 0 else 7} offset:{slot*T_SLOT + tt*2048}" for tt in range(2)]
            for ft in range(9):
                o = (slot if slot < 3 else 0) * W_SLOT + kk * 9216 + ft * 1024
                r.append(f"ds_read_b128 {vr(c.W(buf,0,ft),4)}, v{5 + (1 if slot == 3 else 0)} offset:{o}")
            return r
        c = Cons(k, 2, 9, 1, ACC, self.FR0, "W", reads, rdgaps=11)
        k("s_waitcnt vmcnt(0)\nv_lshlrev_b32 v14, 16, v14\nv_lshlrev_b32 v15, 16, v15")
        for tt in range(2):
            for r in range(36): k(f"v_mov_b32 v{ACC+tt*36+r}, v{14+tt}")
        if "6" in self.ph: self.p6B_pre()
        k("s_barrier")
        c.first_reads(0)
        k(f"s_mov_b32 s{sCNT}, 7")
        k(f"{name}_c5loop:")
        for s in range(4): c.stage(s, False)
        k(f"s_sub_u32 s{sCNT}, s{sCNT}, 1\ns_cmp_lg_u32 s{sCNT}, 0\ns_cbranch_scc1 {name}_c5loop")
        for s in range(28, 32): c.stage(s, s == 31, barrier=(s < 31 or "6" in self.ph))
        st.tr(19)
        P = 88
        fl = {"sc1": " sc1", "sc01": " sc0 sc1", "wb": "", "wb1": ""}[self.pub5] if "6" in self.ph else ""
        k(f"s_lshl_b32 s38, s{sI}, 2\ns_add_u32 s38, s38, s{sLW}\ns_lshl_b32 s48, s38, 4\ns_add_u32 s48, s48, s{sJ}\ns_lshl_b32 s43, s48, 10\ns_add_u32 s43, s43, {WS_US}")
        k(f"s_lshl_b32 s38, s38, 17\ns_lshl_b32 s39, s{sJ}, 12\ns_add_u32 s38, s38, s39\ns_add_u32 s38, s38, {WS_U}\ns_add_u32 s39, s38, 65536")
        dst = lambda e: P + (e if e < 16 else 32 + e - 16 if e < 18 else 16 + e - 18 if e < 34 else 34 + e - 34)
        def stores(e):
            if e % 18 < 16 and e % 18 % 4 == 3:
                k(f"buffer_store_dwordx4 {vr(dst(e)-3,4)}, v3, {ws}, s{38 + e // 18} offen offset:{(e % 18 // 4)*1024}{fl}")
            if e == 35: k(f"buffer_store_dwordx4 {vr(P+32,4)}, v3, {ws}, s43 offen{fl}")
        for e in range(36):
            a = ACC + 2 * e
            t = 8 + 2 * (e % 2)
            k(f"v_lshlrev_b32 v{t}, 16, v{Z1+e}\nv_and_b32 v{t+1}, 0xffff0000, v{Z1+e}")
            k(f"v_pk_mul_f32 {vr(a,2)}, {vr(a,2)}, {vr(t,2)}")
            if e > 0:
                k(f"v_cvt_pk_bf16_f32 v{dst(e-1)}, v{a-2}, v{a-1}"); stores(e - 1)
        k(f"v_cvt_pk_bf16_f32 v{dst(35)}, v{ACC+70}, v{ACC+71}"); stores(35)
    RES = 222
    def rb_map(self, sRB, sB):
        k = self.k
        k(f"s_and_b32 s38, s2, 3\ns_lshl_b32 s38, s38, 3\ns_bfe_u32 s39, s2, 0x30003\ns_add_u32 s{sRB}, s38, s39")
        k(f"s_bfe_u32 s38, s2, 0x10002\ns_lshl_b32 s38, s38, 2\ns_lshr_b32 s39, s2, 6\ns_add_u32 s{sB}, s38, s39")
    def p6A_setup(self):
        k = self.k
        self.rb_map(24, 25)
        k(f"s_mul_i32 s38, s25, {72*5120}\ns_add_u32 s38, s38, {WS_WOUTF}\ns_mul_i32 s12, s{sLW}, 5120\ns_add_u32 s26, s38, s12\ns_add_u32 s27, s26, 4096\ns_add_u32 s12, s12, {W_BASE}")
        k(f"s_lshl_b32 s13, s24, 2\ns_add_u32 s13, s13, s{sLW}\ns_lshr_b32 s15, s13, 1\ns_lshl_b32 s13, s13, 16\ns_add_u32 s13, s13, {WS_U}")
        k(f"s_lshl_b32 s15, s15, 4\ns_and_b32 s38, s{sLW}, 1\ns_add_u32 s15, s15, s38\ns_lshl_b32 s15, s15, 10\ns_add_u32 s15, s15, {WS_US}")
        k(f"s_lshr_b32 s14, s24, 1\ns_lshl_b32 s14, s14, 11\ns_add_u32 s14, s14, {WS_FL5}")
        k(f"s_lshl_b32 s54, s{self.sI}, 4\ns_add_u32 s54, s54, s{self.sJ}\ns_lshl_b32 s54, s54, 7\ns_add_u32 s54, s54, {WS_FL5}")
    def dma6W(self, s):
        k = self.k; slot = (s + 2) % 4
        fl = " sc1" if "2" in self.ph else ""
        k(f"s_add_u32 m0, s12, {slot*20480}")
        for n in range(4): k(f"buffer_load_dwordx4 v3, {ws}, s26 offen offset:{n*1024}{fl} lds")
        k(f"s_add_u32 m0, s12, {slot*20480 + 4096}\ns_add_u32 s26, s26, 20480")
        k(f"buffer_load_dwordx4 v3, {ws}, s27 offen{fl} lds\ns_add_u32 s27, s27, 20480")
    def dma6T(self, s):
        k = self.k; slot = (s + 2) % 4
        k(f"s_add_u32 m0, s{self.sMT}, {slot*16384}")
        fl = " sc1" if "5" in self.ph else ""
        if s < 16:
            for q in range(4): k(f"buffer_load_dwordx4 v3, {ws}, s13 offen offset:{q*1024}{fl} lds")
            k("s_add_u32 s13, s13, 4096")
        else:
            for q in range(4): k(f"buffer_load_dwordx4 v3, {ws}, s15 offen offset:{q*1024}{fl} lds\ns_add_u32 s15, s15, 1024")
            k("s_add_u32 s15, s15, 4096")
    def p6A(self):
        k, st, name = self.k, self.st, self.name
        NST, sCNT = 18, 43
        fused = "5" in self.ph
        if fused:
            self.dma6W(2); self.dma6W(3)
            k("s_barrier")
            poll1(k, f"{name}_f5poll", f"buffer_load_dword v10, v6, {ws}, s14 offen sc1", 1, pre=54, wb=(self.pub5 == 'wb1'))
            st.tr(18)
            for s in range(3): self.dma6T(s)
            k("s_waitcnt vmcnt(8)\ns_barrier")
            st.tr(19)
            self.dma6T(3)
        else:
            for s in range(3): self.dma6T(s); self.dma6W(s)
            k("s_waitcnt vmcnt(18)\ns_barrier")
            self.dma6T(3); self.dma6W(3)
        def lstage(s, vm=None):
            if vm is None: vm = 9 * (min(NST - 1, s + 3) - (s + 1))
            k(f"s_waitcnt vmcnt({vm})\ns_barrier")
            if s + 4 < NST: self.dma6T(s + 4); self.dma6W(s + 4)
        lstage(0, 8 if fused else 18); lstage(1, 13 if fused else 18); lstage(2); lstage(3)
        k(f"s_mov_b32 s{sCNT}, 2")
        k(f"{name}_l6loop:")
        for s in range(4, 8): lstage(s)
        k(f"s_sub_u32 s{sCNT}, s{sCNT}, 1\ns_cmp_lg_u32 s{sCNT}, 0\ns_cbranch_scc1 {name}_l6loop")
        for s in range(12, NST - 1): lstage(s)
    def p6B_pre(self):
        k, RES = self.k, self.RES
        self.rb_map(24, 25)
        fl = " sc1" if "3" in self.ph else ""
        k(f"s_lshl_b32 s26, s24, 2\ns_add_u32 s26, s26, s{sLW}")
        k(f"s_mul_i32 s12, s26, 18432\ns_add_u32 s12, s12, {WS_H}\ns_lshl_b32 s38, s25, 8\ns_add_u32 s13, s12, s38\ns_add_u32 s13, s13, 16384\ns_lshl_b32 s38, s25, 11\ns_add_u32 s12, s12, s38")
        k(f"v_and_b32 v11, 15, v1\nv_lshrrev_b32 v12, 4, v1\nv_mov_b32 v13, {OOB}\nv_lshlrev_b32 v8, 4, v11\nv_lshl_add_u32 v8, v12, 3, v8\nv_cmp_gt_u32 vcc, 32, v1\nv_cndmask_b32 v8, v13, v8, vcc")
        k(f"buffer_load_dwordx4 {vr(RES,4)}, v3, {ws}, s12 offen{fl}\nbuffer_load_dwordx4 {vr(RES+4,4)}, v3, {ws}, s12 offen offset:1024{fl}\nbuffer_load_dwordx2 {vr(RES+8,2)}, v8, {ws}, s13 offen{fl}")
        k(f"s_mul_i32 s14, s26, {16*1152}\ns_mul_i32 s38, s25, 144\ns_add_u32 s14, s14, s38")
        k(f"v_mul_u32_u24 v8, 1152, v11\nv_and_b32 v9, 1, v12\nv_lshlrev_b32 v9, 5, v9\nv_lshrrev_b32 v10, 1, v12\nv_lshl_add_u32 v9, v10, 4, v9\nv_add_u32 v232, v9, v8")
        k(f"v_lshl_add_u32 v8, v12, 3, v8\nv_cndmask_b32 v233, v13, v8, vcc")
    def p6B(self):
        k, st, name, RES = self.k, self.st, self.name, self.RES
        NST, sCNT, ACC = 18, 43, 16
        if "5" in self.ph:
            st.tr(15); k("s_waitcnt vmcnt(0)")
            if self.pub5 == "wb": k("buffer_wbl2 sc1\ns_waitcnt vmcnt(0)")
            st.tr(16)
            k("s_barrier")
        k(f"s_load_dwordx2 s[8:9], s[0:1], {KA_OUT}")
        k(f"v_add_u32 v4, s{self.sMT}, v3\nv_add_u32 v6, 61440, v5")
        k(f"s_and_b32 s38, s{sLW}, 2\ns_lshl_b32 s38, s38, 12\ns_and_b32 s39, s{sLW}, 1\ns_lshl_b32 s39, s39, 3\ns_add_u32 s38, s38, s39\nv_add_u32 v7, s38, v3")
        def reads(c, s, blk, buf):
            slot = (s + 2) % 4
            r = []
            for kb in range(2):
                ks = blk * 2 + kb
                if s < 16: r.append(f"ds_read_b128 {vr(c.T(buf,kb,0),4)}, v4 offset:{slot*16384 + ks*1024}")
                else: r += [f"ds_read_b64 {vr(c.T(buf,kb,0)+2*h,2)}, v7 offset:{slot*16384 + ks*1024 + 4096*h}" for h in range(2)]
                for ft in range(5):
                    o = (slot if slot < 3 else 0) * 20480 + ks * 5120 + 1024 * ft
                    r.append(f"ds_read_b128 {vr(c.W(buf,kb,ft),4)}, v{5 if slot < 3 else 6} offset:{o}")
            return r
        c = Cons(k, 1, 5, 2, ACC, 36, "W", reads, rdgaps=6)
        for r in range(20): k(f"v_mov_b32 v{ACC+r}, 0")
        k("s_waitcnt lgkmcnt(0)\ns_mov_b32 s10, %d\ns_mov_b32 s11, 0x20000" % (S * D * 2))
        k("s_barrier")
        c.first_reads(0)
        k(f"s_mov_b32 s{sCNT}, 3")
        k(f"{name}_c6loop:")
        for s in range(4): c.stage(s, False)
        k(f"s_sub_u32 s{sCNT}, s{sCNT}, 1\ns_cmp_lg_u32 s{sCNT}, 0\ns_cbranch_scc1 {name}_c6loop")
        for s in range(12, NST): c.stage(s, s == NST - 1, barrier=(s < NST - 1))
        st.tr(17)
        if "5" not in self.ph: k("s_waitcnt vmcnt(0)")
        P = 40
        for e in range(10): k(f"v_lshlrev_b32 v{60+2*e}, 16, v{RES+e}\nv_and_b32 v{61+2*e}, 0xffff0000, v{RES+e}")
        for e in range(10): k(f"v_pk_add_f32 {vr(ACC+2*e,2)}, {vr(ACC+2*e,2)}, {vr(60+2*e,2)}")
        for e in range(10): k(f"v_cvt_pk_bf16_f32 v{P+e}, v{ACC+2*e}, v{ACC+2*e+1}")
        for p in range(2): k(f"v_permlane16_swap_b32 v{P+4*p}, v{P+4*p+2}\nv_permlane16_swap_b32 v{P+4*p+1}, v{P+4*p+3}")
        k(f"buffer_store_dwordx4 {vr(P,4)}, v232, s[8:11], s14 offen\nbuffer_store_dwordx4 {vr(P+4,4)}, v232, s[8:11], s14 offen offset:64")
        k(f"buffer_store_dwordx2 {vr(P+8,2)}, v233, s[8:11], s14 offen offset:128")
    def build(self):
        k, st, name, ph = self.k, self.st, self.name, self.ph
        prologue(k, name, 256, sW, st)
        k(f"s_load_dwordx4 s[4:7], s[0:1], {KA_WSP}\ns_load_dwordx2 s[40:41], s[0:1], {KA_WS}\ns_load_dwordx2 s[8:9], s[0:1], {KA_X}\ns_load_dwordx2 s[12:13], s[0:1], {KA_WOUT}")
        if "1" in ph: k(f"s_load_dwordx4 s[24:27], s[0:1], {KA_X}\ns_load_dwordx2 s[48:49], s[0:1], {KA_WIN}\ns_load_dwordx2 s[50:51], s[0:1], {KA_WO}\ns_load_dwordx2 s[44:45], s[0:1], {KA_DBG}")
        wave_lane(k, sW)
        k(f"s_and_b32 s{sLW}, s{sW}, 3")
        k(f"v_mov_b32 v8, 0\nv_lshlrev_b32 v9, 2, v1\nv_add_u32 v9, {XF}, v9\nds_write_b32 v9, v8")
        if "1" in ph: p1(self, XF, set_flag4, self.rot1)
        if ph == "1": pass
        elif "2" in ph:
            p2(self, self.p3_pre if "3" in ph else None, self.PREF)
        else:
            if "3" not in ph: self.common45()
            k("s_waitcnt lgkmcnt(0)")
            srd(k, SRD_WS, 40, 0, WS_SIZE)
            if "3" in ph: self.p3_pre()
        if "3" in ph:
            self.p3_x(); self.p3()
        k(f"s_cmp_lt_u32 s{sW}, 4\ns_cbranch_scc1 {name}_A")
        if "3" in ph:
            self.p3B()
            if "4" in ph: self.common45()
        if "4" in ph: self.p4B()
        if ph == "6": self.cons4_setup(); self.p6B_pre()
        if "5" in ph: self.p5B()
        if "6" in ph: self.p6B()
        st.trflush(20, sW, SRD_WS, self.kidx); st.flush(2, sW, SRD_WS, self.kidx)
        k("s_endpgm")
        k(f"{name}_A:")
        if "3" in ph:
            self.p3A()
            if "4" in ph: self.common45()
        if "4" in ph:
            self.p4A_setup()
            self.p4A()
        if ph == "6": self.p6A_setup()
        if "5" in ph: self.p5A()
        if "6" in ph: self.p6A()
        st.trflush(20, sW, SRD_WS, self.kidx); st.flush(2, sW, SRD_WS, self.kidx)
        k(f"{name}_end:\ns_endpgm")
        for x in k.tail: k(x)
        return k
def mega(phases, name=None, **kw): return Mega(name or f"k{phases}_kernel", phases, **kw).build()
if __name__ == "__main__":
    ks = [mega("4", stamps="trace"), mega("45", stamps="trace")]
    open("megat.s", "w").write(build(ks))
    for q in ks: print(q.name, q.stats, q.nops, len(q.lines))
```

```python
from common import *
from relayout import *
from k1 import t_dma_setup, t_swz_read_setup, w_dma_setup, tr_read_setup, f2u, QSCALE
OOB = 0x40000000
sW, sLW, SRD_WS = 20, 23, 16
ws = S4(SRD_WS)
SRD_D = 44

def cnt_check(k, name, target, xf, lead=sLW):
    k(f"v_cmp_gt_u32 vcc, {target}, v10\ns_mov_b32 s52, 0x10000\nv_mov_b32 v9, {xf}\ns_cbranch_vccnz {name}\n{name}_ok:\nv_mov_b32 v10, 1\nds_write_b32 v9, v10")
    k.tail += [f"{name}:", f"s_cmp_lg_u32 s{lead}, 0", f"s_cbranch_scc1 {name}_l",
               f"{name}_g:", "s_sleep 8", f"buffer_load_dword v10, v8, {S4(SRD_D)}, 0 offen sc1", "s_waitcnt vmcnt(0)", f"v_cmp_gt_u32 vcc, {target}, v10", "s_sub_u32 s52, s52, 1",
               f"s_cbranch_vccz {name}_ok", "s_cmp_eq_u32 s52, 0", f"s_cbranch_scc1 {name}_ok", f"s_branch {name}_g",
               f"{name}_l:", "ds_read_b32 v10, v9", "s_waitcnt lgkmcnt(0)", "v_cmp_ne_u32 vcc, 0, v10", "s_sub_u32 s52, s52, 1", f"s_cbranch_vccnz {name}_ok",
               "s_cmp_eq_u32 s52, 0", f"s_cbranch_scc1 {name}_ok", "s_sleep 2", f"s_branch {name}_l"]

def p1(M, XF, set_flag4, rot=(2, 3)):
    k, st, name = M.k, M.st, M.name
    fused = "2" in M.ph
    fl = " sc1" if fused else ""
    NST = 9
    sI, sC = 21, 22
    SRD_T, SRD_W, SRD_V = 24, 28, 24
    sT, sT2, sWo, sMT, sMW, sMW5, sE, sS = 53, 54, 55, 14, 15, 32, 34, 33
    k(f"s_and_b32 s38, s2, 7\ns_lshr_b32 s39, s2, 3")
    k(f"s_cmp_ge_u32 s39, 24\ns_cbranch_scc1 {name}_side")
    k(f"s_and_b32 s{sI}, s38, 3\ns_lshl_b32 s{sI}, s{sI}, 2\ns_and_b32 s42, s39, 3\ns_add_u32 s{sI}, s{sI}, s42")
    k(f"s_lshr_b32 s38, s38, 2\ns_mul_i32 s38, s38, 6\ns_lshr_b32 s43, s39, 2\ns_add_u32 s{sC}, s43, s38")
    k(f"s_cmp_lt_u32 s{sW}, 4\ns_cbranch_scc1 {name}_c1")
    vDT0, vDT1, vDW = 4, 5, 16
    t_dma_setup(k, vDT0, vDT1, 1152)
    k(f"s_mul_i32 s42, s42, {rot[0]}\ns_mul_i32 s43, s43, {rot[1]}\ns_add_u32 s{sS}, s42, s43\ns_mul_i32 s38, s{sS}, 29\ns_lshr_b32 s38, s38, 8\ns_mul_i32 s38, s38, 9\ns_sub_u32 s{sS}, s{sS}, s38")
    k(f"s_mul_i32 s{sT}, s{sI}, {128*1152}\ns_mul_i32 s39, s{sLW}, {32*1152}\ns_add_u32 s{sT}, s{sT}, s39\ns_lshl_b32 s39, s{sS}, 7\ns_add_u32 s{sT}, s{sT}, s39\ns_add_u32 s{sT2}, s{sT}, {16*1152}")
    k(f"s_mul_i32 s{sWo}, s{sC}, 288\ns_mul_i32 s39, s{sS}, {64*3456}\ns_add_u32 s{sWo}, s{sWo}, s39")
    k(f"s_lshl_b32 s{sMT}, s{sLW}, 12\ns_add_u32 s{sMW}, s{sMT}, {W_BASE}")
    k(f"s_and_b32 s39, s{sLW}, 1\ns_lshl_b32 s39, s39, 10\ns_add_u32 s{sMW5}, s39, {W_BASE+16384}")
    k(f"s_cmp_lt_u32 s{sLW}, 2\ns_cselect_b64 s[{sE}:{sE+1}], -1, 0\ns_cselect_b64 s[{sE+2}:{sE+3}], 0, -1")
    k("s_waitcnt lgkmcnt(0)")
    srd(k, SRD_W, 26, 0, D * 3 * D * 2)
    k(f"s_mov_b32 s26, {S*D*2}\ns_mov_b32 s27, 0x20000")
    def dT(s):
        for q in range(4):
            k(f"s_add_u32 m0, s{sMT}, {(s%4)*T_SLOT + q*1024}")
            k(f"buffer_load_dwordx4 v{vDT0 + (q&1)}, {S4(SRD_T)}, s{sT if q < 2 else sT2} offen lds")
    def dW(s):
        for n in range(4):
            k(f"s_add_u32 m0, s{sMW}, {(s%4)*W_SLOT + n*1024}")
            k(f"buffer_load_dwordx4 v{vDW+n}, {S4(SRD_W)}, s{sWo} offen lds")
        e = sE + 2 * (s & 1)
        k(f"s_add_u32 m0, s{sMW5}, {(s%4)*W_SLOT}\ns_mov_b64 exec, s[{e}:{e+1}]")
        k(f"buffer_load_dwordx4 v{vDW+4}, {S4(SRD_W)}, s{sWo} offen lds\ns_mov_b64 exec, -1")
        k(f"s_add_u32 s{sS}, s{sS}, 1\ns_cmp_eq_u32 s{sS}, 9\ns_movk_i32 s38, 128\ns_cselect_b32 s38, {(128 - 1152) & 0xffffffff}, s38\ns_mov_b32 s39, {64*3456}\ns_cselect_b32 s39, {(-8*64*3456) & 0xffffffff}, s39")
        k(f"s_add_u32 s{sT}, s{sT}, s38\ns_add_u32 s{sT2}, s{sT2}, s38\ns_add_u32 s{sWo}, s{sWo}, s39")
    dT(0)
    w_dma_setup(k, vDW, sLW, 18, 64, [1, 2, 8, 16, 4, 32], 0, 3456)
    st.tr(1)
    dW(0)
    dT(1); dW(1)
    st.tr(2)
    srd(k, SRD_WS, 40, 0, WS_SIZE)
    k(f"s_mov_b32 s46, 256\ns_mov_b32 s47, 0x20000")
    k("s_waitcnt vmcnt(8)\ns_barrier")
    dT(2); dW(2)
    RS, CQ = 24, 26
    for s in range(NST - 1):
        vm = {7: 0}.get(s, 8)
        k(f"s_waitcnt vmcnt({vm})\ns_barrier")
        st.tr(3 + s)
        if s == 6: k(f"v_mov_b32 v8, 0\nbuffer_load_dword v10, v8, {S4(SRD_D)}, 0 offen sc1")
        if s + 3 < NST: dT(s + 3); dW(s + 3)
        if False: k(f"v_mov_b32 v8, 0\nbuffer_load_dword v10, v8, {S4(SRD_D)}, 0 offen sc1")
        if s == 7:
            cnt_check(k, f"{name}_c1poll", 64, XF + 12)
            k(f"v_and_b32 v11, 31, v1\nv_lshlrev_b32 v12, 3, v11\ns_lshl_b32 s38, s{sI}, 2\ns_add_u32 s38, s38, s{sLW}\ns_lshl_b32 s38, s38, 8\ns_add_u32 s38, s38, {WS_RS}")
            k(f"buffer_load_dwordx2 {vr(RS,2)}, v12, {ws}, s38 offen sc1")
            k(f"s_cmp_lt_u32 s{sC}, 8\ns_cselect_b64 s[42:43], -1, 0\ns_mul_i32 s38, s{sC}, 576\ns_add_u32 s38, s38, {WS_CSQ}")
            for q in range(3):
                if q < 2:
                    k(f"v_add_u32 v13, {64*q}, v1\nv_lshrrev_b32 v14, 5, v13\nv_mul_u32_u24 v14, 36, v14\nv_bfe_u32 v15, v13, 4, 1\nv_mad_u32_u24 v14, v15, 20, v14\nv_and_b32 v15, 15, v13\nv_add_u32 v14, v14, v15")
                else:
                    k(f"v_and_b32 v13, 15, v1\nv_lshrrev_b32 v14, 2, v13\nv_mul_u32_u24 v14, 36, v14\nv_and_b32 v15, 3, v13\nv_add3_u32 v14, v14, v15, 16\nv_add_u32 v13, 128, v13")
                k(f"v_cndmask_b32 v14, v13, v14, s[42:43]\nv_lshlrev_b32 v14, 2, v14\nv_lshlrev_b32 v{29+q}, 2, v13")
                k(f"buffer_load_dword v{CQ+q}, v14, {ws}, s38 offen sc1")
    k(f"s_cmp_lt_u32 s{sC}, 4\ns_cselect_b32 s38, {f2u(QSCALE)}, 1.0\ns_lshl_b32 s39, s{sLW}, 8\ns_add_u32 s39, s39, {X_BASE}\nv_lshl_add_u32 v12, v11, 2, s39")
    k(f"v_add_u32 v29, {X_BASE+1024}, v29\nv_add_u32 v30, {X_BASE+1024}, v30\nv_add_u32 v31, {X_BASE+1024}, v31\ns_waitcnt vmcnt(0)")
    k(f"v_mul_f32 v{RS}, s38, v{RS}\nv_mul_f32 v{RS+1}, s38, v{RS+1}\nds_write_b32 v12, v{RS}\nds_write_b32 v12, v{RS+1} offset:128")
    for q in range(3): k(f"ds_write_b32 v{29+q}, v{CQ+q}")
    k("s_waitcnt lgkmcnt(0)\ns_barrier")
    st.tr(11)
    k(f"s_branch {name}_p1done")
    k(f"{name}_c1:")
    vT0, vT1, vWa, vWt = 4, 5, 6, 8
    t_swz_read_setup(k, vT0, vT1, sW)
    tr_read_setup(k, vWa, 288, W_BASE)
    k(f"v_add_u32 v{vWa+1}, {3*W_SLOT}, v{vWa}")
    k(f"v_mul_u32_u24 v{vWt}, 72, v12\nv_add3_u32 v{vWt}, v{vWt}, v11, 32\nv_add_u32 v{vWt+1}, {3*W_SLOT}, v{vWt}")
    k("s_waitcnt lgkmcnt(0)")
    srd(k, SRD_WS, 40, 0, WS_SIZE)
    srd(k, SRD_V, 40, WS_VF, 256 * 9728)
    ACC, FR0 = 16, 88
    def mkreads(qk):
        def reads(c, s, kk, buf):
            slot = s % 4
            r = [f"ds_read_b128 {vr(c.T(buf,0,tt),4)}, v{vT0+kk} offset:{slot*T_SLOT + tt*2048}" for tt in range(2)]
            for ft in range(9):
                for hh in range(2):
                    o = (slot if slot < 3 else 0) * W_SLOT + (32 * kk + 16 * hh) * 288
                    va = vWa
                    if qk:
                        if ft < 8: o += 72 * (ft >> 1) + 40 * (ft & 1)
                        else: va = vWt
                    else: o += 32 * ft
                    r.append(f"ds_read_b64_tr_b16 {vr(c.W(buf,0,ft)+2*hh,2)}, v{va + (1 if slot == 3 else 0)} offset:{o}")
            return r
        return reads
    k(f"s_lshl_b32 s44, s{sI}, 2\ns_add_u32 s44, s44, s{sW}")
    k(f"s_lshl_b32 s43, s{sI}, 4\ns_add_u32 s43, s43, s{sC}\ns_lshl_b32 s43, s43, 7\ns_add_u32 s43, s43, {WS_FL1}")
    k(f"v_and_b32 v11, 15, v1\nv_lshrrev_b32 v12, 4, v1\ns_lshl_b32 s45, s{sW}, 8\ns_add_u32 s45, s45, {X_BASE}\nv_lshlrev_b32 v3, 4, v1")
    k(f"s_cmp_ge_u32 s{sC}, 8\ns_cbranch_scc1 {name}_v1")
    P, AB, CS, VO = 88, 124, 140, 176
    for qk in (True, False):
        if not qk: k(f"{name}_v1:")
        c = Cons(k, 2, 9, 1, ACC, FR0, "W" if qk else "T", mkreads(qk), rdgaps=12)
        if qk:
            k(f"v_lshl_add_u32 v13, v11, 2, s45\nv_lshlrev_b32 v14, 4, v12\nv_add_u32 v14, {X_BASE+1024}, v14")
            k(f"s_and_b32 s46, s{sC}, 3\ns_lshl_b32 s47, s46, 19\ns_lshl_b32 s48, s44, 10\ns_add_u32 s47, s47, s48")
            k(f"s_cmp_lt_u32 s{sC}, 4\ns_mov_b32 s48, {WS_QM}\ns_cselect_b32 s48, s48, {WS_KM}\ns_mov_b32 s49, {WS_QT}\ns_cselect_b32 s49, s49, {WS_KT}\ns_add_u32 s47, s47, s48")
            k(f"s_lshl_b32 s46, s46, 16\ns_add_u32 s49, s49, s46\ns_lshl_b32 s46, s44, 7\ns_add_u32 s49, s49, s46")
            k(f"v_and_b32 v10, 31, v1\nv_lshlrev_b32 v10, 2, v10\nv_lshrrev_b32 v15, 5, v1\nv_lshl_add_u32 v10, v15, 15, v10")
        else:
            k(f"v_lshl_add_u32 v13, v12, 4, s45\nv_lshlrev_b32 v14, 2, v11\nv_add_u32 v14, {X_BASE+1024}, v14")
            k(f"s_mul_i32 s47, s44, {4*9728}\ns_sub_u32 s46, s{sC}, 8\ns_mul_i32 s46, s46, {8*304}\ns_add_u32 s47, s47, s46")
            k(f"v_mul_u32_u24 v2, 9728, v12")
            m, sh = magic(18, 144)
            for ft in range(9):
                k(f"v_add_u32 v10, {16*ft}, v11\nv_mul_u32_u24 v15, {m}, v10\nv_lshrrev_b32 v15, {sh}, v15\nv_add_u32 v10, v10, v15\nv_lshl_add_u32 v{VO+ft}, v10, 4, v2")
            k(f"v_lshrrev_b32 v10, 3, v1\nv_mul_u32_u24 v10, 9728, v10\nv_and_b32 v15, 7, v1\nv_mul_u32_u24 v15, 304, v15\nv_add3_u32 v10, v10, v15, 0\nv_add_u32 v10, 288, v10")
            k(f"v_cmp_gt_u32 vcc, 32, v1\nv_mov_b32 v15, {OOB}\nv_cndmask_b32 v10, v15, v10, vcc")
            for i in range(4): k(f"v_mov_b32 v{188+i}, 0x3f803f80")
            k(f"buffer_store_dwordx4 v[188:191], v10, {S4(SRD_V)}, s47 offen{fl}")
        k("s_barrier")
        st.tr(1)
        c.first_reads(0)
        for s in range(NST):
            c.stage(s, s == NST - 1, zero_c=(s == 0), barrier=(s < NST - 1), post_barrier=(lambda s=s: st.tr(2 + s)))
        k("s_barrier")
        st.tr(11)
        if qk:
            for tt in range(2): k(f"ds_read2_b32 {vr(AB+2*tt,2)}, v13 offset0:{16*tt} offset1:{32+16*tt}")
            for ft in range(9): k(f"ds_read_b128 {vr(CS+4*ft,4)}, v14 offset:{64*ft}")
        else:
            for tt in range(2): k(f"ds_read_b128 {vr(AB+8*tt,4)}, v13 offset:{64*tt}\nds_read_b128 {vr(AB+8*tt+4,4)}, v13 offset:{128+64*tt}")
            for ft in range(9): k(f"ds_read_b32 v{CS+ft}, v14 offset:{64*ft}")
        k("s_waitcnt lgkmcnt(0)")
        for ft in range(9):
            o = P + 4 * (ft % 4)
            cp = CS + (ft & ~1); hs = ft & 1
            for tt in range(2):
                a = c.acc(tt, ft)
                for h in range(2):
                    if qk: k(f"v_pk_mul_f32 {vr(a+2*h,2)}, {vr(a+2*h,2)}, {vr(AB+2*tt,2)} op_sel_hi:[1,0]")
                    else: k(f"v_pk_mul_f32 {vr(a+2*h,2)}, {vr(a+2*h,2)}, {vr(AB+8*tt+2*h,2)}")
            for tt in range(2):
                a = c.acc(tt, ft)
                for h in range(2):
                    if qk: k(f"v_pk_fma_f32 {vr(a+2*h,2)}, {vr(CS+4*ft+2*h,2)}, {vr(AB+2*tt,2)}, {vr(a+2*h,2)} op_sel:[0,1,0]")
                    else: k(f"v_pk_fma_f32 {vr(a+2*h,2)}, {vr(cp,2)}, {vr(AB+8*tt+4+2*h,2)}, {vr(a+2*h,2)} op_sel:[{hs},0,0] op_sel_hi:[{hs},1,1]")
            for tt in range(2):
                a = c.acc(tt, ft)
                for h in range(2): k(f"v_cvt_pk_bf16_f32 v{o+2*tt+h}, v{a+2*h}, v{a+2*h+1}")
            if qk:
                k(f"v_permlane16_swap_b32 v{o}, v{o+2}\nv_permlane16_swap_b32 v{o+1}, v{o+3}")
                if ft < 8: k(f"buffer_store_dwordx4 {vr(o,4)}, v3, {ws}, s47 offen{fl}\ns_add_u32 s47, s47, 65536")
                else:
                    for e in range(4): k(f"buffer_store_dword v{o+e}, v10, {ws}, s49 offen{fl}\ns_add_u32 s49, s49, 8192")
            else:
                k(f"v_permlane32_swap_b32 v{o}, v{o+2}\nv_permlane32_swap_b32 v{o+1}, v{o+3}")
                k(f"buffer_store_dwordx4 {vr(o,4)}, v{VO+ft}, {S4(SRD_V)}, s47 offen{fl}")
        st.tr(12)
        if fused: set_flag4(k, name, 43, 10, st, 13)
        k(f"s_branch {name}_p1done")
    k(f"{name}_side:")
    k(f"s_sub_u32 s39, s39, 24\ns_lshl_b32 s39, s39, 3\ns_add_u32 s21, s39, s38")
    k(f"v_lshlrev_b32 v3, 4, v1\nv_mov_b32 v15, {OOB}\nv_and_b32 v11, 15, v1\nv_lshrrev_b32 v12, 4, v1")
    k("s_waitcnt lgkmcnt(0)")
    srd(k, SRD_W, 26, 0, D * 3 * D * 2)
    k(f"s_mov_b32 s26, {S*D*2}\ns_mov_b32 s27, 0x20000\ns_mov_b32 s46, 256\ns_mov_b32 s47, 0x20000")
    srd(k, SRD_WS, 40, 0, WS_SIZE)
    for i in range(4): k(f"v_mov_b32 v{16+i}, 0x3f803f80")
    CSP = 8 * 18432 + 256 + 256
    DA, DB, FA, FB = 160, 30, 40, 80
    k(f"s_mov_b32 s14, s50\ns_mov_b32 s15, s51\ns_mov_b32 s50, {D*F*2}\ns_mov_b32 s51, 0x20000")
    def unitA():
        k(f"s_lshr_b32 s22, s21, 1\ns_and_b32 s53, s21, 1")
        unit_offsets(k, DA, 9, [1, 2, 4, 8, 16], 0, 9216, t0=32)
        k(f"s_mul_i32 s10, s{sW}, {72*9216}\ns_mul_i32 s38, s53, {32*9216}\ns_add_u32 s10, s10, s38\ns_mul_i32 s11, s22, 288\ns_add_u32 s10, s10, s11")
        k(f"s_mul_i32 s54, s{sW}, 18432\ns_add_u32 s55, s54, 9216")
        unit_issue(k, DA, 9, 48, 10, 54)
    k(f"s_cmp_ge_u32 s{sW}, 2\ns_cbranch_scc1 {name}_scs")
    k(f"s_and_b32 s42, s2, 3\ns_lshl_b32 s42, s42, 5\ns_bfe_u32 s38, s2, 0x10002\ns_lshl_b32 s38, s38, 4\ns_add_u32 s42, s42, s38\ns_lshr_b32 s38, s21, 3\ns_lshl_b32 s38, s38, 1\ns_add_u32 s42, s42, s38")
    k(f"s_add_u32 s42, s42, s{sW}\ns_mul_i32 s43, s42, {16*1152}\nv_mul_u32_u24 v4, 1152, v11\nv_lshl_add_u32 v4, v12, 4, v4")
    for n in range(18): k(f"buffer_load_dwordx4 {vr(40+4*n,4)}, v4, {S4(SRD_T)}, s43 offen offset:{64*n}")
    unitA()
    k(f"v_lshrrev_b32 v13, 2, v11\nv_and_b32 v14, 3, v1\nv_cmp_eq_u32 vcc, v12, v13\nv_lshlrev_b32 v5, 3, v11\nv_cndmask_b32 v5, v15, v5, vcc")
    k(f"v_cmp_eq_u32 s[32:33], 1, v14\nv_cmp_eq_u32 s[34:35], 2, v14\nv_cmp_eq_u32 s[36:37], 3, v14\ns_lshl_b32 s42, s42, 7\ns_add_u32 s42, s42, {WS_RS}")
    for n in range(18):
        t = vr(40 + 4 * n, 4)
        k(f"s_waitcnt vmcnt({26-n})")
        k(f"v_mfma_f32_16x16x32_bf16 v[20:23], v[16:19], {t}, {'0' if n == 0 else 'v[20:23]'}\nv_mfma_f32_16x16x32_bf16 v[24:27], {t}, {t}, {'0' if n == 0 else 'v[24:27]'}")
    k(f"s_mov_b32 s38, {f2u(1.0/576)}\nv_cndmask_b32 v6, v24, v25, s[32:33]\nv_cndmask_b32 v6, v6, v26, s[34:35]\nv_cndmask_b32 v6, v6, v27, s[36:37]")
    k(f"v_mul_f32 v7, s38, v20\nv_mul_f32 v6, s38, v6\nv_fma_f32 v6, -v7, v7, v6\nv_max_f32 v6, 0, v6\nv_add_f32 v6, {f2u(1e-5)}, v6\nv_rsq_f32 v6, v6\nv_mul_f32 v7, v7, v6\nv_sub_f32 v7, 0, v7")
    k(f"buffer_store_dwordx2 v[6:7], v5, {ws}, s42 offen sc1\ns_barrier\ns_branch {name}_sj1")
    k(f"{name}_scs:")
    k(f"s_and_b32 s33, s2, 3\ns_lshl_b32 s33, s33, 3\ns_lshr_b32 s38, s21, 3\ns_add_u32 s33, s33, s38\ns_bfe_u32 s38, s2, 0x10002\ns_mul_i32 s38, s38, 27\ns_add_u32 s32, s33, s38")
    k(f"s_sub_u32 s42, s{sW}, 2\ns_mul_i32 s43, s42, {96*3456}\ns_lshl_b32 s38, s32, 6\ns_add_u32 s43, s43, s38\ns_cmp_ge_u32 s33, 27\ns_cselect_b32 s43, {OOB}, s43")
    k(f"v_lshrrev_b32 v4, 2, v1\nv_mul_u32_u24 v4, 3456, v4\nv_and_b32 v5, 3, v1\nv_lshl_add_u32 v4, v5, 4, v4")
    for n in range(6): k(f"buffer_load_dwordx4 {vr(40+4*n,4)}, v4, {S4(SRD_W)}, s43 offen\ns_add_u32 s43, s43, {16*3456}")
    nper = RESET_BYTES // 64
    k(f"v_mov_b32 v20, -1\nv_mov_b32 v21, -1\nv_mov_b32 v22, -1\nv_mov_b32 v23, -1\nv_subrev_u32 v6, 128, v0\nv_lshlrev_b32 v6, 4, v6\ns_mul_i32 s38, s21, {nper}\ns_add_u32 s38, s38, {WS_ZST}")
    k(f"buffer_store_dwordx4 v[20:23], v6, {ws}, s38 offen sc1\nv_add_u32 v6, 6144, v6\nv_cmp_gt_u32 vcc, {nper}, v6\nv_cndmask_b32 v6, v15, v6, vcc\nbuffer_store_dwordx4 v[20:23], v6, {ws}, s38 offen sc1")
    unitA()
    assert 6144 < nper <= 2 * 6144 and nper % 16 == 0
    for n in range(6):
        k(f"s_waitcnt vmcnt({16-n})")
        for q in range(4):
            src = 40 + 4 * n + q
            if n == 0: k(f"v_lshlrev_b32 v{24+2*q}, 16, v{src}\nv_and_b32 v{25+2*q}, 0xffff0000, v{src}")
            else: k(f"v_lshlrev_b32 v8, 16, v{src}\nv_and_b32 v9, 0xffff0000, v{src}\nv_pk_add_f32 {vr(24+2*q,2)}, {vr(24+2*q,2)}, v[8:9]")
    for sh in (4, 8):
        for e in range(8): k(f"v_add_f32_dpp v{24+e}, v{24+e}, v{24+e} row_ror:{sh} row_mask:0xf bank_mask:0xf")
    k(f"s_lshl_b32 s38, s42, 9\ns_add_u32 s38, s38, {CSP}\nv_lshlrev_b32 v6, 7, v12\nv_lshl_add_u32 v6, v5, 5, v6\nv_add_u32 v6, s38, v6")
    k(f"ds_write_b128 v6, v[24:27]\nds_write_b128 v6, v[28:31] offset:16\ns_waitcnt lgkmcnt(0)\ns_barrier")
    k(f"s_cmp_lg_u32 s{sW}, 2\ns_cbranch_scc1 {name}_sj1")
    k(f"v_and_b32 v6, 31, v1\nv_lshlrev_b32 v6, 2, v6\nv_lshrrev_b32 v7, 5, v1\nv_mul_u32_u24 v7, 1536, v7\nv_add3_u32 v7, v7, v6, 0\nv_add_u32 v7, {CSP}, v7")
    for n in range(12): k(f"ds_read_b32 v{24+n}, v7 offset:{128*n}")
    k("s_waitcnt lgkmcnt(0)")
    for n in range(1, 12): k(f"v_add_f32 v24, v24, v{24+n}")
    k(f"v_mov_b32 v25, v24\nv_permlane32_swap_b32 v24, v25\nv_add_f32 v24, v24, v25\ns_lshl_b32 s38, s32, 7\ns_add_u32 s38, s38, {WS_CSQ}\ns_cmp_ge_u32 s33, 27\ns_cselect_b32 s38, {OOB}, s38")
    k(f"buffer_store_dword v24, v6, {ws}, s38 offen sc1")
    k(f"{name}_sj1:")
    k(f"v_mov_b32 v8, 1\nv_mov_b32 v9, 0\ns_cmp_eq_u32 s{sW}, 0\ns_cselect_b64 s[36:37], 1, 0\ns_waitcnt vmcnt(0)\ns_barrier")
    k(f"s_mov_b64 exec, s[36:37]\nbuffer_atomic_add v8, v9, {S4(SRD_D)}, 0 offen sc1\ns_mov_b64 exec, -1")
    st.tr(1)
    srd(k, SRD_T, 14, 0, D * D * 2)
    k(f"s_mul_i32 s33, s22, {18*9216}\ns_add_u32 s33, s33, {WS_WINF}\ns_mul_i32 s38, s53, 9216\ns_add_u32 s33, s33, s38")
    k(f"s_mul_i32 s38, s{sW}, {2*9216}\ns_add_u32 s34, s33, s38\ns_add_u32 s35, s33, {16*9216}")
    def ustore(vF, NF, sDst):
        for ft in range(NF):
            k(f"buffer_store_dwordx4 {vr(vF+4*ft,4)}, v3, {ws}, s{sDst} offen offset:{(ft%4)*1024}{fl}")
            if ft % 4 == 3 and ft + 1 < NF: k(f"s_add_u32 s{sDst}, s{sDst}, 4096")
    def finishA():
        unit_read(k, FA, 9, 54)
        k("s_waitcnt lgkmcnt(0)")
        ustore(FA, 9, 34)
        for ft in range(9): k(f"v_mfma_f32_16x16x32_bf16 {vr(120+4*ft,4)}, v[16:19], {vr(FA+4*ft,4)}, 0")
    k(f"s_cmp_eq_u32 s{sW}, 0\ns_cbranch_scc1 {name}_sB0")
    k(f"s_cmp_gt_u32 s{sW}, 3\ns_cbranch_scc1 {name}_sNone\ns_cmp_ge_u32 s21, 48\ns_cbranch_scc1 {name}_sNone")
    k(f"s_mul_i32 s42, s21, 3\ns_add_u32 s42, s42, s{sW}\ns_sub_u32 s42, s42, 1\ns_mul_i32 s43, s42, 3641\ns_lshr_b32 s43, s43, 16\ns_mul_i32 s32, s43, 18\ns_sub_u32 s32, s42, s32")
    k(f"s_mul_i32 s42, s42, 5120\ns_add_u32 s42, s42, {WS_WOF}\ns_mul_i32 s43, s43, 144")
    k(f"s_cmp_ge_u32 s32, 16\ns_cbranch_scc1 {name}_sWoT")
    unit_offsets(k, DB, 5, [1, 2, 4, 18, 8], 0, 1152)
    k(f"s_mul_i32 s32, s32, {36*1152}\ns_branch {name}_sWo2")
    k(f"{name}_sWoT:")
    unit_offsets(k, DB, 5, [1, 18, 72, 144, 36], 16, 1152)
    k(f"s_sub_u32 s32, s32, 16\ns_mul_i32 s32, s32, {288*1152}")
    k(f"{name}_sWo2:")
    k("s_add_u32 s32, s32, s43")
    unit_issue(k, DB, 5, SRD_T, 32, 55)
    finishA()
    k("s_waitcnt vmcnt(9)")
    unit_read(k, FB, 5, 55)
    k("s_waitcnt lgkmcnt(0)")
    ustore(FB, 5, 42)
    k(f"s_branch {name}_sCs")
    k(f"{name}_sB0:")
    unit_offsets(k, DB, 9, [1, 2, 72, 144, 4], 64, 9216)
    k(f"s_mul_i32 s32, s53, {288*9216}\ns_add_u32 s32, s32, s11")
    unit_issue(k, DB, 9, 48, 32, 55)
    finishA()
    k("s_waitcnt vmcnt(9)")
    unit_read(k, FB, 9, 55)
    k("s_waitcnt lgkmcnt(0)")
    ustore(FB, 9, 35)
    for ft in range(9): k(f"v_mfma_f32_16x16x32_bf16 {vr(120+4*ft,4)}, v[16:19], {vr(FB+4*ft,4)}, {vr(120+4*ft,4)}")
    k(f"s_branch {name}_sCs")
    k(f"{name}_sNone:")
    finishA()
    k(f"{name}_sCs:")
    k(f"v_and_b32 v11, 15, v1\ns_mul_i32 s38, s{sW}, 576\ns_add_u32 s38, s38, {CSP}\nv_lshl_add_u32 v11, v11, 2, s38")
    for ft in range(9): k(f"ds_write_b32 v11, v{120+4*ft} offset:{64*ft}")
    k("s_waitcnt lgkmcnt(0)\ns_barrier")
    k(f"v_min_u32 v7, 143, v0\nv_lshlrev_b32 v7, 2, v7\nv_add_u32 v8, {CSP}, v7")
    for n in range(8): k(f"ds_read_b32 v{20+n}, v8 offset:{576*n}")
    k("s_waitcnt lgkmcnt(0)")
    for n in range(1, 8): k(f"v_add_f32 v20, v20, v{20+n}")
    k(f"v_cmp_gt_u32 vcc, 144, v0\nv_cndmask_b32 v7, v15, v7, vcc")
    k(f"s_mul_i32 s38, s22, 576\ns_mul_i32 s39, s53, {4608*4}\ns_add_u32 s38, s38, s39\ns_add_u32 s38, s38, {WS_CS}")
    k(f"buffer_store_dword v20, v7, {ws}, s38 offen{fl}")
    st.tr(2)
    if fused:
        k(f"v_mov_b32 v8, 1\nv_mov_b32 v9, 128\ns_waitcnt vmcnt(0)\ns_barrier")
        k(f"s_mov_b64 exec, s[36:37]\nbuffer_atomic_add v8, v9, {S4(SRD_D)}, 0 offen sc1\ns_mov_b64 exec, -1")
        st.tr(3)
    k(f"{name}_p1done:")
```

```python
from common import *
from relayout import *
OOB = 0x40000000
sW, SRD_WS = 20, 16
ws = S4(SRD_WS)
def p2(M, after_barrier=None, PREF=True):
    k, st, name = M.k, M.st, M.name
    fused = "3" in M.ph
    fl = " sc1" if fused else ""
    KB_, VB, KTB, JB, RB = 49152, 111616, 136192, 138240, M.XT
    sQB, sH = 21, 22
    k(f"s_bfe_u32 s{sQB}, s2, 0x30003\ns_and_b32 s38, s2, 7\ns_lshl_b32 s38, s38, 2\ns_lshr_b32 s{sH}, s2, 6\ns_add_u32 s{sH}, s{sH}, s38")
    k(f"s_lshl_b32 s38, s{sH}, 16\ns_lshl_b32 s39, s{sQB}, 13\ns_add_u32 s38, s38, s39\ns_lshl_b32 s39, s{sW}, 10")
    k(f"s_add_u32 s43, s38, s39\ns_add_u32 s43, s43, {WS_QM}")
    k(f"s_lshl_b32 s39, s{sW}, 11\ns_add_u32 s44, s38, s39\ns_add_u32 s44, s44, {WS_KM - 8192}\ns_add_u32 s54, s39, {KB_}")
    k(f"s_lshr_b32 s38, s38, 3")
    k(f"s_lshl_b32 s39, s{sW}, 7\ns_add_u32 s45, s38, s39\ns_add_u32 s45, s45, {WS_QT}")
    k(f"s_lshl_b32 s39, s{sW}, 8\ns_add_u32 s46, s38, s39\ns_add_u32 s46, s46, {WS_KT - 1024}\ns_add_u32 s55, s39, {KTB}")
    k(f"s_mul_i32 s47, s{sQB}, {32*9728}\ns_mul_i32 s39, s{sH}, 304\ns_add_u32 s47, s47, s39\ns_add_u32 s47, s47, {WS_VF - 32*9728}")
    k(f"s_lshl_b32 s39, s{sQB}, 3\ns_add_u32 s48, s39, s{sW}")
    k(f"s_cmp_lt_u32 s48, 4\ns_cselect_b32 s44, {OOB}, s44\ns_cselect_b32 s46, {OOB}, s46")
    k(f"v_lshlrev_b32 v3, 4, v1\nv_lshlrev_b32 v7, 2, v1\nv_mov_b32 v15, {OOB}\nv_cmp_gt_u32 vcc, 32, v1\ns_mov_b32 m0, s54")
    k("s_waitcnt lgkmcnt(0)")
    srd(k, SRD_WS, 40, 0, WS_SIZE)
    QM, QT = 16, 20
    k(f"buffer_load_dwordx4 v3, {ws}, s44 offen lds\nbuffer_load_dwordx4 v3, {ws}, s44 offen offset:1024 lds")
    k(f"s_mov_b32 m0, s55\nv_cndmask_b32 v8, v15, v7, vcc")
    k(f"buffer_load_dword v7, {ws}, s46 offen lds")
    k(f"buffer_load_dwordx4 {vr(QM,4)}, v3, {ws}, s43 offen\nbuffer_load_dword v{QT}, v8, {ws}, s45 offen")
    k(f"s_cmp_eq_u32 s{sQB}, 0\ns_cselect_b32 s42, 32, 0\ns_lshl_b32 s54, s{sW}, 10")
    for i in range(3):
        k(f"s_lshl_b32 s38, s{sW}, 6\ns_add_u32 s38, s38, {512*i}\nv_add_u32 v11, s38, v1")
        vdiv(k, 12, 13, 11, 19, 1536)
        k(f"v_mul_u32_u24 v14, 9728, v12\nv_lshl_add_u32 v4, v13, 4, v14")
        k(f"v_cmp_gt_u32 s[28:29], s42, v12\nv_cmp_lt_u32 s[30:31], 63, v12\ns_add_u32 m0, s54, {VB + 8192*i}\nv_cndmask_b32 v4, v4, v15, s[28:29]")
        if i == 2: k(f"v_cndmask_b32 v4, v4, v15, s[30:31]")
        k(f"buffer_load_dwordx4 v4, {ws}, s47 offen lds")
    vKa, vKt, vVa = 4, 5, 6
    KT, MK, KF, VF, O, SB = 24, 44, 52, 64, 80, 96
    k(f"v_cndmask_b32 v{QT+1}, 0, 1.0, vcc\nv_lshrrev_b32 v{QT+1}, 16, v{QT+1}\nv_mov_b32 v{QT+2}, 0\nv_mov_b32 v{QT+3}, 0")
    k(f"s_add_u32 s39, s54, {KB_}\nv_add_u32 v{vKa}, s39, v3")
    k(f"v_and_b32 v11, 31, v1\nv_lshrrev_b32 v12, 5, v1")
    k(f"s_lshl_b32 s39, s{sW}, 7\ns_add_u32 s39, s39, {KTB}\nv_lshl_add_u32 v{vKt}, v11, 2, s39")
    k(f"s_mul_i32 s39, s{sW}, {4*304}\ns_add_u32 s39, s39, {VB}\nv_min_u32 v13, 18, v11\nv_mul_u32_u24 v14, 304, v12\nv_lshl_add_u32 v13, v13, 4, v14\nv_add_u32 v{vVa}, s39, v13")
    for kt in range(10):
        if kt < 8: k(f"s_cmp_lt_u32 s48, {8-kt}\ns_cselect_b32 s39, 0xff7f, 0\nv_mov_b32 v{KT+2*kt+1}, s39")
        else: k(f"v_mov_b32 v{KT+2*kt+1}, 0")
    k(f"v_mov_b32 v{KT+18}, 0")
    k(f"v_lshlrev_b32 v14, 2, v12\nv_sub_u32 v14, v11, v14")
    for r in range(16): k(f"v_subrev_u32 v{O+r}, {8*(r>>2)+(r&3)}, v14\nv_ashrrev_i32 v{O+r}, 31, v{O+r}")
    k("s_mov_b32 s39, 0xffff")
    for e in range(8): k(f"v_bfi_b32 v{MK+e}, s39, v{O+2*e}, v{O+2*e+1}")
    k(f"v_lshrrev_b32 v13, 4, v11\nv_lshlrev_b32 v13, 14, v13\nv_and_b32 v14, 15, v1\nv_lshl_add_u32 v9, v14, 4, v13")
    k(f"v_lshl_add_u32 v2, v12, 8, v9\nv_mov_b32 v9, v8")
    k(f"s_lshl_b32 s49, s48, 15\ns_add_u32 s49, s49, {WS_O}\ns_lshl_b32 s39, s{sH}, 9\ns_add_u32 s49, s49, s39")
    k(f"s_lshl_b32 s50, s48, 5\ns_add_u32 s50, s50, s{sH}\ns_lshl_b32 s50, s50, 7\ns_add_u32 s50, s50, {WS_OT}")
    DR = 240
    k(f"s_lshl_b32 s51, s2, 1\ns_add_u32 s51, s51, s{sW}\ns_add_u32 s38, s2, 512\ns_cmp_eq_u32 s{sW}, 2\ns_cselect_b32 s51, s38, s51")
    k(f"s_cmp_gt_u32 s{sW}, 2\ns_cselect_b32 s51, 576, s51")
    k(f"s_lshr_b32 s42, s51, 3\ns_and_b32 s53, s51, 7\ns_mul_i32 s43, s53, 144")
    k(f"s_lshr_b32 s52, s42, 2\ns_mul_i32 s52, s52, 144\ns_and_b32 s39, s42, 3\ns_lshl_b32 s39, s39, 5\ns_add_u32 s52, s52, s39")
    k(f"s_mul_i32 s39, s42, 288\ns_sub_u32 s39, s39, {288*64-128}\ns_cmp_ge_u32 s42, 64\ns_cselect_b32 s52, s39, s52\ns_cselect_b32 s39, {128*1152}, 0")
    k(f"s_mul_i32 s52, s52, 1152\ns_add_u32 s52, s52, s43")
    for i in range(5):
        k(f"v_add_u32 v245, {64*i}, v1")
        vdiv(k, 246, 247, 245, 10, 320)
        k(f"v_mul_u32_u24 v{DR+i}, 1152, v246\nv_lshl_add_u32 v{DR+i}, v247, 4, v{DR+i}\nv_lshrrev_b32 v246, 4, v246\nv_mad_u32_u24 v{DR+i}, v246, s39, v{DR+i}")
    k(f"s_mul_i32 s53, s53, 72\ns_add_u32 s53, s53, s42\ns_mul_i32 s53, s53, 5120\ns_add_u32 s53, s53, {WS_WOUTF}")
    k(f"s_min_u32 s54, s{sW}, 2\ns_mul_i32 s54, s54, 5120\ns_add_u32 s54, s54, {RB}")
    k(f"s_mov_b32 s14, {FH*D*2}\ns_mov_b32 s15, 0x20000\ns_cmp_lt_u32 s51, 576\ns_cselect_b64 s[36:37], -1, 0")
    k(f"s_lshl_b32 s55, s2, 3\ns_add_u32 s55, s55, s{sW}\ns_lshl_b32 s55, s55, 12")
    k("s_waitcnt vmcnt(0)\ns_barrier")
    st.tr(1)
    order = [0, 8, 1, 2, 3, 4, 5, 6, 7]
    for kt in order: k(f"ds_read_b32 v{KT+2*kt}, v{vKt} offset:{128*kt}")
    NB = 3
    for i in range(NB): k(f"ds_read_b128 {vr(KF+4*i,4)}, v{vKa} offset:{1024*order[i]}")
    k("s_mov_b64 exec, s[36:37]")
    unit_issue(k, DR, 5, 12, 52, 54)
    k("s_mov_b64 exec, -1")
    if after_barrier: after_barrier()
    if PREF:
        srd(k, 28, 4, 0, S * S * 2)
        k(f"s_mov_b32 m0, {JB}")
        for q in range(4): k(f"buffer_load_dwordx4 v3, s[28:31], s55 offen offset:{1024*q} lds")
    def Sx(kt): return SB + 16 * kt
    M0, M1 = 10, 11
    def maxes(kt, first):
        s = Sx(kt); out = []
        for q in range(8):
            m = M0 if q % 2 == 0 else M1
            if first and q < 2: out.append(f"v_max_f32 v{m}, v{s+2*q}, v{s+2*q+1}")
            else: out.append(f"v_max3_f32 v{m}, v{s+2*q}, v{s+2*q+1}, v{m}")
        return out
    pend = []
    for i, kt in enumerate(order):
        left = min(NB - 1, 8 - i)
        k(f"s_waitcnt lgkmcnt({left})")
        k(f"v_mfma_f32_32x32x16_bf16 {vr(Sx(kt),16)}, {vr(KF+4*(i%NB),4)}, {vr(QM,4)}, 0")
        for _ in range(min(4, len(pend))): k(pend.pop(0))
        k(f"v_mfma_f32_32x32x16_bf16 {vr(Sx(kt),16)}, {vr(KT+2*kt,4)}, {vr(QT,4)}, {vr(Sx(kt),16)}")
        if i + NB < 9: k(f"ds_read_b128 {vr(KF+4*(i%NB),4)}, v{vKa} offset:{1024*order[i+NB]}")
        for _ in range(min(6, len(pend))): k(pend.pop(0))
        if i == 2:
            pend += [f"v_bfi_b32 v{Sx(0)+r}, v{O+r}, v{Sx(0)+r}, v{Sx(8)+r}" for r in range(16)] + maxes(0, True)
        elif i > 3: pend += maxes(order[i - 2], False)
    def vread(kt, j, buf): return f"ds_read_b128 {vr(VF+4*buf,4)}, v{vVa} offset:{(4*kt+2*j)*304}"
    for b, (kt, j) in enumerate(((0, 0), (0, 1), (8, 0), (8, 1))): k(vread(kt, j, b))
    for x in pend: k(x)
    for x in maxes(6, False) + maxes(7, False): k(x)
    k(f"v_max_f32 v{M0}, v{M0}, v{M1}\nv_mov_b32 v{M1}, v{M0}\nv_permlane32_swap_b32 v{M1}, v{M0}\nv_max_f32 v{M0}, v{M0}, v{M1}")
    def softmax_tile(kt):
        s = Sx(kt); out = []
        for e in range(8):
            out.append(f"v_pk_add_f32 {vr(s+2*e,2)}, {vr(s+2*e,2)}, {vr(M0,2)} op_sel_hi:[1,0] neg_lo:[0,1] neg_hi:[0,1]")
        seq = [out[0]]
        for e in range(8):
            if e + 1 < 8: seq.append(out[e + 1])
            seq.append(f"v_exp_f32 v{s+2*e}, v{s+2*e}")
            seq.append(f"v_exp_f32 v{s+2*e+1}, v{s+2*e+1}")
            if e > 0: seq.append(f"v_cvt_pk_bf16_f32 v{s+e-1}, v{s+2*e-2}, v{s+2*e-1}")
        seq.append(f"v_cvt_pk_bf16_f32 v{s+7}, v{s+14}, v{s+15}")
        return seq
    for x in softmax_tile(0): k(x)
    s0 = Sx(0)
    for e in range(8): k(f"v_and_b32 v{s0+8+e}, v{MK+e}, v{s0+e}")
    for e in range(8): k(f"v_xor_b32 v{s0+e}, v{s0+8+e}, v{s0+e}")
    mq = [(0, s0 + 8), (1, s0 + 12), (2, s0), (3, s0 + 4)]
    first = True
    nxt = [(kt, j) for kt in range(1, 8) for j in range(2)]
    outstanding = 4
    freeb = []
    for kt in range(1, 9):
        seq = softmax_tile(kt) if kt < 8 else []
        n = len(mq)
        gap = max(1, len(seq) // max(n, 1)) if seq else 0
        pos = 0
        for qi, (b, p) in enumerate(mq):
            k(f"s_waitcnt lgkmcnt({outstanding-1})"); outstanding -= 1
            k(f"v_mfma_f32_32x32x16_bf16 {vr(O,16)}, {vr(VF+4*b,4)}, {vr(p,4)}, {'0' if first else vr(O,16)}")
            first = False
            if nxt:
                t, j = nxt.pop(0); k(vread(t, j, b)); outstanding += 1; freeb.append(b)
            for x in seq[pos:pos + gap]: k(x)
            pos += gap
        for x in seq[pos:]: k(x)
        if kt < 8: mq = [(freeb.pop(0), Sx(kt)), (freeb.pop(0), Sx(kt) + 4)]
    st.tr(2)
    k("s_waitcnt vmcnt(0)")
    unit_read(k, SB, 5, 54, t0=12)
    k(f"v_rcp_f32 v10, v{O+10}")
    for r in range(0, 10, 2): k(f"v_pk_mul_f32 {vr(O+r,2)}, {vr(O+r,2)}, v[10:11] op_sel_hi:[1,0]")
    for e in range(5): k(f"v_cvt_pk_bf16_f32 v{VF+e}, v{O+2*e}, v{O+2*e+1}")
    k(f"buffer_store_dwordx4 {vr(VF,4)}, v2, {ws}, s49 offen{fl}\nbuffer_store_dword v{VF+4}, v9, {ws}, s50 offen{fl}")
    k("s_waitcnt lgkmcnt(0)\ns_mov_b64 exec, s[36:37]")
    for ft in range(5):
        k(f"buffer_store_dwordx4 {vr(SB+4*ft,4)}, v3, {ws}, s53 offen offset:{(ft%4)*1024}{fl}")
        if ft == 3: k("s_add_u32 s53, s53, 4096")
    k("s_mov_b64 exec, -1")
    if fused:
        k(f"s_lshl_b32 s54, s{sQB}, 5\ns_add_u32 s54, s54, s{sH}\ns_lshl_b32 s54, s54, 7\ns_add_u32 s54, s54, {WS_FL2}")
        k(f"v_mov_b32 v8, 0\ns_cmp_eq_u32 s{sW}, 0\ns_cselect_b64 s[36:37], 1, 0\ns_waitcnt vmcnt(0)\ns_barrier")
        k(f"s_mov_b64 exec, s[36:37]\nbuffer_store_dword v8, v8, {ws}, s54 offen sc1\ns_mov_b64 exec, -1")
```

```python
import sys
from common import *
from k1 import k1
from k2 import k2
from k36 import k36
from k4 import k4
from k5n import k5
from mega import mega
HDR = open("sequential_preLN__sliding_block__mixer_gmlp__prompt.s.ref").read().split("; Override launch")[0]
HDR = "\n".join(l[2:] for l in HDR.strip().split("\n"))
def empty(name):
    k = K(name, 1, 64); k("s_endpgm"); return k
def make(stamps=False, nempty=0, twice=False, o1={}, o2={}, om={}, ph='23456'):
    ks = [mega('1', stamps=stamps, **o1), mega(ph, stamps=stamps, **om)]
    if '2' not in ph: ks.insert(1, mega('2', stamps=stamps, **o2))
    if '3' not in ph: ks.insert(2, mega('3', stamps=stamps))
    if ph == "45": ks.append(mega("6", stamps=stamps))
    la = list(ks) * (2 if twice else 1)
    if nempty:
        e = empty("e_kernel"); ks.append(e); la += [e] * nempty
    return build(ks, la, header=HDR), ks
if __name__ == "__main__":
    t, ks = make(True); open("allt.s", "w").write(t)
    t, ks = make(False); open("sequential_preLN__sliding_block__mixer_gmlp__prompt.s", "w").write(t)
    for q in ks: print(q.name, q.stats, q.nops, len(q.lines))
    t, ks = make("trace"); open("alltr.s", "w").write(t)
```

```python
from common import *
from relayout import *
from k1 import t_dma_setup, t_swz_read_setup, w_dma_setup, tr_read_setup, f2u, QSCALE
OOB = 0x40000000
sW, sLW, SRD_WS = 20, 23, 16
ws = S4(SRD_WS)
SRD_D = 44

def cnt_check(k, name, target, xf, lead=sLW):
    k(f"v_cmp_gt_u32 vcc, {target}, v10\ns_mov_b32 s52, 0x10000\nv_mov_b32 v9, {xf}\ns_cbranch_vccnz {name}\n{name}_ok:\nv_mov_b32 v10, 1\nds_write_b32 v9, v10")
    k.tail += [f"{name}:", f"s_cmp_lg_u32 s{lead}, 0", f"s_cbranch_scc1 {name}_l",
               f"{name}_g:", "s_sleep 8", f"buffer_load_dword v10, v8, {S4(SRD_D)}, 0 offen sc1", "s_waitcnt vmcnt(0)", f"v_cmp_gt_u32 vcc, {target}, v10", "s_sub_u32 s52, s52, 1",
               f"s_cbranch_vccz {name}_ok", "s_cmp_eq_u32 s52, 0", f"s_cbranch_scc1 {name}_ok", f"s_branch {name}_g",
               f"{name}_l:", "ds_read_b32 v10, v9", "s_waitcnt lgkmcnt(0)", "v_cmp_ne_u32 vcc, 0, v10", "s_sub_u32 s52, s52, 1", f"s_cbranch_vccnz {name}_ok",
               "s_cmp_eq_u32 s52, 0", f"s_cbranch_scc1 {name}_ok", "s_sleep 2", f"s_branch {name}_l"]

def p1(M, XF, set_flag4, rot=(2, 3)):
    k, st, name = M.k, M.st, M.name
    fused = "2" in M.ph
    fl = " sc1" if fused else ""
    NST = 9
    sI, sC = 21, 22
    SRD_T, SRD_W, SRD_V = 24, 28, 24
    sT, sT2, sWo, sMT, sMW, sMW5, sE, sS = 53, 54, 55, 14, 15, 32, 34, 33
    k(f"s_and_b32 s38, s2, 7\ns_lshr_b32 s39, s2, 3")
    k(f"s_cmp_ge_u32 s39, 24\ns_cbranch_scc1 {name}_side")
    k(f"s_and_b32 s{sI}, s38, 3\ns_lshl_b32 s{sI}, s{sI}, 2\ns_and_b32 s42, s39, 3\ns_add_u32 s{sI}, s{sI}, s42")
    k(f"s_lshr_b32 s38, s38, 2\ns_mul_i32 s38, s38, 6\ns_lshr_b32 s43, s39, 2\ns_add_u32 s{sC}, s43, s38")
    k(f"s_cmp_lt_u32 s{sW}, 4\ns_cbranch_scc1 {name}_c1")
    vDT0, vDT1, vDW = 4, 5, 16
    t_dma_setup(k, vDT0, vDT1, 1152)
    k(f"s_mul_i32 s42, s42, {rot[0]}\ns_mul_i32 s43, s43, {rot[1]}\ns_add_u32 s{sS}, s42, s43\ns_mul_i32 s38, s{sS}, 29\ns_lshr_b32 s38, s38, 8\ns_mul_i32 s38, s38, 9\ns_sub_u32 s{sS}, s{sS}, s38")
    k(f"s_mul_i32 s{sT}, s{sI}, {128*1152}\ns_mul_i32 s39, s{sLW}, {32*1152}\ns_add_u32 s{sT}, s{sT}, s39\ns_lshl_b32 s39, s{sS}, 7\ns_add_u32 s{sT}, s{sT}, s39\ns_add_u32 s{sT2}, s{sT}, {16*1152}")
    k(f"s_mul_i32 s{sWo}, s{sC}, 288\ns_mul_i32 s39, s{sS}, {64*3456}\ns_add_u32 s{sWo}, s{sWo}, s39")
    k(f"s_lshl_b32 s{sMT}, s{sLW}, 12\ns_add_u32 s{sMW}, s{sMT}, {W_BASE}")
    k(f"s_and_b32 s39, s{sLW}, 1\ns_lshl_b32 s39, s39, 10\ns_add_u32 s{sMW5}, s39, {W_BASE+16384}")
    k(f"s_cmp_lt_u32 s{sLW}, 2\ns_cselect_b64 s[{sE}:{sE+1}], -1, 0\ns_cselect_b64 s[{sE+2}:{sE+3}], 0, -1")
    k("s_waitcnt lgkmcnt(0)")
    srd(k, SRD_W, 26, 0, D * 3 * D * 2)
    k(f"s_mov_b32 s26, {S*D*2}\ns_mov_b32 s27, 0x20000")
    def dT(s):
        for q in range(4):
            k(f"s_add_u32 m0, s{sMT}, {(s%4)*T_SLOT + q*1024}")
            k(f"buffer_load_dwordx4 v{vDT0 + (q&1)}, {S4(SRD_T)}, s{sT if q < 2 else sT2} offen lds")
    def dW(s):
        for n in range(4):
            k(f"s_add_u32 m0, s{sMW}, {(s%4)*W_SLOT + n*1024}")
            k(f"buffer_load_dwordx4 v{vDW+n}, {S4(SRD_W)}, s{sWo} offen lds")
        e = sE + 2 * (s & 1)
        k(f"s_add_u32 m0, s{sMW5}, {(s%4)*W_SLOT}\ns_mov_b64 exec, s[{e}:{e+1}]")
        k(f"buffer_load_dwordx4 v{vDW+4}, {S4(SRD_W)}, s{sWo} offen lds\ns_mov_b64 exec, -1")
        k(f"s_add_u32 s{sS}, s{sS}, 1\ns_cmp_eq_u32 s{sS}, 9\ns_movk_i32 s38, 128\ns_cselect_b32 s38, {(128 - 1152) & 0xffffffff}, s38\ns_mov_b32 s39, {64*3456}\ns_cselect_b32 s39, {(-8*64*3456) & 0xffffffff}, s39")
        k(f"s_add_u32 s{sT}, s{sT}, s38\ns_add_u32 s{sT2}, s{sT2}, s38\ns_add_u32 s{sWo}, s{sWo}, s39")
    dT(0)
    w_dma_setup(k, vDW, sLW, 18, 64, [1, 2, 8, 16, 4, 32], 0, 3456)
    st.tr(1)
    dW(0)
    dT(1); dW(1)
    st.tr(2)
    srd(k, SRD_WS, 40, 0, WS_SIZE)
    k(f"s_mov_b32 s46, 256\ns_mov_b32 s47, 0x20000")
    k("s_waitcnt vmcnt(8)\ns_barrier")
    dT(2); dW(2)
    RS, CQ = 24, 26
    for s in range(NST - 1):
        vm = {7: 0}.get(s, 8)
        k(f"s_waitcnt vmcnt({vm})\ns_barrier")
        st.tr(3 + s)
        if s == 6: k(f"v_mov_b32 v8, 128\nbuffer_load_dword v10, v8, {S4(SRD_D)}, 0 offen sc1")
        if s + 3 < NST: dT(s + 3); dW(s + 3)
        if False: k(f"v_mov_b32 v8, 128\nbuffer_load_dword v10, v8, {S4(SRD_D)}, 0 offen sc1")
        if s == 7:
            cnt_check(k, f"{name}_c1poll", 1, XF + 12)
            k(f"v_and_b32 v11, 31, v1\nv_lshlrev_b32 v12, 3, v11\ns_lshl_b32 s38, s{sI}, 2\ns_add_u32 s38, s38, s{sLW}\ns_lshl_b32 s38, s38, 8\ns_add_u32 s38, s38, {WS_RS}")
            k(f"buffer_load_dwordx2 {vr(RS,2)}, v12, {ws}, s38 offen sc1")
            k(f"s_cmp_lt_u32 s{sC}, 8\ns_cselect_b64 s[42:43], -1, 0\ns_mul_i32 s38, s{sC}, 576\ns_add_u32 s38, s38, {WS_CSQ}")
            for q in range(3):
                if q < 2:
                    k(f"v_add_u32 v13, {64*q}, v1\nv_lshrrev_b32 v14, 5, v13\nv_mul_u32_u24 v14, 36, v14\nv_bfe_u32 v15, v13, 4, 1\nv_mad_u32_u24 v14, v15, 20, v14\nv_and_b32 v15, 15, v13\nv_add_u32 v14, v14, v15")
                else:
                    k(f"v_and_b32 v13, 15, v1\nv_lshrrev_b32 v14, 2, v13\nv_mul_u32_u24 v14, 36, v14\nv_and_b32 v15, 3, v13\nv_add3_u32 v14, v14, v15, 16\nv_add_u32 v13, 128, v13")
                k(f"v_cndmask_b32 v14, v13, v14, s[42:43]\nv_lshlrev_b32 v14, 2, v14\nv_lshlrev_b32 v{29+q}, 2, v13")
                k(f"buffer_load_dword v{CQ+q}, v14, {ws}, s38 offen sc1")
    k(f"s_cmp_lt_u32 s{sC}, 4\ns_cselect_b32 s38, {f2u(QSCALE)}, 1.0\ns_lshl_b32 s39, s{sLW}, 8\ns_add_u32 s39, s39, {X_BASE}\nv_lshl_add_u32 v12, v11, 2, s39")
    k(f"v_add_u32 v29, {X_BASE+1024}, v29\nv_add_u32 v30, {X_BASE+1024}, v30\nv_add_u32 v31, {X_BASE+1024}, v31\ns_waitcnt vmcnt(0)")
    k(f"v_mul_f32 v{RS}, s38, v{RS}\nv_mul_f32 v{RS+1}, s38, v{RS+1}\nds_write_b32 v12, v{RS}\nds_write_b32 v12, v{RS+1} offset:128")
    for q in range(3): k(f"ds_write_b32 v{29+q}, v{CQ+q}")
    k("s_waitcnt lgkmcnt(0)\ns_barrier")
    st.tr(11)
    k(f"s_branch {name}_p1done")
    k(f"{name}_c1:")
    vT0, vT1, vWa, vWt = 4, 5, 6, 8
    t_swz_read_setup(k, vT0, vT1, sW)
    tr_read_setup(k, vWa, 288, W_BASE)
    k(f"v_add_u32 v{vWa+1}, {3*W_SLOT}, v{vWa}")
    k(f"v_mul_u32_u24 v{vWt}, 72, v12\nv_add3_u32 v{vWt}, v{vWt}, v11, 32\nv_add_u32 v{vWt+1}, {3*W_SLOT}, v{vWt}")
    k("s_waitcnt lgkmcnt(0)")
    srd(k, SRD_WS, 40, 0, WS_SIZE)
    srd(k, SRD_V, 40, WS_VF, 256 * 9728)
    ACC, FR0 = 16, 88
    def mkreads(qk):
        def reads(c, s, kk, buf):
            slot = s % 4
            r = [f"ds_read_b128 {vr(c.T(buf,0,tt),4)}, v{vT0+kk} offset:{slot*T_SLOT + tt*2048}" for tt in range(2)]
            for ft in range(9):
                for hh in range(2):
                    o = (slot if slot < 3 else 0) * W_SLOT + (32 * kk + 16 * hh) * 288
                    va = vWa
                    if qk:
                        if ft < 8: o += 72 * (ft >> 1) + 40 * (ft & 1)
                        else: va = vWt
                    else: o += 32 * ft
                    r.append(f"ds_read_b64_tr_b16 {vr(c.W(buf,0,ft)+2*hh,2)}, v{va + (1 if slot == 3 else 0)} offset:{o}")
            return r
        return reads
    k(f"s_lshl_b32 s44, s{sI}, 2\ns_add_u32 s44, s44, s{sW}")
    k(f"s_lshl_b32 s43, s{sI}, 4\ns_add_u32 s43, s43, s{sC}\ns_lshl_b32 s43, s43, 7\ns_add_u32 s43, s43, {WS_FL1}")
    k(f"v_and_b32 v11, 15, v1\nv_lshrrev_b32 v12, 4, v1\ns_lshl_b32 s45, s{sW}, 8\ns_add_u32 s45, s45, {X_BASE}\nv_lshlrev_b32 v3, 4, v1")
    k(f"s_cmp_ge_u32 s{sC}, 8\ns_cbranch_scc1 {name}_v1")
    P, AB, CS, VO = 88, 124, 140, 176
    for qk in (True, False):
        if not qk: k(f"{name}_v1:")
        c = Cons(k, 2, 9, 1, ACC, FR0, "W" if qk else "T", mkreads(qk), rdgaps=12)
        if qk:
            k(f"v_lshl_add_u32 v13, v11, 2, s45\nv_lshlrev_b32 v14, 4, v12\nv_add_u32 v14, {X_BASE+1024}, v14")
            k(f"s_and_b32 s46, s{sC}, 3\ns_lshl_b32 s47, s46, 19\ns_lshl_b32 s48, s44, 10\ns_add_u32 s47, s47, s48")
            k(f"s_cmp_lt_u32 s{sC}, 4\ns_mov_b32 s48, {WS_QM}\ns_cselect_b32 s48, s48, {WS_KM}\ns_mov_b32 s49, {WS_QT}\ns_cselect_b32 s49, s49, {WS_KT}\ns_add_u32 s47, s47, s48")
            k(f"s_lshl_b32 s46, s46, 16\ns_add_u32 s49, s49, s46\ns_lshl_b32 s46, s44, 7\ns_add_u32 s49, s49, s46")
            k(f"v_and_b32 v10, 31, v1\nv_lshlrev_b32 v10, 2, v10\nv_lshrrev_b32 v15, 5, v1\nv_lshl_add_u32 v10, v15, 15, v10")
        else:
            k(f"v_lshl_add_u32 v13, v12, 4, s45\nv_lshlrev_b32 v14, 2, v11\nv_add_u32 v14, {X_BASE+1024}, v14")
            k(f"s_mul_i32 s47, s44, {4*9728}\ns_sub_u32 s46, s{sC}, 8\ns_mul_i32 s46, s46, {8*304}\ns_add_u32 s47, s47, s46")
            k(f"v_mul_u32_u24 v2, 9728, v12")
            m, sh = magic(18, 144)
            for ft in range(9):
                k(f"v_add_u32 v10, {16*ft}, v11\nv_mul_u32_u24 v15, {m}, v10\nv_lshrrev_b32 v15, {sh}, v15\nv_add_u32 v10, v10, v15\nv_lshl_add_u32 v{VO+ft}, v10, 4, v2")
            k(f"v_lshrrev_b32 v10, 3, v1\nv_mul_u32_u24 v10, 9728, v10\nv_and_b32 v15, 7, v1\nv_mul_u32_u24 v15, 304, v15\nv_add3_u32 v10, v10, v15, 0\nv_add_u32 v10, 288, v10")
            k(f"v_cmp_gt_u32 vcc, 32, v1\nv_mov_b32 v15, {OOB}\nv_cndmask_b32 v10, v15, v10, vcc")
            for i in range(4): k(f"v_mov_b32 v{188+i}, 0x3f803f80")
            k(f"buffer_store_dwordx4 v[188:191], v10, {S4(SRD_V)}, s47 offen{fl}")
        k("s_barrier")
        st.tr(1)
        c.first_reads(0)
        for s in range(NST):
            c.stage(s, s == NST - 1, zero_c=(s == 0), barrier=(s < NST - 1), post_barrier=(lambda s=s: st.tr(2 + s)))
        k("s_barrier")
        st.tr(11)
        if qk:
            for tt in range(2): k(f"ds_read2_b32 {vr(AB+2*tt,2)}, v13 offset0:{16*tt} offset1:{32+16*tt}")
            for ft in range(9): k(f"ds_read_b128 {vr(CS+4*ft,4)}, v14 offset:{64*ft}")
        else:
            for tt in range(2): k(f"ds_read_b128 {vr(AB+8*tt,4)}, v13 offset:{64*tt}\nds_read_b128 {vr(AB+8*tt+4,4)}, v13 offset:{128+64*tt}")
            for ft in range(9): k(f"ds_read_b32 v{CS+ft}, v14 offset:{64*ft}")
        k("s_waitcnt lgkmcnt(0)")
        for ft in range(9):
            o = P + 4 * (ft % 4)
            cp = CS + (ft & ~1); hs = ft & 1
            for tt in range(2):
                a = c.acc(tt, ft)
                for h in range(2):
                    if qk: k(f"v_pk_mul_f32 {vr(a+2*h,2)}, {vr(a+2*h,2)}, {vr(AB+2*tt,2)} op_sel_hi:[1,0]")
                    else: k(f"v_pk_mul_f32 {vr(a+2*h,2)}, {vr(a+2*h,2)}, {vr(AB+8*tt+2*h,2)}")
            for tt in range(2):
                a = c.acc(tt, ft)
                for h in range(2):
                    if qk: k(f"v_pk_fma_f32 {vr(a+2*h,2)}, {vr(CS+4*ft+2*h,2)}, {vr(AB+2*tt,2)}, {vr(a+2*h,2)} op_sel:[0,1,0]")
                    else: k(f"v_pk_fma_f32 {vr(a+2*h,2)}, {vr(cp,2)}, {vr(AB+8*tt+4+2*h,2)}, {vr(a+2*h,2)} op_sel:[{hs},0,0] op_sel_hi:[{hs},1,1]")
            for tt in range(2):
                a = c.acc(tt, ft)
                for h in range(2): k(f"v_cvt_pk_bf16_f32 v{o+2*tt+h}, v{a+2*h}, v{a+2*h+1}")
            if qk:
                k(f"v_permlane16_swap_b32 v{o}, v{o+2}\nv_permlane16_swap_b32 v{o+1}, v{o+3}")
                if ft < 8: k(f"buffer_store_dwordx4 {vr(o,4)}, v3, {ws}, s47 offen{fl}\ns_add_u32 s47, s47, 65536")
                else:
                    for e in range(4): k(f"buffer_store_dword v{o+e}, v10, {ws}, s49 offen{fl}\ns_add_u32 s49, s49, 8192")
            else:
                k(f"v_permlane32_swap_b32 v{o}, v{o+2}\nv_permlane32_swap_b32 v{o+1}, v{o+3}")
                k(f"buffer_store_dwordx4 {vr(o,4)}, v{VO+ft}, {S4(SRD_V)}, s47 offen{fl}")
        st.tr(12)
        if fused: set_flag4(k, name, 43, 10, st, 13)
        k(f"s_branch {name}_p1done")
    k(f"{name}_side:")
    k(f"s_sub_u32 s39, s39, 24\ns_lshl_b32 s39, s39, 3\ns_add_u32 s21, s39, s38")
    k(f"v_lshlrev_b32 v3, 4, v1\nv_mov_b32 v15, {OOB}\nv_and_b32 v11, 15, v1\nv_lshrrev_b32 v12, 4, v1")
    k("s_waitcnt lgkmcnt(0)")
    srd(k, SRD_W, 26, 0, D * 3 * D * 2)
    k(f"s_mov_b32 s26, {S*D*2}\ns_mov_b32 s27, 0x20000\ns_mov_b32 s46, 256\ns_mov_b32 s47, 0x20000")
    srd(k, SRD_WS, 40, 0, WS_SIZE)
    for i in range(4): k(f"v_mov_b32 v{16+i}, 0x3f803f80")
    CSP = 8 * 18432 + 256 + 256
    DA, DB, FA, FB = 160, 30, 40, 80
    k(f"s_mov_b32 s14, s50\ns_mov_b32 s15, s51\ns_mov_b32 s50, {D*F*2}\ns_mov_b32 s51, 0x20000")
    def unitA():
        k(f"s_lshr_b32 s22, s21, 1\ns_and_b32 s53, s21, 1")
        unit_offsets(k, DA, 9, [1, 2, 4, 8, 16], 0, 9216, t0=32)
        k(f"s_mul_i32 s10, s{sW}, {72*9216}\ns_mul_i32 s38, s53, {32*9216}\ns_add_u32 s10, s10, s38\ns_mul_i32 s11, s22, 288\ns_add_u32 s10, s10, s11")
        k(f"s_mul_i32 s54, s{sW}, 18432\ns_add_u32 s55, s54, 9216")
        unit_issue(k, DA, 9, 48, 10, 54)
    k(f"s_cmp_ge_u32 s{sW}, 2\ns_cbranch_scc1 {name}_scs")
    k(f"s_and_b32 s42, s2, 3\ns_lshl_b32 s42, s42, 5\ns_bfe_u32 s38, s2, 0x10002\ns_lshl_b32 s38, s38, 4\ns_add_u32 s42, s42, s38\ns_lshr_b32 s38, s21, 3\ns_lshl_b32 s38, s38, 1\ns_add_u32 s42, s42, s38")
    k(f"s_add_u32 s42, s42, s{sW}\ns_mul_i32 s43, s42, {16*1152}\nv_mul_u32_u24 v4, 1152, v11\nv_lshl_add_u32 v4, v12, 4, v4")
    for n in range(18): k(f"buffer_load_dwordx4 {vr(40+4*n,4)}, v4, {S4(SRD_T)}, s43 offen offset:{64*n}")
    k(f"v_lshrrev_b32 v13, 2, v11\nv_and_b32 v14, 3, v1\nv_cmp_eq_u32 vcc, v12, v13\nv_lshlrev_b32 v5, 3, v11\nv_cndmask_b32 v5, v15, v5, vcc")
    k(f"v_cmp_eq_u32 s[32:33], 1, v14\nv_cmp_eq_u32 s[34:35], 2, v14\nv_cmp_eq_u32 s[36:37], 3, v14\ns_lshl_b32 s42, s42, 7\ns_add_u32 s42, s42, {WS_RS}")
    for n in range(18):
        t = vr(40 + 4 * n, 4)
        k(f"s_waitcnt vmcnt({17-n})")
        k(f"v_mfma_f32_16x16x32_bf16 v[20:23], v[16:19], {t}, {'0' if n == 0 else 'v[20:23]'}\nv_mfma_f32_16x16x32_bf16 v[24:27], {t}, {t}, {'0' if n == 0 else 'v[24:27]'}")
    k(f"s_mov_b32 s38, {f2u(1.0/576)}\nv_cndmask_b32 v6, v24, v25, s[32:33]\nv_cndmask_b32 v6, v6, v26, s[34:35]\nv_cndmask_b32 v6, v6, v27, s[36:37]")
    k(f"v_mul_f32 v7, s38, v20\nv_mul_f32 v6, s38, v6\nv_fma_f32 v6, -v7, v7, v6\nv_max_f32 v6, 0, v6\nv_add_f32 v6, {f2u(1e-5)}, v6\nv_rsq_f32 v6, v6\nv_mul_f32 v7, v7, v6\nv_sub_f32 v7, 0, v7")
    k(f"buffer_store_dwordx2 v[6:7], v5, {ws}, s42 offen sc1\ns_barrier\ns_branch {name}_sj1")
    k(f"{name}_scs:")
    k(f"s_and_b32 s33, s2, 3\ns_lshl_b32 s33, s33, 3\ns_lshr_b32 s38, s21, 3\ns_add_u32 s33, s33, s38\ns_bfe_u32 s38, s2, 0x10002\ns_mul_i32 s38, s38, 27\ns_add_u32 s32, s33, s38")
    k(f"s_sub_u32 s42, s{sW}, 2\ns_mul_i32 s43, s42, {96*3456}\ns_lshl_b32 s38, s32, 6\ns_add_u32 s43, s43, s38\ns_cmp_ge_u32 s33, 27\ns_cselect_b32 s43, {OOB}, s43")
    k(f"v_lshrrev_b32 v4, 2, v1\nv_mul_u32_u24 v4, 3456, v4\nv_and_b32 v5, 3, v1\nv_lshl_add_u32 v4, v5, 4, v4")
    for n in range(6): k(f"buffer_load_dwordx4 {vr(40+4*n,4)}, v4, {S4(SRD_W)}, s43 offen\ns_add_u32 s43, s43, {16*3456}")
    nper = RESET_BYTES // 64
    k(f"v_mov_b32 v20, -1\nv_mov_b32 v21, -1\nv_mov_b32 v22, -1\nv_mov_b32 v23, -1\nv_subrev_u32 v6, 128, v0\nv_lshlrev_b32 v6, 4, v6\ns_mul_i32 s38, s21, {nper}\ns_add_u32 s38, s38, {WS_ZST}")
    k(f"buffer_store_dwordx4 v[20:23], v6, {ws}, s38 offen sc1\nv_add_u32 v6, 6144, v6\nv_cmp_gt_u32 vcc, {nper}, v6\nv_cndmask_b32 v6, v15, v6, vcc\nbuffer_store_dwordx4 v[20:23], v6, {ws}, s38 offen sc1")
    assert 6144 < nper <= 2 * 6144 and nper % 16 == 0
    for n in range(6):
        k(f"s_waitcnt vmcnt({7-n})")
        for q in range(4):
            src = 40 + 4 * n + q
            if n == 0: k(f"v_lshlrev_b32 v{24+2*q}, 16, v{src}\nv_and_b32 v{25+2*q}, 0xffff0000, v{src}")
            else: k(f"v_lshlrev_b32 v8, 16, v{src}\nv_and_b32 v9, 0xffff0000, v{src}\nv_pk_add_f32 {vr(24+2*q,2)}, {vr(24+2*q,2)}, v[8:9]")
    for sh in (4, 8):
        for e in range(8): k(f"v_add_f32_dpp v{24+e}, v{24+e}, v{24+e} row_ror:{sh} row_mask:0xf bank_mask:0xf")
    k(f"s_lshl_b32 s38, s42, 9\ns_add_u32 s38, s38, {CSP}\nv_lshlrev_b32 v6, 7, v12\nv_lshl_add_u32 v6, v5, 5, v6\nv_add_u32 v6, s38, v6")
    k(f"ds_write_b128 v6, v[24:27]\nds_write_b128 v6, v[28:31] offset:16\ns_waitcnt lgkmcnt(0)\ns_barrier")
    k(f"s_cmp_lg_u32 s{sW}, 2\ns_cbranch_scc1 {name}_sj1")
    k(f"v_and_b32 v6, 31, v1\nv_lshlrev_b32 v6, 2, v6\nv_lshrrev_b32 v7, 5, v1\nv_mul_u32_u24 v7, 1536, v7\nv_add3_u32 v7, v7, v6, 0\nv_add_u32 v7, {CSP}, v7")
    for n in range(12): k(f"ds_read_b32 v{24+n}, v7 offset:{128*n}")
    k("s_waitcnt lgkmcnt(0)")
    for n in range(1, 12): k(f"v_add_f32 v24, v24, v{24+n}")
    k(f"v_mov_b32 v25, v24\nv_permlane32_swap_b32 v24, v25\nv_add_f32 v24, v24, v25\ns_lshl_b32 s38, s32, 7\ns_add_u32 s38, s38, {WS_CSQ}\ns_cmp_ge_u32 s33, 27\ns_cselect_b32 s38, {OOB}, s38")
    k(f"buffer_store_dword v24, v6, {ws}, s38 offen sc1")
    k(f"{name}_sj1:")
    unitA()
    def arrive(word, tag):
        k(f"s_cmp_lg_u32 s{sW}, 0\ns_cbranch_scc1 {name}_arr{tag}\nv_mov_b32 v8, 1\nv_mov_b32 v9, {4*word}\ns_mov_b64 exec, 1")
        k(f"buffer_atomic_add v8, v9, {S4(SRD_D)}, 0 offen sc0 sc1\ns_waitcnt vmcnt(0)\nv_cmp_eq_u32 vcc, 63, v8\ns_and_b64 exec, exec, vcc")
        k(f"buffer_store_dword v8, v9, {S4(SRD_D)}, 0 offen offset:128 sc1\ns_mov_b64 exec, -1\n{name}_arr{tag}:")
    k("s_waitcnt vmcnt(9)\ns_barrier")
    arrive(0, "a")
    st.tr(1)
    srd(k, SRD_T, 14, 0, D * D * 2)
    k(f"s_mul_i32 s33, s22, {18*9216}\ns_add_u32 s33, s33, {WS_WINF}\ns_mul_i32 s38, s53, 9216\ns_add_u32 s33, s33, s38")
    k(f"s_mul_i32 s38, s{sW}, {2*9216}\ns_add_u32 s34, s33, s38\ns_add_u32 s35, s33, {16*9216}")
    def ustore(vF, NF, sDst):
        for ft in range(NF):
            k(f"buffer_store_dwordx4 {vr(vF+4*ft,4)}, v3, {ws}, s{sDst} offen offset:{(ft%4)*1024}{fl}")
            if ft % 4 == 3 and ft + 1 < NF: k(f"s_add_u32 s{sDst}, s{sDst}, 4096")
    def finishA(n):
        k(f"s_waitcnt vmcnt({n})")
        unit_read(k, FA, 9, 54)
        k("s_waitcnt lgkmcnt(0)")
        ustore(FA, 9, 34)
        for ft in range(9): k(f"v_mfma_f32_16x16x32_bf16 {vr(120+4*ft,4)}, v[16:19], {vr(FA+4*ft,4)}, 0")
    k(f"s_cmp_eq_u32 s{sW}, 0\ns_cbranch_scc1 {name}_sB0")
    k(f"s_cmp_gt_u32 s{sW}, 3\ns_cbranch_scc1 {name}_sNone\ns_cmp_ge_u32 s21, 48\ns_cbranch_scc1 {name}_sNone")
    k(f"s_mul_i32 s42, s21, 3\ns_add_u32 s42, s42, s{sW}\ns_sub_u32 s42, s42, 1\ns_mul_i32 s43, s42, 3641\ns_lshr_b32 s43, s43, 16\ns_mul_i32 s32, s43, 18\ns_sub_u32 s32, s42, s32")
    k(f"s_mul_i32 s42, s42, 5120\ns_add_u32 s42, s42, {WS_WOF}\ns_mul_i32 s43, s43, 144")
    k(f"s_cmp_ge_u32 s32, 16\ns_cbranch_scc1 {name}_sWoT")
    unit_offsets(k, DB, 5, [1, 2, 4, 18, 8], 0, 1152)
    k(f"s_mul_i32 s32, s32, {36*1152}\ns_branch {name}_sWo2")
    k(f"{name}_sWoT:")
    unit_offsets(k, DB, 5, [1, 18, 72, 144, 36], 16, 1152)
    k(f"s_sub_u32 s32, s32, 16\ns_mul_i32 s32, s32, {288*1152}")
    k(f"{name}_sWo2:")
    k("s_add_u32 s32, s32, s43")
    unit_issue(k, DB, 5, SRD_T, 32, 55)
    finishA(5)
    k("s_waitcnt vmcnt(9)")
    unit_read(k, FB, 5, 55)
    k("s_waitcnt lgkmcnt(0)")
    ustore(FB, 5, 42)
    k(f"s_branch {name}_sCs")
    k(f"{name}_sB0:")
    unit_offsets(k, DB, 9, [1, 2, 72, 144, 4], 64, 9216)
    k(f"s_mul_i32 s32, s53, {288*9216}\ns_add_u32 s32, s32, s11")
    unit_issue(k, DB, 9, 48, 32, 55)
    finishA(9)
    k("s_waitcnt vmcnt(9)")
    unit_read(k, FB, 9, 55)
    k("s_waitcnt lgkmcnt(0)")
    ustore(FB, 9, 35)
    for ft in range(9): k(f"v_mfma_f32_16x16x32_bf16 {vr(120+4*ft,4)}, v[16:19], {vr(FB+4*ft,4)}, {vr(120+4*ft,4)}")
    k(f"s_branch {name}_sCs")
    k(f"{name}_sNone:")
    finishA(0)
    k(f"{name}_sCs:")
    k(f"v_and_b32 v11, 15, v1\ns_mul_i32 s38, s{sW}, 576\ns_add_u32 s38, s38, {CSP}\nv_lshl_add_u32 v11, v11, 2, s38")
    for ft in range(9): k(f"ds_write_b32 v11, v{120+4*ft} offset:{64*ft}")
    k("s_waitcnt lgkmcnt(0)\ns_barrier")
    k(f"v_min_u32 v7, 143, v0\nv_lshlrev_b32 v7, 2, v7\nv_add_u32 v8, {CSP}, v7")
    for n in range(8): k(f"ds_read_b32 v{20+n}, v8 offset:{576*n}")
    k("s_waitcnt lgkmcnt(0)")
    for n in range(1, 8): k(f"v_add_f32 v20, v20, v{20+n}")
    k(f"v_cmp_gt_u32 vcc, 144, v0\nv_cndmask_b32 v7, v15, v7, vcc")
    k(f"s_mul_i32 s38, s22, 576\ns_mul_i32 s39, s53, {4608*4}\ns_add_u32 s38, s38, s39\ns_add_u32 s38, s38, {WS_CS}")
    k(f"buffer_store_dword v20, v7, {ws}, s38 offen{fl}")
    st.tr(2)
    if fused:
        k("s_waitcnt vmcnt(0)\ns_barrier")
        arrive(1, "b")
        st.tr(3)
    k(f"{name}_p1done:")
```

```python
from common import *
from relayout import *
from k1 import t_dma_setup, t_swz_read_setup, w_dma_setup, tr_read_setup, f2u, QSCALE
OOB = 0x40000000
sW, sLW, SRD_WS = 20, 23, 16
ws = S4(SRD_WS)
SRD_D = 44

def cnt_check(k, name, target, xf, lead=sLW):
    k(f"v_cmp_gt_u32 vcc, {target}, v10\ns_mov_b32 s52, 0x10000\nv_mov_b32 v9, {xf}\ns_cbranch_vccnz {name}\n{name}_ok:\nv_mov_b32 v10, 1\nds_write_b32 v9, v10")
    k.tail += [f"{name}:", f"s_cmp_lg_u32 s{lead}, 0", f"s_cbranch_scc1 {name}_l",
               f"{name}_g:", "s_sleep 8", f"buffer_load_dword v10, v8, {S4(SRD_D)}, 0 offen sc1", "s_waitcnt vmcnt(0)", f"v_cmp_gt_u32 vcc, {target}, v10", "s_sub_u32 s52, s52, 1",
               f"s_cbranch_vccz {name}_ok", "s_cmp_eq_u32 s52, 0", f"s_cbranch_scc1 {name}_ok", f"s_branch {name}_g",
               f"{name}_l:", "ds_read_b32 v10, v9", "s_waitcnt lgkmcnt(0)", "v_cmp_ne_u32 vcc, 0, v10", "s_sub_u32 s52, s52, 1", f"s_cbranch_vccnz {name}_ok",
               "s_cmp_eq_u32 s52, 0", f"s_cbranch_scc1 {name}_ok", "s_sleep 2", f"s_branch {name}_l"]

def p1(M, XF, set_flag4, rot=(2, 3)):
    k, st, name = M.k, M.st, M.name
    fused = "2" in M.ph
    fl = " sc1" if fused else ""
    NST = 9
    sI, sC = 21, 22
    SRD_T, SRD_W, SRD_V = 24, 28, 24
    sT, sT2, sWo, sMT, sMW, sMW5, sE, sS = 53, 54, 55, 14, 15, 32, 34, 33
    k(f"s_and_b32 s38, s2, 7\ns_lshr_b32 s39, s2, 3")
    k(f"s_cmp_lt_u32 s39, 8\ns_cbranch_scc1 {name}_side\ns_sub_u32 s39, s39, 8")
    k(f"s_and_b32 s{sI}, s38, 3\ns_lshl_b32 s{sI}, s{sI}, 2\ns_and_b32 s42, s39, 3\ns_add_u32 s{sI}, s{sI}, s42")
    k(f"s_lshr_b32 s38, s38, 2\ns_mul_i32 s38, s38, 6\ns_lshr_b32 s43, s39, 2\ns_add_u32 s{sC}, s43, s38")
    k(f"s_cmp_lt_u32 s{sW}, 4\ns_cbranch_scc1 {name}_c1")
    vDT0, vDT1, vDW = 4, 5, 16
    t_dma_setup(k, vDT0, vDT1, 1152)
    k(f"s_mul_i32 s42, s42, {rot[0]}\ns_mul_i32 s43, s43, {rot[1]}\ns_add_u32 s{sS}, s42, s43\ns_mul_i32 s38, s{sS}, 29\ns_lshr_b32 s38, s38, 8\ns_mul_i32 s38, s38, 9\ns_sub_u32 s{sS}, s{sS}, s38")
    k(f"s_mul_i32 s{sT}, s{sI}, {128*1152}\ns_mul_i32 s39, s{sLW}, {32*1152}\ns_add_u32 s{sT}, s{sT}, s39\ns_lshl_b32 s39, s{sS}, 7\ns_add_u32 s{sT}, s{sT}, s39\ns_add_u32 s{sT2}, s{sT}, {16*1152}")
    k(f"s_mul_i32 s{sWo}, s{sC}, 288\ns_mul_i32 s39, s{sS}, {64*3456}\ns_add_u32 s{sWo}, s{sWo}, s39")
    k(f"s_lshl_b32 s{sMT}, s{sLW}, 12\ns_add_u32 s{sMW}, s{sMT}, {W_BASE}")
    k(f"s_and_b32 s39, s{sLW}, 1\ns_lshl_b32 s39, s39, 10\ns_add_u32 s{sMW5}, s39, {W_BASE+16384}")
    k(f"s_cmp_lt_u32 s{sLW}, 2\ns_cselect_b64 s[{sE}:{sE+1}], -1, 0\ns_cselect_b64 s[{sE+2}:{sE+3}], 0, -1")
    k("s_waitcnt lgkmcnt(0)")
    srd(k, SRD_W, 26, 0, D * 3 * D * 2)
    k(f"s_mov_b32 s26, {S*D*2}\ns_mov_b32 s27, 0x20000")
    def dT(s):
        for q in range(4):
            k(f"s_add_u32 m0, s{sMT}, {(s%4)*T_SLOT + q*1024}")
            k(f"buffer_load_dwordx4 v{vDT0 + (q&1)}, {S4(SRD_T)}, s{sT if q < 2 else sT2} offen lds")
    def dW(s):
        for n in range(4):
            k(f"s_add_u32 m0, s{sMW}, {(s%4)*W_SLOT + n*1024}")
            k(f"buffer_load_dwordx4 v{vDW+n}, {S4(SRD_W)}, s{sWo} offen lds")
        e = sE + 2 * (s & 1)
        k(f"s_add_u32 m0, s{sMW5}, {(s%4)*W_SLOT}\ns_mov_b64 exec, s[{e}:{e+1}]")
        k(f"buffer_load_dwordx4 v{vDW+4}, {S4(SRD_W)}, s{sWo} offen lds\ns_mov_b64 exec, -1")
        k(f"s_add_u32 s{sS}, s{sS}, 1\ns_cmp_eq_u32 s{sS}, 9\ns_movk_i32 s38, 128\ns_cselect_b32 s38, {(128 - 1152) & 0xffffffff}, s38\ns_mov_b32 s39, {64*3456}\ns_cselect_b32 s39, {(-8*64*3456) & 0xffffffff}, s39")
        k(f"s_add_u32 s{sT}, s{sT}, s38\ns_add_u32 s{sT2}, s{sT2}, s38\ns_add_u32 s{sWo}, s{sWo}, s39")
    def grab(fn, *a):
        mark = len(k.lines); fn(*a); out = k.lines[mark:]; del k.lines[mark:]
        groups, cur = [], []
        for l in out:
            cur.append(l)
            if "buffer_load" in l and "exec" not in (cur[-2] if len(cur) > 1 else ""): groups.append(cur); cur = []
        if cur: groups.append(cur)
        return groups
    dT(0)
    w_dma_setup(k, vDW, sLW, 18, 64, [1, 2, 8, 16, 4, 32], 0, 3456)
    st.tr(1)
    dW(0)
    dT(1); dW(1)
    st.tr(2)
    srd(k, SRD_WS, 40, 0, WS_SIZE)
    vT0, vT1, vS0 = 90, 91, 92
    t_swz_read_setup(k, vT0, vT1, sLW)
    tr_read_setup(k, vS0, 288, W_BASE)
    k(f"s_lshr_b32 s42, s{sLW}, 1\ns_mul_i32 s42, s42, 72\ns_and_b32 s43, s{sLW}, 1\ns_mul_i32 s43, s43, 40\ns_add_u32 s42, s42, s43")
    k(f"s_lshl_b32 s43, s{sLW}, 5\ns_cmp_lt_u32 s{sC}, 8\ns_cselect_b32 s42, s42, s43\ns_movk_i32 s43, 144\ns_cselect_b32 s43, s43, 128\ns_cselect_b32 s38, 72, 8\ns_cselect_b32 s39, 32, 256")
    k(f"v_mad_u32_u24 v{vS0+2}, v12, s38, v11\nv_add_u32 v{vS0+2}, s39, v{vS0+2}")
    k(f"v_add_u32 v{vS0}, s42, v{vS0}\nv_add_u32 v{vS0+1}, s43, v{vS0}")
    for i in range(3): k(f"v_add_u32 v{vS0+3+i}, {3*W_SLOT}, v{vS0+i}")
    ONES, TF, WF, SUM, GR, CSA = 24, 28, 44, 68, 76, 100
    for i in range(4): k(f"v_mov_b32 v{ONES+i}, 0x3f803f80")
    if fused: k(f"s_mov_b32 s46, 256\ns_mov_b32 s47, 0x20000\nv_mov_b32 v8, 128")
    k("s_waitcnt vmcnt(8)\ns_barrier")
    for s in range(NST):
        slot = s % 4
        for kk in range(2):
            for tt in range(2): k(f"ds_read_b128 {vr(TF+8*kk+4*tt,4)}, v{vT0+kk} offset:{slot*T_SLOT + tt*2048}")
            for i in range(3):
                for hh in range(2):
                    o = (slot if slot < 3 else 0) * W_SLOT + (32 * kk + 16 * hh) * 288
                    k(f"ds_read_b64_tr_b16 {vr(WF+12*kk+4*i+2*hh,2)}, v{vS0+i+(3 if slot == 3 else 0)} offset:{o}")
        g = (grab(dT, s + 2) + grab(dW, s + 2)) if s + 2 < NST else []
        if fused and s == 7: g = [[f"    buffer_load_dword v10, v8, {S4(SRD_D)}, 0 offen sc1"]]
        mf = []
        for kk in range(2):
            z = (s == 0 and kk == 0)
            l = []
            for tt in range(2):
                t = vr(TF + 8 * kk + 4 * tt, 4)
                l.append(f"v_mfma_f32_16x16x32_bf16 {vr(SUM+4*tt,4)}, {vr(ONES,4)}, {t}, {'0' if z else vr(SUM+4*tt,4)}")
                l.append(f"v_mfma_f32_16x16x32_bf16 {vr(GR+4*tt,4)}, {t}, {t}, {'0' if z else vr(GR+4*tt,4)}")
            for i in range(3): l.append(f"v_mfma_f32_16x16x32_bf16 {vr(CSA+4*i,4)}, {vr(ONES,4)}, {vr(WF+12*kk+4*i,4)}, {'0' if z else vr(CSA+4*i,4)}")
            l[0] = f"s_waitcnt lgkmcnt({8*(1-kk)})\n" + l[0]
            mf += l
        if g: k.lines += g.pop(0)
        for n, m_ in enumerate(mf):
            k(m_)
            if g and n % 2 == 1: k.lines += g.pop(0)
        for x in g: k.lines += x
        if s + 1 < NST:
            k(f"s_waitcnt vmcnt({8 if s + 2 < NST else (1 if fused else 0)})\ns_barrier")
            st.tr(3 + s)
    k(f"v_and_b32 v11, 15, v1\nv_lshrrev_b32 v12, 4, v1\nv_lshrrev_b32 v13, 2, v11\nv_and_b32 v14, 3, v1")
    k(f"s_lshl_b32 s42, s{sLW}, 8\ns_add_u32 s42, s42, {X_BASE}\nv_lshl_add_u32 v15, v11, 2, s42")
    k(f"v_cmp_eq_u32 vcc, v12, v13\nv_mov_b32 v7, {X_BASE+2048}\nv_cndmask_b32 v15, v7, v15, vcc")
    k(f"v_cmp_eq_u32 s[42:43], 1, v14\nv_cmp_eq_u32 s[34:35], 2, v14\nv_cmp_eq_u32 s[36:37], 3, v14")
    k(f"s_mov_b32 s38, {f2u(1.0/576)}\ns_cmp_lt_u32 s{sC}, 4\ns_cselect_b32 s39, {f2u(QSCALE)}, 1.0")
    for tt in range(2):
        g_ = GR + 4 * tt
        k(f"v_cndmask_b32 v7, v{g_}, v{g_+1}, s[42:43]\nv_cndmask_b32 v7, v7, v{g_+2}, s[34:35]\nv_cndmask_b32 v7, v7, v{g_+3}, s[36:37]")
        k(f"v_mul_f32 v12, s38, v{SUM+4*tt}\nv_mul_f32 v7, s38, v7\nv_fma_f32 v7, -v12, v12, v7\nv_max_f32 v7, 0, v7\nv_add_f32 v7, {f2u(1e-5)}, v7")
        k(f"v_rsq_f32 v7, v7\nv_mul_f32 v7, s39, v7\nv_mul_f32 v12, v12, v7\nv_sub_f32 v12, 0, v12")
        k(f"ds_write_b32 v15, v7 offset:{64*tt}\nds_write_b32 v15, v12 offset:{128+64*tt}")
    k(f"s_lshl_b32 s42, s{sLW}, 6\ns_add_u32 s42, s42, {X_BASE+1024}\nv_lshl_add_u32 v15, v11, 2, s42")
    k(f"ds_write_b32 v15, v{CSA}\nds_write_b32 v15, v{CSA+4} offset:256")
    k(f"v_lshlrev_b32 v15, 2, v11\nv_add_u32 v15, {X_BASE+1024+512}, v15\nds_write_b32 v15, v{CSA+8}")
    if fused:
        k("s_waitcnt vmcnt(0)")
        cnt_check(k, f"{name}_c1poll", 1, XF + 12)
    k("s_waitcnt lgkmcnt(0)\ns_barrier")
    st.tr(11)
    k(f"s_branch {name}_p1done")
    k(f"{name}_c1:")
    vT0, vT1, vWa, vWt = 4, 5, 6, 8
    t_swz_read_setup(k, vT0, vT1, sW)
    tr_read_setup(k, vWa, 288, W_BASE)
    k(f"v_add_u32 v{vWa+1}, {3*W_SLOT}, v{vWa}")
    k(f"v_mul_u32_u24 v{vWt}, 72, v12\nv_add3_u32 v{vWt}, v{vWt}, v11, 32\nv_add_u32 v{vWt+1}, {3*W_SLOT}, v{vWt}")
    k("s_waitcnt lgkmcnt(0)")
    srd(k, SRD_WS, 40, 0, WS_SIZE)
    srd(k, SRD_V, 40, WS_VF, 256 * 9728)
    ACC, FR0 = 16, 88
    def mkreads(qk):
        def reads(c, s, kk, buf):
            slot = s % 4
            r = [f"ds_read_b128 {vr(c.T(buf,0,tt),4)}, v{vT0+kk} offset:{slot*T_SLOT + tt*2048}" for tt in range(2)]
            for ft in range(9):
                for hh in range(2):
                    o = (slot if slot < 3 else 0) * W_SLOT + (32 * kk + 16 * hh) * 288
                    va = vWa
                    if qk:
                        if ft < 8: o += 72 * (ft >> 1) + 40 * (ft & 1)
                        else: va = vWt
                    else: o += 32 * ft
                    r.append(f"ds_read_b64_tr_b16 {vr(c.W(buf,0,ft)+2*hh,2)}, v{va + (1 if slot == 3 else 0)} offset:{o}")
            return r
        return reads
    k(f"s_lshl_b32 s44, s{sI}, 2\ns_add_u32 s44, s44, s{sW}")
    k(f"s_lshl_b32 s43, s{sI}, 4\ns_add_u32 s43, s43, s{sC}\ns_lshl_b32 s43, s43, 7\ns_add_u32 s43, s43, {WS_FL1}")
    k(f"v_and_b32 v11, 15, v1\nv_lshrrev_b32 v12, 4, v1\ns_lshl_b32 s45, s{sW}, 8\ns_add_u32 s45, s45, {X_BASE}\nv_lshlrev_b32 v3, 4, v1")
    k(f"s_cmp_ge_u32 s{sC}, 8\ns_cbranch_scc1 {name}_v1")
    P, AB, CS, VO = 88, 124, 140, 176
    for qk in (True, False):
        if not qk: k(f"{name}_v1:")
        c = Cons(k, 2, 9, 1, ACC, FR0, "W" if qk else "T", mkreads(qk), rdgaps=12)
        if qk:
            k(f"v_lshl_add_u32 v13, v11, 2, s45\nv_lshlrev_b32 v14, 4, v12\nv_add_u32 v14, {X_BASE+1024}, v14")
            k(f"s_and_b32 s46, s{sC}, 3\ns_lshl_b32 s47, s46, 19\ns_lshl_b32 s48, s44, 10\ns_add_u32 s47, s47, s48")
            k(f"s_cmp_lt_u32 s{sC}, 4\ns_mov_b32 s48, {WS_QM}\ns_cselect_b32 s48, s48, {WS_KM}\ns_mov_b32 s49, {WS_QT}\ns_cselect_b32 s49, s49, {WS_KT}\ns_add_u32 s47, s47, s48")
            k(f"s_lshl_b32 s46, s46, 16\ns_add_u32 s49, s49, s46\ns_lshl_b32 s46, s44, 7\ns_add_u32 s49, s49, s46")
            k(f"v_and_b32 v10, 31, v1\nv_lshlrev_b32 v10, 2, v10\nv_lshrrev_b32 v15, 5, v1\nv_lshl_add_u32 v10, v15, 15, v10")
        else:
            k(f"v_lshl_add_u32 v13, v12, 4, s45\nv_lshlrev_b32 v14, 2, v11\nv_add_u32 v14, {X_BASE+1024}, v14")
            k(f"s_mul_i32 s47, s44, {4*9728}\ns_sub_u32 s46, s{sC}, 8\ns_mul_i32 s46, s46, {8*304}\ns_add_u32 s47, s47, s46")
            k(f"v_mul_u32_u24 v2, 9728, v12")
            m, sh = magic(18, 144)
            for ft in range(9):
                k(f"v_add_u32 v10, {16*ft}, v11\nv_mul_u32_u24 v15, {m}, v10\nv_lshrrev_b32 v15, {sh}, v15\nv_add_u32 v10, v10, v15\nv_lshl_add_u32 v{VO+ft}, v10, 4, v2")
            k(f"v_lshrrev_b32 v10, 3, v1\nv_mul_u32_u24 v10, 9728, v10\nv_and_b32 v15, 7, v1\nv_mul_u32_u24 v15, 304, v15\nv_add3_u32 v10, v10, v15, 0\nv_add_u32 v10, 288, v10")
            k(f"v_cmp_gt_u32 vcc, 32, v1\nv_mov_b32 v15, {OOB}\nv_cndmask_b32 v10, v15, v10, vcc")
            for i in range(4): k(f"v_mov_b32 v{188+i}, 0x3f803f80")
            k(f"buffer_store_dwordx4 v[188:191], v10, {S4(SRD_V)}, s47 offen{fl}")
        k("s_barrier")
        st.tr(1)
        c.first_reads(0)
        for s in range(NST):
            c.stage(s, s == NST - 1, zero_c=(s == 0), barrier=(s < NST - 1), post_barrier=(lambda s=s: st.tr(2 + s)))
        k("s_barrier")
        st.tr(11)
        if qk:
            for tt in range(2): k(f"ds_read2_b32 {vr(AB+2*tt,2)}, v13 offset0:{16*tt} offset1:{32+16*tt}")
            for ft in range(9): k(f"ds_read_b128 {vr(CS+4*ft,4)}, v14 offset:{64*ft}")
        else:
            for tt in range(2): k(f"ds_read_b128 {vr(AB+8*tt,4)}, v13 offset:{64*tt}\nds_read_b128 {vr(AB+8*tt+4,4)}, v13 offset:{128+64*tt}")
            for ft in range(9): k(f"ds_read_b32 v{CS+ft}, v14 offset:{64*ft}")
        k("s_waitcnt lgkmcnt(0)")
        for ft in range(9):
            o = P + 4 * (ft % 4)
            cp = CS + (ft & ~1); hs = ft & 1
            for tt in range(2):
                a = c.acc(tt, ft)
                for h in range(2):
                    if qk: k(f"v_pk_mul_f32 {vr(a+2*h,2)}, {vr(a+2*h,2)}, {vr(AB+2*tt,2)} op_sel_hi:[1,0]")
                    else: k(f"v_pk_mul_f32 {vr(a+2*h,2)}, {vr(a+2*h,2)}, {vr(AB+8*tt+2*h,2)}")
            for tt in range(2):
                a = c.acc(tt, ft)
                for h in range(2):
                    if qk: k(f"v_pk_fma_f32 {vr(a+2*h,2)}, {vr(CS+4*ft+2*h,2)}, {vr(AB+2*tt,2)}, {vr(a+2*h,2)} op_sel:[0,1,0]")
                    else: k(f"v_pk_fma_f32 {vr(a+2*h,2)}, {vr(cp,2)}, {vr(AB+8*tt+4+2*h,2)}, {vr(a+2*h,2)} op_sel:[{hs},0,0] op_sel_hi:[{hs},1,1]")
            for tt in range(2):
                a = c.acc(tt, ft)
                for h in range(2): k(f"v_cvt_pk_bf16_f32 v{o+2*tt+h}, v{a+2*h}, v{a+2*h+1}")
            if qk:
                k(f"v_permlane16_swap_b32 v{o}, v{o+2}\nv_permlane16_swap_b32 v{o+1}, v{o+3}")
                if ft < 8: k(f"buffer_store_dwordx4 {vr(o,4)}, v3, {ws}, s47 offen{fl}\ns_add_u32 s47, s47, 65536")
                else:
                    for e in range(4): k(f"buffer_store_dword v{o+e}, v10, {ws}, s49 offen{fl}\ns_add_u32 s49, s49, 8192")
            else:
                k(f"v_permlane32_swap_b32 v{o}, v{o+2}\nv_permlane32_swap_b32 v{o+1}, v{o+3}")
                k(f"buffer_store_dwordx4 {vr(o,4)}, v{VO+ft}, {S4(SRD_V)}, s47 offen{fl}")
        st.tr(12)
        if fused: set_flag4(k, name, 43, 10, st, 13)
        k(f"s_branch {name}_p1done")
    k(f"{name}_side:")
    k(f"s_mov_b32 s21, s2")
    k(f"v_lshlrev_b32 v3, 4, v1\nv_mov_b32 v15, {OOB}\nv_and_b32 v11, 15, v1\nv_lshrrev_b32 v12, 4, v1")
    k("s_waitcnt lgkmcnt(0)")
    k(f"s_mov_b32 s46, 256\ns_mov_b32 s47, 0x20000")
    srd(k, SRD_WS, 40, 0, WS_SIZE)
    for i in range(4): k(f"v_mov_b32 v{16+i}, 0x3f803f80")
    CSP = 8 * 18432 + 256 + 256
    DA, DB, FA, FB = 160, 30, 40, 80
    k(f"s_mov_b32 s14, s50\ns_mov_b32 s15, s51\ns_mov_b32 s50, {D*F*2}\ns_mov_b32 s51, 0x20000")
    def unitA():
        k(f"s_lshr_b32 s22, s21, 1\ns_and_b32 s53, s21, 1")
        unit_offsets(k, DA, 9, [1, 2, 4, 8, 16], 0, 9216, t0=32)
        k(f"s_mul_i32 s10, s{sW}, {72*9216}\ns_mul_i32 s38, s53, {32*9216}\ns_add_u32 s10, s10, s38\ns_mul_i32 s11, s22, 288\ns_add_u32 s10, s10, s11")
        k(f"s_mul_i32 s54, s{sW}, 18432\ns_add_u32 s55, s54, 9216")
        unit_issue(k, DA, 9, 48, 10, 54)
    nper = RESET_BYTES // 64
    assert nper <= 8192 and nper % 16 == 0
    k(f"v_mov_b32 v20, -1\nv_mov_b32 v21, -1\nv_mov_b32 v22, -1\nv_mov_b32 v23, -1\nv_lshlrev_b32 v6, 4, v0\ns_mul_i32 s38, s21, {nper}\ns_add_u32 s38, s38, {WS_ZST}")
    k(f"v_cmp_gt_u32 vcc, {nper}, v6\nv_cndmask_b32 v6, v15, v6, vcc\nbuffer_store_dwordx4 v[20:23], v6, {ws}, s38 offen{fl}")
    k(f"{name}_sj1:")
    st.tr(5)
    unitA()
    st.tr(6)
    def arrive(word, tag):
        k(f"s_cmp_lg_u32 s{sW}, 0\ns_cbranch_scc1 {name}_arr{tag}\nv_mov_b32 v8, 1\nv_mov_b32 v9, {4*word}\ns_mov_b64 exec, 1")
        k(f"buffer_atomic_add v8, v9, {S4(SRD_D)}, 0 offen sc0 sc1\ns_waitcnt vmcnt(0)\nv_cmp_eq_u32 vcc, 63, v8\ns_and_b64 exec, exec, vcc")
        k(f"buffer_store_dword v8, v9, {S4(SRD_D)}, 0 offen offset:128 sc1\ns_mov_b64 exec, -1\n{name}_arr{tag}:")
    if fused:
        k("s_waitcnt vmcnt(9)\ns_barrier")
        st.tr(7)
        arrive(0, "a")
    st.tr(1)
    srd(k, SRD_T, 14, 0, D * D * 2)
    k(f"s_mul_i32 s33, s22, {18*9216}\ns_add_u32 s33, s33, {WS_WINF}\ns_mul_i32 s38, s53, 9216\ns_add_u32 s33, s33, s38")
    k(f"s_mul_i32 s38, s{sW}, {2*9216}\ns_add_u32 s34, s33, s38\ns_add_u32 s35, s33, {16*9216}")
    def ustore(vF, NF, sDst):
        for ft in range(NF):
            k(f"buffer_store_dwordx4 {vr(vF+4*ft,4)}, v3, {ws}, s{sDst} offen offset:{(ft%4)*1024}{fl}")
            if ft % 4 == 3 and ft + 1 < NF: k(f"s_add_u32 s{sDst}, s{sDst}, 4096")
    def finishA(n):
        k(f"s_waitcnt vmcnt({n})")
        unit_read(k, FA, 9, 54)
        k("s_waitcnt lgkmcnt(0)")
        ustore(FA, 9, 34)
        for ft in range(9): k(f"v_mfma_f32_16x16x32_bf16 {vr(120+4*ft,4)}, v[16:19], {vr(FA+4*ft,4)}, 0")
    k(f"s_cmp_eq_u32 s{sW}, 0\ns_cbranch_scc1 {name}_sB0")
    k(f"s_cmp_gt_u32 s{sW}, 3\ns_cbranch_scc1 {name}_sNone\ns_cmp_ge_u32 s21, 48\ns_cbranch_scc1 {name}_sNone")
    k(f"s_mul_i32 s42, s21, 3\ns_add_u32 s42, s42, s{sW}\ns_sub_u32 s42, s42, 1\ns_mul_i32 s43, s42, 3641\ns_lshr_b32 s43, s43, 16\ns_mul_i32 s32, s43, 18\ns_sub_u32 s32, s42, s32")
    k(f"s_mul_i32 s42, s42, 5120\ns_add_u32 s42, s42, {WS_WOF}\ns_mul_i32 s43, s43, 144")
    k(f"s_cmp_ge_u32 s32, 16\ns_cbranch_scc1 {name}_sWoT")
    unit_offsets(k, DB, 5, [1, 2, 4, 18, 8], 0, 1152)
    k(f"s_mul_i32 s32, s32, {36*1152}\ns_branch {name}_sWo2")
    k(f"{name}_sWoT:")
    unit_offsets(k, DB, 5, [1, 18, 72, 144, 36], 16, 1152)
    k(f"s_sub_u32 s32, s32, 16\ns_mul_i32 s32, s32, {288*1152}")
    k(f"{name}_sWo2:")
    k("s_add_u32 s32, s32, s43")
    unit_issue(k, DB, 5, SRD_T, 32, 55)
    finishA(5)
    k("s_waitcnt vmcnt(9)")
    unit_read(k, FB, 5, 55)
    k("s_waitcnt lgkmcnt(0)")
    ustore(FB, 5, 42)
    k(f"s_branch {name}_sCs")
    k(f"{name}_sB0:")
    unit_offsets(k, DB, 9, [1, 2, 72, 144, 4], 64, 9216)
    k(f"s_mul_i32 s32, s53, {288*9216}\ns_add_u32 s32, s32, s11")
    unit_issue(k, DB, 9, 48, 32, 55)
    finishA(9)
    k("s_waitcnt vmcnt(9)")
    unit_read(k, FB, 9, 55)
    k("s_waitcnt lgkmcnt(0)")
    ustore(FB, 9, 35)
    for ft in range(9): k(f"v_mfma_f32_16x16x32_bf16 {vr(120+4*ft,4)}, v[16:19], {vr(FB+4*ft,4)}, {vr(120+4*ft,4)}")
    k(f"s_branch {name}_sCs")
    k(f"{name}_sNone:")
    finishA(0)
    k(f"{name}_sCs:")
    k(f"v_and_b32 v11, 15, v1\ns_mul_i32 s38, s{sW}, 576\ns_add_u32 s38, s38, {CSP}\nv_lshl_add_u32 v11, v11, 2, s38")
    for ft in range(9): k(f"ds_write_b32 v11, v{120+4*ft} offset:{64*ft}")
    k("s_waitcnt lgkmcnt(0)\ns_barrier")
    k(f"v_min_u32 v7, 143, v0\nv_lshlrev_b32 v7, 2, v7\nv_add_u32 v8, {CSP}, v7")
    for n in range(8): k(f"ds_read_b32 v{20+n}, v8 offset:{576*n}")
    k("s_waitcnt lgkmcnt(0)")
    for n in range(1, 8): k(f"v_add_f32 v20, v20, v{20+n}")
    k(f"v_cmp_gt_u32 vcc, 144, v0\nv_cndmask_b32 v7, v15, v7, vcc")
    k(f"s_mul_i32 s38, s22, 576\ns_mul_i32 s39, s53, {4608*4}\ns_add_u32 s38, s38, s39\ns_add_u32 s38, s38, {WS_CS}")
    k(f"buffer_store_dword v20, v7, {ws}, s38 offen{fl}")
    st.tr(2)
    if fused:
        k("s_waitcnt vmcnt(0)\ns_barrier")
        arrive(1, "b")
        st.tr(3)
    k(f"{name}_p1done:")
```
